```python
import torch

def _softmax(x, axis=-1):
    return torch.softmax(x, dim=axis)

def _gelu(x):
    return torch.nn.functional.gelu(x, approximate='tanh')

def _silu(x):
    return torch.nn.functional.silu(x)

def _sigmoid(x):
    return torch.sigmoid(x)

def _layernorm(x, axis=-1, eps=1e-05):
    m = x.mean(dim=axis, keepdim=True)
    v = x.var(dim=axis, keepdim=True, unbiased=False)
    return (x - m) / torch.sqrt(v + eps)

def _scatter_add(tgt, idx, src, axis=0):
    return tgt.clone().index_add_(axis, idx, src)

def _segment_sum(src, seg, n):
    out = torch.zeros((n,) + src.shape[1:], dtype=src.dtype)
    return out.index_add_(0, seg, src)

def _pad(x, pw):
    flat = tuple((v for pair in reversed(pw) for v in pair))
    return torch.nn.functional.pad(x, flat)
kernel_name = 'adaLN_cond__sliding_block_cached__mixer_token_mlp__decode'

def setup_inputs():

    _w = lambda a: (lambda t: t.to(torch.bfloat16) if t.is_floating_point() else t)(torch.as_tensor(a))

    def _A_setup():
        B, Sq, D = (1, 1, 640)
        Hq, Hkv, Sk, Dh = (32, 32, 8192, 128)
        assert Hq % Hkv == 0, (Hq, Hkv)
        return {'x': _w((lambda *s: torch.randn(*s, dtype=torch.bfloat16) * 0.05)(B, Sq, D)), 'k_cache': _w((lambda *s: torch.randn(*s, dtype=torch.bfloat16) * 1.6)(B, Hkv, Sk, Dh)), 'v_cache': _w((lambda *s: torch.randn(*s, dtype=torch.bfloat16) * 1.6)(B, Hkv, Sk, Dh)), 'wq': _w((lambda *s: torch.randn(*s, dtype=torch.bfloat16) * 1.6)(D, Hq * Dh) * D ** (-0.5)), 'wo': _w((lambda *s: torch.randn(*s, dtype=torch.bfloat16) * 1.6)(Hq * Dh, D) * (Hq * Dh) ** (-0.5))}
    _A_in = _A_setup()

    def _B_setup():
        B, S, D, F = (1, 1, 640, 1728)
        return {'x': _w((lambda *s: torch.randn(*s, dtype=torch.bfloat16) * 0.05)(B, S, D)), 'w1': _w((lambda *s: torch.randn(*s, dtype=torch.bfloat16) * 0.8)(S, F) * S ** (-0.5)), 'b1': _w((lambda *s: torch.randn(*s, dtype=torch.bfloat16) * 0.8)(F) * 0.02), 'w2': _w((lambda *s: torch.randn(*s, dtype=torch.bfloat16) * 0.8)(F, S) * F ** (-0.5)), 'b2': _w((lambda *s: torch.randn(*s, dtype=torch.bfloat16) * 0.8)(S) * 0.02)}
    _B_in = _B_setup()
    return {'A_x': _A_in['x'], 'A_k_cache': _A_in['k_cache'], 'A_v_cache': _A_in['v_cache'], 'A_wq': _A_in['wq'], 'A_wo': _A_in['wo'], 'B_x': _B_in['x'], 'B_w1': _B_in['w1'], 'B_b1': _B_in['b1'], 'B_w2': _B_in['w2'], 'B_b2': _B_in['b2'], 'c': _w((lambda *s: torch.randn(*s, dtype=torch.bfloat16) * 0.05)(1, 640) * 8.0), 'w_mod': _w((lambda *s: torch.randn(*s, dtype=torch.bfloat16) * 0.05)(640, 6 * 640) * 640 ** (-0.5) * 8.0)}

def reference(A_x, A_k_cache, A_v_cache, A_wq, A_wo, B_x, B_w1, B_b1, B_w2, B_b2, c, w_mod):

    def _A_ref(x, k_cache, v_cache, wq, wo):
        B, Sq, D = x.shape
        Hq, Dh = (32, 128)
        Hkv, Sk = (k_cache.shape[1], k_cache.shape[2])
        W = min(4096, max(256, Sk // 4))
        rep = Hq // Hkv
        q = (lambda x, *d: x.permute(*d))((x @ wq).reshape(B, Sq, Hq, Dh), 0, 2, 1, 3)
        k = (lambda x, n, axis: torch.repeat_interleave(x, n, dim=axis))(k_cache[:, :, Sk - W:, :], rep, axis=1)
        v = (lambda x, n, axis: torch.repeat_interleave(x, n, dim=axis))(v_cache[:, :, Sk - W:, :], rep, axis=1)
        scores = torch.einsum('bhqd,bhkd->bhqk', q, k) * Dh ** (-0.5)
        p = _softmax(scores, axis=-1)
        o = torch.einsum('bhqk,bhkd->bhqd', p, v)
        return (lambda x, *d: x.permute(*d))(o, 0, 2, 1, 3).reshape(B, Sq, Hq * Dh) @ wo

    def _B_ref(x, w1, b1, w2, b2):
        B, S, D = x.shape
        h = _layernorm(x, axis=-1)
        u = torch.einsum('bsd,sf->bdf', h, w1) + b1
        u = _gelu(u)
        y = torch.einsum('bdf,fs->bds', u, w2) + b2
        return (lambda x, *d: x.permute(*d))(y, 0, 2, 1)
    x = A_x
    mod = (_silu(c) @ w_mod).reshape(c.shape[0], 6, 1, -1)
    sa, ca, ga, sb, cb, gb = (mod[:, 0].clone(), mod[:, 1].clone(), mod[:, 2].clone(), mod[:, 3].clone(), mod[:, 4].clone(), mod[:, 5].clone())
    h = _layernorm(x, axis=-1) * (1 + ca) + sa
    x = x + ga * _A_ref(h, A_k_cache, A_v_cache, A_wq, A_wo)
    h = _layernorm(x, axis=-1) * (1 + cb) + sb
    x = x + gb * _B_ref(h, B_w1, B_b1, B_w2, B_b2)
    return x
```

```python
import re

TRANS = ("v_exp_f32", "v_log_f32", "v_rcp_f32", "v_rsq_f32", "v_sqrt_f32", "v_sin_f32", "v_cos_f32")

def regs_of(tok):
    tok = tok.strip()
    tok = re.sub(r"^-", "", tok)
    m = re.match(r"^abs\((.*)\)$", tok)
    if m: tok = m.group(1)
    m = re.match(r"^([vs])\[(\d+):(\d+)\]$", tok)
    if m: return [(m.group(1), k) for k in range(int(m.group(2)), int(m.group(3)) + 1)]
    m = re.match(r"^([vs])(\d+)$", tok)
    if m: return [(m.group(1), int(m.group(2)))]
    if tok in ("vcc", "vcc_lo", "vcc_hi"): return [("vcc", 0)]
    return []

def split_ops(s):
    out, depth, cur = [], 0, ""
    for ch in s:
        if ch == "[": depth += 1
        if ch == "]": depth -= 1
        if ch == "," and depth == 0:
            out.append(cur.strip()); cur = ""
        else: cur += ch
    if cur.strip(): out.append(cur.strip())
    return out

class Asm:
    def __init__(self):
        self.lines = []
        self.pos = 0
        self.valu_w = {}
        self.trans_w = {}
        self.mfma_w = {}
        self.sgpr_w = {}
        self.store_r = {}
        self.nops = 0
        self.ninstr = 0
    def raw(self, s):
        self.lines.append(s)
    def c(self, s):
        self.lines.append("    ; " + s)
    def label(self, name):
        self.lines.append(name + ":")
    def nop(self, n):
        while n > 0:
            k = min(n, 16)
            self.lines.append(f"    s_nop {k-1}")
            self.pos += k; self.nops += 1; n -= k
    def __call__(self, text):
        text = text.strip()
        m = re.match(r"^(\S+)\s*(.*)$", text)
        op, rest = m.group(1), m.group(2)
        ops = split_ops(rest)
        mods = ""
        if ops:
            last = ops[-1]
            mm = re.match(r"^(\S+)\s+(.*)$", last)
            if mm:
                ops[-1] = mm.group(1); mods = mm.group(2)
        need = 0
        def req(table, r, w):
            nonlocal need
            if r in table:
                d = self.pos - table[r] - 1
                if d < w: need = max(need, w - d)
        is_mfma = op.startswith("v_mfma")
        is_valu = op.startswith("v_") and not is_mfma
        is_vmem = op.startswith(("buffer_", "global_"))
        is_ds = op.startswith("ds_")
        is_dpp = ("_dpp" in op) or any(k in mods for k in ("quad_perm", "row_"))
        wr_v, rd_v, rd_s, wr_s = [], [], [], []
        if is_mfma:
            wr_v = regs_of(ops[0])
            a, b, cc = regs_of(ops[1]), regs_of(ops[2]), regs_of(ops[3])
            for r in a + b + cc: req(self.valu_w, r, 2)
            for r in a + b: req(self.mfma_w, r, 8)
            if cc and cc != wr_v:
                for r in cc: req(self.mfma_w, r, 8)
            if cc == wr_v:
                pass
            else:
                for r in wr_v: req(self.mfma_w, r, 8)
        elif is_valu:
            if op.startswith("v_cmp"):
                wr_s = regs_of(ops[0]); srcs = ops[1:]
            elif op.startswith(("v_readlane", "v_readfirstlane")):
                wr_s = regs_of(ops[0]); srcs = ops[1:]
                for r in regs_of(ops[1]): req(self.valu_w, r, 1)
                if len(ops) > 2:
                    for r in regs_of(ops[2]): req(self.sgpr_w, r, 4)
            elif op.startswith("v_permlane"):
                wr_v = regs_of(ops[0]) + regs_of(ops[1]); srcs = ops[0:2]
                for r in wr_v: req(self.valu_w, r, 2)
            elif op.startswith("v_writelane"):
                wr_v = regs_of(ops[0]); srcs = ops[1:]
                if len(ops) > 2:
                    for r in regs_of(ops[2]): req(self.sgpr_w, r, 4)
            elif op.startswith(("v_add_co", "v_addc_co", "v_sub_co")):
                wr_v = regs_of(ops[0]); wr_s = regs_of(ops[1]); srcs = ops[2:]
            else:
                wr_v = regs_of(ops[0]); srcs = ops[1:]
                if op.startswith(("v_fmac", "v_pk_fmac", "v_dot2c")): srcs = ops[0:]
                if op.startswith("v_cndmask") and len(ops) == 3: srcs = srcs + ["vcc"]
            for t in srcs:
                for r in regs_of(t):
                    if r[0] == "v": rd_v.append(r)
                    else: rd_s.append(r)
            for r in rd_v:
                req(self.trans_w, r, 1)
                req(self.mfma_w, r, 8)
            for r in wr_v:
                req(self.mfma_w, r, 8)
                req(self.store_r, r, 2)
            for r in rd_s: req(self.sgpr_w, r, 2)
            if is_dpp:
                for r in regs_of(ops[1]): req(self.valu_w, r, 2)
        elif is_vmem or is_ds:
            allr = []
            for t in ops: allr += regs_of(t)
            for r in allr:
                if r[0] == "v": req(self.mfma_w, r, 8)
                elif is_vmem: req(self.sgpr_w, r, 5)
        if need: self.nop(need)
        self.lines.append("    " + text)
        self.ninstr += 1
        p = self.pos
        if op == "s_nop":
            self.pos += int(ops[0]) + 1
            return
        self.pos += 1
        if is_mfma:
            for r in wr_v: self.mfma_w[r] = p; self.valu_w.pop(r, None); self.trans_w.pop(r, None)
        elif is_valu:
            for r in wr_v:
                self.valu_w[r] = p
                self.mfma_w.pop(r, None)
                if op in TRANS or op.replace("_e32", "").replace("_e64", "") in TRANS: self.trans_w[r] = p
                else: self.trans_w.pop(r, None)
            for r in wr_s: self.sgpr_w[r] = p
        elif is_vmem:
            if "store" in op and ("x4" in op or "x3" in op):
                for r in regs_of(ops[0] if op.startswith("buffer_") else ops[1]): self.store_r[r] = p
            if "load" in op and "lds" not in mods:
                for r in regs_of(ops[0]):
                    self.valu_w.pop(r, None); self.trans_w.pop(r, None); self.mfma_w.pop(r, None)
        elif is_ds:
            if "read" in op or "bpermute" in op:
                for r in regs_of(ops[0]):
                    self.valu_w.pop(r, None); self.trans_w.pop(r, None); self.mfma_w.pop(r, None)
        elif op.startswith("s_"):
            if ops and not op.startswith(("s_cmp", "s_cbranch", "s_branch", "s_waitcnt", "s_barrier", "s_bitcmp", "s_sleep", "s_setprio", "s_endpgm")):
                for r in regs_of(ops[0]): self.sgpr_w.pop(r, None)
    def text(self):
        return "\n".join(self.lines) + "\n"
```

```python
import sys, struct
from asmdsl import Asm
NAME = "adaLN_cond__sliding_block_cached__mixer_token_mlp__decode"

XT   = 0x1000
H1   = 0xA000
H2   = 0x14000
H3   = 0x54000
H3ML = 0x94000
H4   = 0x95000
RR   = 0x9A000
BC   = 0x9D000
DBG = 0x200000
STP = 0x800000
L_SC = 0
L_H16 = 2560
L_Q16 = 2880
L_MW = 3136
L_LW = 3168
L_MODE = 3200
L_OW = 3328
L_AV = 7680
L_RED = 9728
L_IA = 14080
L_MODS = 16640
L_FIN = 26880
LDS_BYTES = 27648

LOG2E = 0x3fb8aa3b
SCALE = 0x3db504f3
INV640 = 0x3acccccd
EPS = 0x3727c5ac
def f2h(x): return "0x%08x" % struct.unpack("<I", struct.pack("<f", x))[0]
GC0 = -2*0.7978845608028654*1.4426950408889634
GC1 = GC0*0.044715

def gen(D=4, nt="nt", ntw="nt", ntt="nt", inter=True, stamps=False, dbg=False, fast=True, prefetch=True, LIMIT=400000,
        qearly=True, b0="issue", rotmul=5, D2=None, Dswitch=99, skip='', rotmode=0, tearly=False, ackwait=True, tpos='p'):
    if D2 is None: D2 = D
    a = Asm(); I = a
    uid = [0]
    def lab(p):
        uid[0] += 1
        return f"L_{p}{uid[0]}"
    sB, sW, sG, sI, sHEAD, sJ, sT32, sT8, sMODE = "s2", "s3", "s4", "s5", "s6", "s7", "s8", "s9", "s10"
    SRD_K, SRD_V, SRD_A, SRD_M, SRD_WS = "s[12:15]", "s[16:19]", "s[20:23]", "s[24:27]", "s[28:31]"
    sOFF = [f"s{32+m}" for m in range(8)]
    P_X, P_K, P_V, P_WQ, P_WO, P_W1, P_B1, P_W2, P_B2, P_C, P_WM, P_OUT, P_DBG, P_WS = 52, 54, 56, 58, 60, 64, 66, 68, 70, 72, 74, 76, 78, 80
    sMU = [f"s[{82+2*m}:{83+2*m}]" for m in range(4)]
    sQ = [None, "s[90:91]", "s[92:93]", "s[94:95]"]
    sRV = "s[96:97]"
    sFF = "s98"
    vST = "v167"
    inchain = [False]
    def stamp(k, chain=False):
        if not stamps: return
        if stamps is not True and ((k + 100) if inchain[0] else k) not in stamps: return
        I("s_memrealtime s[50:51]"); I("s_waitcnt lgkmcnt(0)"); I(f"v_writelane_b32 {vST}, s50, {k}")
    DPPM = "row_mask:0xf bank_mask:0xf"
    def dppreduce(op, regs, mods):
        for mod in mods:
            for r in regs: I(f"{op}_dpp v{r}, v{r}, v{r} {mod} {DPPM}")
    Q2 = ["quad_perm:[1,0,3,2]", "quad_perm:[2,3,0,1]"]
    R8 = Q2 + ["row_half_mirror"]
    R16 = Q2 + ["row_ror:4", "row_ror:8"]
    def crossrow(op, regs, tmp, which=("v_permlane16_swap_b32", "v_permlane32_swap_b32")):
        for sw in which:
            for r, t in zip(regs, tmp): I(f"v_mov_b32 v{t}, v{r}")
            for r, t in zip(regs, tmp): I(f"{sw} v{r}, v{t}")
            for r, t in zip(regs, tmp): I(f"{op} v{r}, v{r}, v{t}")
    def allreduce(op, regs, tmp):
        dppreduce(op, regs, R16); crossrow(op, regs, tmp)
    def rbf(dst, src, tmp):
        I(f"v_cvt_pk_bf16_f32 v{tmp}, v{src}, v{src}"); I(f"v_lshlrev_b32 v{dst}, 16, v{tmp}")
    def rbf2(d0, d1, s0, s1, tmp):
        I(f"v_cvt_pk_bf16_f32 v{tmp}, v{s0}, v{s1}"); I(f"v_lshlrev_b32 v{d0}, 16, v{tmp}"); I(f"v_and_b32 v{d1}, 0xffff0000, v{tmp}")
    def setexec(mask):
        lo, hi = mask & 0xffffffff, mask >> 32
        if mask == (1 << 64) - 1: I("s_mov_b64 exec, -1")
        else: I(f"s_mov_b32 exec_lo, {hex(lo)}"); I(f"s_mov_b32 exec_hi, {hex(hi)}")
    def poll(loads, check, mask=None, cnt="s51"):
        l0, l1 = lab("poll"), lab("pdone")
        if mask is not None: setexec(mask)
        I(f"s_mov_b32 {cnt}, 0")
        a.label(l0)
        for s in loads: I(s)
        I(f"s_add_u32 {cnt}, {cnt}, 1")
        I("s_waitcnt vmcnt(0)")
        check()
        I("s_and_b64 exec, exec, vcc")
        I(f"s_cbranch_scc0 {l1}")
        I(f"s_cmp_lt_u32 {cnt}, {LIMIT}")
        I(f"s_cbranch_scc1 {l0}")
        a.label(l1)
        I("s_mov_b64 exec, -1")
    def chk24(granules, vTb, t0):
        def f():
            for b in granules:
                for c in range(4): I(f"v_xor_b32 v{b+c}, v{vTb}, v{b+c}")
            first = True
            for b in granules:
                if first: I(f"v_or3_b32 v{t0}, v{b}, v{b+1}, v{b+2}"); I(f"v_or_b32 v{t0}, v{t0}, v{b+3}"); first = False
                else: I(f"v_or3_b32 v{t0}, v{t0}, v{b}, v{b+1}"); I(f"v_or3_b32 v{t0}, v{t0}, v{b+2}, v{b+3}")
            I(f"v_and_b32 v{t0}, 0xff, v{t0}"); I(f"v_cmp_ne_u32 vcc, 0, v{t0}")
        return f
    def chk32(pairs, vT, t0, t1):
        def f():
            for n, (x, y) in enumerate(pairs):
                if n == 0: I(f"v_bitop3_b32 v{t0}, v{x}, v{y}, v{vT} bitop3:0x7e")
                else: I(f"v_bitop3_b32 v{t1}, v{x}, v{y}, v{vT} bitop3:0x7e"); I(f"v_or_b32 v{t0}, v{t0}, v{t1}")
            I(f"v_cmp_ne_u32 vcc, 0, v{t0}")
        return f
    def store_mode(texts):
        if not fast:
            for t in texts: I(t + " sc1")
            return
        l0, l1 = lab("sl"), lab("sd")
        I(f"s_cmp_eq_u32 {sMODE}, 1"); I(f"s_cbranch_scc0 {l0}")
        for t in texts: I(t)
        I(f"s_branch {l1}")
        a.label(l0)
        for t in texts: I(t + " sc1")
        a.label(l1)
    def dbgstore(regs, slot):
        if not dbg: return
        I("s_mul_i32 s50, s2, 0x4000"); I(f"s_add_u32 s50, s50, {DBG + slot*0x400}")
        I("v_lshlrev_b32 v166, 2, v0")
        for n, r in enumerate(regs): I(f"buffer_store_dword v{r}, v166, {SRD_WS}, s50 offen offset:{n*256}")
        I("s_waitcnt vmcnt(0)")

    a.raw(open("header.txt").read().rstrip("\n"))
    a.raw(f"; @launch grid=(256,1,1) block=(576,1,1) lds={LDS_BYTES}")
    a.raw('.amdgcn_target "amdgcn-amd-amdhsa--gfx950"')
    a.raw(".text"); a.raw(f".globl {NAME}_kernel"); a.raw(".p2align 8"); a.raw(f".type {NAME}_kernel,@function"); a.raw(f"{NAME}_kernel:")
    if stamps: I("s_memrealtime s[48:49]")
    I("s_cmp_ge_u32 s2, 256"); I("s_cbranch_scc1 L_END")
    I("s_load_dwordx16 s[52:67], s[0:1], 0")
    I("s_load_dwordx8 s[68:75], s[0:1], 64")
    I("s_load_dwordx4 s[76:79], s[0:1], 96")
    I("s_load_dwordx2 s[80:81], s[0:1], 112")
    I("v_lshrrev_b32 v1, 6, v0")
    I("v_and_b32 v0, 63, v0")
    I(f"v_readfirstlane_b32 {sW}, v1")
    I(f"s_and_b32 {sG}, s2, 7"); I(f"s_lshr_b32 {sI}, s2, 3")
    I(f"s_and_b32 s11, {sI}, 3"); I(f"s_lshl_b32 {sHEAD}, {sG}, 2"); I(f"s_add_u32 {sHEAD}, {sHEAD}, s11")
    I(f"s_lshr_b32 {sJ}, {sI}, 2")
    I("v_and_b32 v2, 15, v0"); I("v_lshrrev_b32 v3, 4, v0")
    I(f"s_mov_b32 {sFF}, 0xff")
    if stamps: I(f"v_mov_b32 {vST}, 0")
    I("v_and_b32 v8, 7, v0"); I("v_lshrrev_b32 v9, 1, v8"); I("v_and_b32 v8, 1, v8")
    I("v_mov_b32 v10, 0xffff"); I("v_mov_b32 v11, 0xffff0000")
    I("v_cmp_eq_u32 vcc, 1, v8"); I("v_cndmask_b32 v10, v10, v11, vcc")
    for r in range(4):
        I(f"v_cmp_eq_u32 s[{40+2*r}:{41+2*r}], {r}, v9")
    for r in range(4):
        I(f"v_cndmask_b32_e64 v{4+r}, 0, v10, s[{40+2*r}:{41+2*r}]")
    MASK = [4, 5, 6, 7]
    I("s_waitcnt lgkmcnt(0)")
    if stamps: I(f"v_writelane_b32 {vST}, s48, 0")
    I(f"s_load_dword {sT32}, s[{P_WS}:{P_WS+1}], 0")
    I(f"s_mov_b32 s28, s{P_WS}"); I(f"s_and_b32 s29, s{P_WS+1}, 0xffff"); I("s_mov_b32 s30, 0x100000" if not (dbg or stamps) else "s_mov_b32 s30, 0x10000000"); I("s_mov_b32 s31, 0x20000")
    I(f"s_cmp_eq_u32 {sW}, 8"); I("s_cbranch_scc1 L_CHAIN")

    vK, vV, vT, vBQ = 8, 40, 72, 92
    vD0, vD1, vA0, vA1, vDO = 112, 116, 120, 124, 128
    vP0, vP1 = 132, 133
    vW1, vB1, vW2, vB2 = 144, 146, 148, 150
    aOW, aOR, aH3, aG3, aML, aAVw, aAVr, aREDw, aREDr, aBC, aH3B, aG3B = 151, 152, 153, 154, 155, 156, 157, 158, 159, 160, 108, 109
    I(f"s_lshl_b32 s40, {sHEAD}, 21"); I(f"s_lshl_b32 s41, {sJ}, 16"); I("s_add_u32 s40, s40, s41"); I(f"s_add_u32 s40, s40, {6144*256}")
    I(f"s_add_u32 s12, s{P_K}, s40"); I(f"s_addc_u32 s13, s{P_K+1}, 0"); I("s_and_b32 s13, s13, 0xffff"); I("s_mov_b32 s14, 65536"); I("s_mov_b32 s15, 0x20000")
    I(f"s_add_u32 s16, s{P_V}, s40"); I(f"s_addc_u32 s17, s{P_V+1}, 0"); I("s_and_b32 s17, s17, 0xffff"); I("s_mov_b32 s18, 65536"); I("s_mov_b32 s19, 0x20000")
    if rotmode == 0: I(f"s_mul_i32 s40, s2, {rotmul}")
    elif rotmode == 1: I(f"s_add_u32 s40, {sI}, {sG}")
    elif rotmode == 2: I(f"s_mul_i32 s40, {sG}, 3"); I(f"s_add_u32 s40, s40, {sI}"); I(f"s_add_u32 s40, s40, {sW}")
    I(f"s_lshl_b32 s42, {sW}, {10 if inter else 13}")
    for m in range(8):
        if m: I(f"s_add_u32 s40, s40, 1")
        I("s_and_b32 s41, s40, 7"); I(f"s_lshl_b32 s41, s41, {13 if inter else 10}"); I(f"s_add_u32 {sOFF[m]}, s41, s42")
    I("v_and_b32 v134, 3, v0"); I("v_lshlrev_b32 v134, 4, v134")
    I("v_bfe_u32 v135, v0, 2, 2"); I("v_lshl_or_b32 v134, v135, 8, v134"); I("v_lshl_or_b32 v134, v3, 6, v134")
    I("v_lshlrev_b32 v135, 4, v0")
    vKO, vVO = 134, 135
    I(f"s_cmp_lt_u32 {sI}, 20"); I("s_cbranch_scc0 L_notwo")
    I(f"s_mul_i32 s40, {sG}, {512*1280}"); I(f"s_lshl_b32 s41, {sI}, 6"); I("s_add_u32 s40, s40, s41")
    I(f"s_add_u32 s20, s{P_WO}, s40"); I(f"s_addc_u32 s21, s{P_WO+1}, 0"); I(f"s_mov_b32 s22, {511*1280+64}")
    I("s_mov_b32 s43, 1280"); I("s_mov_b32 s44, 64"); I("s_branch L_tdesc")
    a.label("L_notwo")
    I(f"s_mul_i32 s40, {sG}, 10"); I(f"s_add_u32 s40, s40, {sI}"); I("s_sub_u32 s40, s40, 20"); I("s_lshl_b32 s40, s40, 6"); I("s_add_u32 s40, s40, 2560")
    I(f"s_add_u32 s20, s{P_WM}, s40"); I(f"s_addc_u32 s21, s{P_WM+1}, 0")
    I(f"s_cmp_lt_u32 {sI}, 30"); I(f"s_cselect_b32 s22, {639*7680+64}, 0")
    I("s_mov_b32 s43, 7680"); I("s_mov_b32 s44, 80")
    a.label("L_tdesc")
    I("s_and_b32 s21, s21, 0xffff"); I("s_mov_b32 s23, 0x20000")
    I("v_bfe_u32 v110, v0, 2, 2"); I("v_lshl_add_u32 v110, v110, 2, v3"); I("v_mul_lo_u32 v110, v110, s43")
    I("v_and_b32 v137, 3, v0"); I("v_lshl_add_u32 v110, v137, 4, v110")
    vTO = 110
    I(f"s_mul_i32 s45, {sW}, s44"); I("s_mul_i32 s45, s45, s43")
    I("s_lshl_b32 s46, s43, 4")
    I(f"s_cmp_lt_u32 {sI}, {0 if 'T' in skip else 30}"); I("s_cselect_b32 s45, s45, 0"); I("s_cselect_b32 s46, s46, 0"); I("s_cselect_b32 s22, s22, 0")
    I("s_cmp_eq_u32 s44, 80"); I("s_cselect_b32 s47, 0, 0x7ff00000"); I(f"v_add_u32 v111, s47, v110")
    I(f"s_mul_i32 s47, {sW}, 432"); I("v_lshlrev_b32 v137, 3, v0"); I("v_add_u32 v137, s47, v137")
    for r in range(6): I(f"v_mov_b32 v{vW1+r}, 0")
    I("v_mov_b32 v138, 0")
    stamp(12) if 'W' not in skip else None
    if b0: I("s_barrier")
    if prefetch:
        I(f"s_and_b32 s48, {sI}, 7"); I(f"s_lshl_b32 s48, s48, 3"); I(f"s_or_b32 s48, s48, {sW}"); I("s_cmp_eq_u32 s48, 7"); I("s_cbranch_scc0 L_nopf")
        I("s_getpc_b64 s[48:49]")
        a.label("L_PC")
        I("v_lshlrev_b32 v161, 7, v0")
        for pf in range(2):
            I(f"v_add_u32 v{162+pf}, {8192*pf}, v161"); I(f"v_min_u32 v{162+pf}, L_END-L_PC, v{162+pf}")
            I(f"global_load_dword v{164+pf}, v{162+pf}, s[48:49]")
        a.label("L_nopf")
    seq = []
    for m in range(8): seq.append(f"buffer_load_dwordx4 v[{vK+4*m}:{vK+4*m+3}], v{vKO}, {SRD_K}, {sOFF[m]} offen {nt}")
    for m in range(8): seq.append(f"buffer_load_dwordx4 v[{vV+4*m}:{vV+4*m+3}], v{vVO}, {SRD_V}, {sOFF[m]} offen {nt}")
    seq.append("W")
    if tearly:
        for n in range(5): seq.append(("T", n))
    issued = []
    for s in seq:
        if s == "W":
            setexec((1 << 54) - 1)
            I(f"global_load_dwordx2 v[{vW1}:{vW1+1}], v137, s[{P_W1}:{P_W1+1}]")
            I(f"global_load_dwordx2 v[{vB1}:{vB1+1}], v137, s[{P_B1}:{P_B1+1}]")
            I(f"global_load_dwordx2 v[{vW2}:{vW2+1}], v137, s[{P_W2}:{P_W2+1}]")
            I("s_mov_b64 exec, -1")
            I(f"global_load_ushort v{vB2}, v138, s[{P_B2}:{P_B2+1}]")
            issued += ["small"]*4
            continue
        bigs = [k for k, x in enumerate(issued) if x == "big"]
        depth = D if len(bigs) < Dswitch else D2
        if len(bigs) >= depth:
            n_after = len(issued) - 1 - bigs[len(bigs) - depth]
            if n_after < len(issued): I(f"s_waitcnt vmcnt({n_after})")
        issued.append("big")
        if isinstance(s, tuple):
            n = s[1]
            if n == 4:
                I("s_cmp_eq_u32 s44, 80"); I("s_cselect_b32 s47, s45, 0")
                I(f"buffer_load_dwordx4 v[{vT+4*n}:{vT+4*n+3}], v111, {SRD_A}, s47 offen {ntt}")
            else:
                I(f"buffer_load_dwordx4 v[{vT+4*n}:{vT+4*n+3}], v{vTO}, {SRD_A}, s45 offen {ntt}")
                I("s_add_u32 s45, s45, s46")
        else: I(s)
    NAFTER_V = 4 + 5
    def tail_loads():
        for n in range(5):
            if n == 4:
                I("s_cmp_eq_u32 s44, 80"); I("s_cselect_b32 s47, s45, 0")
                I(f"buffer_load_dwordx4 v[{vT+4*n}:{vT+4*n+3}], v111, {SRD_A}, s47 offen {ntt}")
            else:
                I(f"buffer_load_dwordx4 v[{vT+4*n}:{vT+4*n+3}], v{vTO}, {SRD_A}, s45 offen {ntt}")
                I("s_add_u32 s45, s45, s46")
    if 'W' in skip:
        I(f"s_waitcnt vmcnt({NAFTER_V if tearly else 4})"); stamp(12); I("s_waitcnt vmcnt(0)"); stamp(13)
    stamp(1)
    I("v_lshrrev_b32 v138, 2, v2")
    for m in range(4): I(f"v_cmp_eq_u32 {sMU[m]}, {m}, v138")
    I("v_and_b32 v139, 3, v2")
    for m in range(1, 4): I(f"v_cmp_eq_u32 {sQ[m]}, {m}, v139")
    I("v_and_b32 v140, 1, v138"); I("v_lshrrev_b32 v141, 1, v3"); I(f"v_cmp_eq_u32 {sRV}, v140, v141")
    I("v_and_b32 v140, 1, v3"); I("v_lshl_add_u32 v140, v139, 1, v140"); I("v_lshl_add_u32 v140, v138, 3, v140"); I("v_lshlrev_b32 v140, 4, v140")
    I(f"s_mul_i32 s40, {sW}, 544"); I(f"v_add_u32 v{aREDw}, s40, v140")
    I("v_and_b32 v140, 7, v0"); I("v_mul_u32_u24 v140, 544, v140"); I("v_lshrrev_b32 v141, 3, v0"); I(f"v_lshl_add_u32 v{aREDr}, v141, 4, v140")
    I(f"s_lshl_b32 s41, {sW}, 6"); I(f"v_add_u32 v{aOR}, s41, v{aREDr}")
    I(f"v_lshlrev_b32 v{aH3}, 4, v141"); I(f"s_lshl_b32 s41, {sW}, 6"); I(f"v_add_u32 v{aH3}, s41, v{aH3}")
    I(f"v_lshrrev_b32 v{aH3B}, 1, v{aH3}")
    I(f"v_lshl_add_u32 v{aOW}, v2, 1, v3"); I(f"v_lshlrev_b32 v{aOW}, 4, v{aOW}"); I(f"v_add_u32 v{aOW}, s40, v{aOW}")
    I("v_and_b32 v140, 31, v0"); I("v_lshrrev_b32 v141, 5, v0")
    I("s_movk_i32 s41, 3072"); I(f"v_lshlrev_b32 v{aG3}, 4, v140"); I(f"v_mad_u32_u24 v{aG3}, v141, s41, v{aG3}")
    I(f"v_lshlrev_b32 v{aG3B}, 3, v140"); I(f"v_mad_u32_u24 v{aG3B}, v141, s41, v{aG3B}")
    I(f"v_lshlrev_b32 v{aML}, 2, v141"); I(f"v_add_u32 v{aML}, v{aML}, v0"); I(f"v_and_b32 v{aML}, 7, v{aML}"); I(f"v_lshlrev_b32 v{aML}, 4, v{aML}")
    I(f"v_lshlrev_b32 v{aAVw}, 4, v140"); I(f"s_lshl_b32 s41, {sW}, 9"); I(f"v_add_u32 v{aAVw}, s41, v{aAVw}")
    I(f"s_lshl_b32 s40, {sW}, 8"); I(f"s_add_u32 s40, s40, {L_AV}"); I(f"s_mul_i32 s41, {sW}, 320"); I(f"s_add_u32 s41, s41, {L_SC}")
    I("s_cmp_eq_u32 s44, 80"); I("s_cselect_b32 s40, s41, s40")
    I("v_bfe_u32 v140, v0, 3, 1"); I("v_lshl_add_u32 v140, v140, 2, v3"); I(f"v_lshlrev_b32 v{aAVr}, 2, v140"); I(f"v_add_u32 v{aAVr}, s40, v{aAVr}")
    I("v_min_u32 v140, 2, v3"); I(f"s_mul_i32 s40, {sI}, 3"); I("v_add_u32 v140, s40, v140"); I("v_min_u32 v140, 79, v140"); I(f"v_lshlrev_b32 v{aBC}, 4, v140")
    I("v_lshl_add_u32 v139, v3, 2, v139"); I(f"v_lshlrev_b32 v139, 4, v139")
    I("s_waitcnt lgkmcnt(0)")
    I(f"s_add_u32 {sT32}, {sT32}, 1"); I(f"s_and_b32 {sT8}, {sT32}, 0xff")
    I("s_barrier")
    if not tearly and tpos == 'b1': tail_loads()
    stamp(2)
    I(f"ds_read_b128 v[140:143], v139 offset:{L_Q16}")
    I(f"v_mov_b32 v138, 0"); I(f"ds_read_b32 v138, v138 offset:{L_MODE}")
    I("s_waitcnt lgkmcnt(0)")
    I(f"v_readfirstlane_b32 {sMODE}, v138")
    for m in range(4):
        for r in range(4): I(f"v_cndmask_b32_e64 v{vBQ+4*m+r}, 0, v{140+r}, {sMU[m]}")
    I(f"s_waitcnt vmcnt({8 + (NAFTER_V if (tearly or tpos == 'b1') else 4)})")
    stamp(3)
    for m in range(8):
        t = m // 4; D_ = vD0 if t == 0 else vD1
        c = "0" if m % 4 == 0 else f"v[{D_}:{D_+3}]"
        I(f"v_mfma_f32_16x16x32_bf16 v[{D_}:{D_+3}], v[{vK+4*m}:{vK+4*m+3}], v[{vBQ+4*(m%4)}:{vBQ+4*(m%4)+3}], {c}")
    for k in (1, 2, 3):
        for t, D_ in ((0, vD0), (1, vD1)):
            s = 134 + t
            I(f"v_cndmask_b32_e64 v{s}, v{D_ if k == 1 else s}, v{D_+k}, {sQ[k]}")
    dppreduce("v_add_f32", [134, 135], Q2)
    rbf2(134, 135, 134, 135, 136)
    I(f"v_mul_f32 v134, {hex(SCALE)}, v134"); I(f"v_mul_f32 v135, {hex(SCALE)}, v135")
    rbf2(134, 135, 134, 135, 136)
    dbgstore([134, 135], 0)
    I("v_max_f32 v136, v134, v135")
    dppreduce("v_max_f32", [136], ["row_ror:4", "row_ror:8"]); crossrow("v_max_f32", [136], [137])
    I(f"s_lshl_b32 s40, {sW}, 2"); I("v_mov_b32 v138, s40")
    setexec(1)
    I(f"ds_write_b32 v138, v136 offset:{L_MW}")
    I("s_mov_b64 exec, -1")
    I("s_waitcnt lgkmcnt(0)")
    I("s_barrier")
    I("v_mov_b32 v137, 0")
    I(f"ds_read_b128 v[120:123], v137 offset:{L_MW}"); I(f"ds_read_b128 v[140:143], v137 offset:{L_MW+16}")
    I("s_waitcnt lgkmcnt(0)")
    I("v_max3_f32 v136, v120, v121, v122"); I("v_max3_f32 v136, v136, v123, v140"); I("v_max3_f32 v136, v136, v141, v142"); I("v_max_f32 v136, v136, v143")
    vM = 136
    I("v_sub_f32 v134, v134, v136"); I("v_sub_f32 v135, v135, v136")
    I(f"v_mul_f32 v134, {hex(LOG2E)}, v134"); I(f"v_mul_f32 v135, {hex(LOG2E)}, v135")
    I("v_exp_f32 v134, v134"); I("v_exp_f32 v135, v135")
    I(f"v_cvt_pk_bf16_f32 v{vP0}, v134, v134"); I(f"v_cvt_pk_bf16_f32 v{vP1}, v135, v135")
    I("v_add_f32 v137, v134, v135")
    for m in range(8):
        P_ = vP0 if m < 4 else vP1
        for r in range(4): I(f"v_and_b32_dpp v{vK+4*m+r}, v{P_}, v{MASK[r]} row_newbcast:{4*(m%4)} {DPPM}")
    dppreduce("v_add_f32", [137], ["row_ror:4", "row_ror:8"]); crossrow("v_add_f32", [137], [139])
    setexec(1)
    I(f"ds_write_b32 v138, v137 offset:{L_LW}")
    I("s_mov_b64 exec, -1")
    vTB, vTG32, vC0 = 92, 93, 94
    uW1, uB1, uW2 = 96, 100, 104
    I(f"v_mov_b32 v{vTB}, {sT8}"); I(f"v_mov_b32 v{vTG32}, {sT32}")
    I(f"v_mov_b32 v{vC0}, {f2h(GC0)}"); I(f"v_mov_b32 v{vC0+1}, {f2h(GC0)}")
    stamp(4)
    if not tearly and tpos == 'p': tail_loads()
    for m in range(8):
        I(f"s_waitcnt vmcnt({(7-m)+NAFTER_V})")
        c = "0" if m == 0 else f"v[{vDO}:{vDO+3}]"
        I(f"v_mfma_f32_16x16x32_bf16 v[{vDO}:{vDO+3}], v[{vK+4*m}:{vK+4*m+3}], v[{vV+4*m}:{vV+4*m+3}], {c}")
    stamp(5)
    I(f"s_lshl_b32 s40, {sHEAD}, 3"); I(f"s_add_u32 s40, s40, {sJ}"); I("s_mul_i32 s40, s40, 768"); I(f"s_add_u32 s40, s40, {H3}")
    I(f"s_lshl_b32 s41, {sHEAD}, 7"); I(f"s_lshl_b32 s42, {sJ}, 4"); I("s_add_u32 s41, s41, s42"); I(f"s_add_u32 s41, s41, {H3ML}")
    setexec((1 << 32) - 1)
    I(f"ds_write_b128 v{aOW}, v[{vDO}:{vDO+3}] offset:{L_OW}")
    I("s_mov_b64 exec, -1")
    I("s_waitcnt lgkmcnt(0)")
    I("s_barrier")
    I(f"ds_read_b128 v[24:27], v{aOR} offset:{L_OW}")
    I("v_mov_b32 v21, 0")
    I(f"ds_read_b128 v[40:43], v21 offset:{L_LW}"); I(f"ds_read_b128 v[44:47], v21 offset:{L_LW+16}")
    I(f"v_mov_b32 v31, v{vTG32}")
    I("s_waitcnt lgkmcnt(2)")
    dppreduce("v_add_f32", [24, 25, 26, 27], R8)
    I("v_mov_b32 v30, v27")
    I(f"v_mov_b32 v27, v{vTG32}")
    I("s_mov_b32 exec_lo, 0x01010101"); I("s_mov_b32 exec_hi, 0")
    store_mode([f"buffer_store_dwordx4 v[24:27], v{aH3}, {SRD_WS}, s40 offen", f"buffer_store_dwordx2 v[30:31], v{aH3B}, {SRD_WS}, s40 offen offset:512"])
    I("s_mov_b64 exec, -1")
    I(f"s_cmp_eq_u32 {sW}, 7"); I("s_cbranch_scc0 L_noml")
    I("s_waitcnt lgkmcnt(0)")
    I("v_add_f32 v40, v40, v41"); I("v_add_f32 v42, v42, v43"); I("v_add_f32 v44, v44, v45"); I("v_add_f32 v46, v46, v47")
    I("v_add_f32 v40, v40, v42"); I("v_add_f32 v44, v44, v46"); I("v_add_f32 v41, v40, v44")
    I(f"v_mov_b32 v40, v{vM}"); I("v_mov_b32 v42, 0"); I(f"v_mov_b32 v43, v{vTG32}")
    setexec(1)
    store_mode([f"buffer_store_dwordx4 v[40:43], v21, {SRD_WS}, s41 offen"])
    I("s_mov_b64 exec, -1")
    a.label("L_noml")
    stamp(6)
    I("s_waitcnt vmcnt(5)") if False else None
    I(f"s_cmp_lt_u32 {sI}, 20"); I("s_cbranch_scc1 L_WO")
    I(f"s_cmp_lt_u32 {sI}, 30"); I("s_cbranch_scc1 L_GEMV")
    I(f"s_cmp_eq_u32 {sI}, 30"); I("s_cbranch_scc1 L_IMP")
    I("s_branch L_FINISH")

    a.label("L_WO")
    I(f"s_cmp_lt_u32 {sW}, 4"); I("s_cbranch_scc0 L_wo_b4")
    I(f"s_lshl_b32 s40, {sG}, 2"); I(f"s_add_u32 s40, s40, {sW}"); I("s_lshl_b32 s41, s40, 7"); I(f"s_add_u32 s41, s41, {H3ML}")
    I(f"s_mul_i32 s40, s40, {8*768}"); I(f"s_add_u32 s40, s40, {H3}")
    lds_ = [f"buffer_load_dwordx4 v[40:43], v{aML}, {SRD_WS}, s41 offen sc1"]
    for n in range(4):
        lds_.append(f"buffer_load_dwordx4 v[{24+4*n}:{27+4*n}], v{aG3}, {SRD_WS}, s40 offen offset:{768*n} sc1")
        lds_.append(f"buffer_load_dwordx2 v[{44+2*n}:{45+2*n}], v{aG3B}, {SRD_WS}, s40 offen offset:{768*n+512} sc1")
    def chk3():
        I(f"v_bitop3_b32 v52, v27, v45, v{vTG32} bitop3:0x7e"); I(f"v_bitop3_b32 v53, v31, v47, v{vTG32} bitop3:0x7e")
        I(f"v_bitop3_b32 v54, v35, v49, v{vTG32} bitop3:0x7e"); I(f"v_bitop3_b32 v55, v39, v51, v{vTG32} bitop3:0x7e")
        I(f"v_xor_b32 v56, v43, v{vTG32}"); I("v_or3_b32 v52, v52, v53, v54"); I("v_or3_b32 v52, v52, v55, v56")
        I("v_cmp_ne_u32 vcc, 0, v52")
    poll(lds_, chk3)
    stamp(7)
    I("v_mov_b32 v42, v40")
    dppreduce("v_max_f32", [42], R8)
    I("v_sub_f32 v40, v40, v42"); I(f"v_mul_f32 v40, {hex(LOG2E)}, v40"); I("v_exp_f32 v40, v40")
    I("v_mul_f32 v41, v41, v40")
    dppreduce("v_add_f32", [41], R8)
    I("v_rcp_f32 v41, v41")
    I("v_mul_f32 v40, v40, v41")
    val = lambda n, c: (24 + 4*n + c) if c < 3 else (44 + 2*n)
    for c in range(4): I(f"v_mul_f32_dpp v{56+c}, v40, v{val(0, c)} row_newbcast:0 {DPPM}")
    for n in range(1, 4):
        for c in range(4): I(f"v_fmac_f32_dpp v{56+c}, v40, v{val(n, c)} row_newbcast:{n} {DPPM}")
    crossrow("v_add_f32", [56, 57, 58, 59], [60, 61, 62, 63], which=("v_permlane32_swap_b32",))
    for c in range(4): I(f"v_cvt_pk_bf16_f32 v{56+c}, v{56+c}, v{56+c}")
    dbgstore([56, 57, 58, 59], 1)
    setexec((1 << 32) - 1)
    I(f"ds_write_b128 v{aAVw}, v[56:59] offset:{L_AV}")
    I("s_mov_b64 exec, -1")
    I("s_waitcnt lgkmcnt(0)")
    a.label("L_wo_b4")
    I("s_barrier")
    a.label("L_GEMV")
    for n in range(5): I(f"ds_read2_b32 v[{24+2*n}:{25+2*n}], v{aAVr} offset0:{16*n} offset1:{16*n+8}")
    I("v_lshrrev_b32 v20, 2, v2"); I("v_cmp_gt_u32 s[40:41], 2, v20")
    I("s_waitcnt vmcnt(0) lgkmcnt(0)")
    stamp(8)
    def gemv_step(n, first):
        for k, A_ in enumerate((vA0, vA1)):
            for r in range(4): I(f"v_and_b32 v{A_+r}, v{24+2*n+k}, v{MASK[r]}")
        for k, (A_, D_) in enumerate(((vA0, vD0), (vA1, vD1))):
            c = "0" if first else f"v[{D_}:{D_+3}]"
            I(f"v_mfma_f32_16x16x32_bf16 v[{D_}:{D_+3}], v[{A_}:{A_+3}], v[{vT+4*n}:{vT+4*n+3}], {c}")
    for n in range(4): gemv_step(n, n == 0)
    I("s_cmp_eq_u32 s44, 80"); I("s_cbranch_scc0 L_gemv4")
    gemv_step(4, False)
    a.label("L_gemv4")
    a.nop(8)
    for c in range(4): I(f"v_cndmask_b32_e64 v{24+c}, v{vD1+c}, v{vD0+c}, s[40:41]")
    I(f"s_mov_b64 exec, {sRV}")
    I(f"ds_write_b128 v{aREDw}, v[24:27] offset:{L_RED}")
    I("s_mov_b64 exec, -1")
    I(f"s_mul_i32 s40, {sG}, 10"); I(f"s_add_u32 s40, s40, {sI}"); I("s_sub_u32 s40, s40, 20"); I("s_lshl_b32 s40, s40, 7"); I(f"s_add_u32 s40, s40, {RR}")
    I(f"s_mul_i32 s41, {sG}, 2560"); I(f"s_lshl_b32 s42, {sI}, 7"); I("s_add_u32 s41, s41, s42"); I(f"s_add_u32 s41, s41, {H4}")
    I("s_cmp_eq_u32 s44, 80"); I("s_cselect_b32 s40, s40, s41")
    I("v_lshrrev_b32 v20, 3, v0"); I("v_lshlrev_b32 v20, 4, v20")
    I("s_waitcnt lgkmcnt(0)")
    I("s_barrier")
    I(f"s_cmp_eq_u32 {sW}, 0"); I("s_cbranch_scc0 L_nopub4")
    for s in range(4): I(f"ds_read_b128 v[{24+4*s}:{27+4*s}], v{aREDr} offset:{L_RED + 128*s}")
    I("s_waitcnt lgkmcnt(0)")
    for c in range(4): I(f"v_add_f32 v{24+c}, v{24+c}, v{28+c}"); I(f"v_add_f32 v{32+c}, v{32+c}, v{36+c}")
    for c in range(4): I(f"v_add_f32 v{24+c}, v{24+c}, v{32+c}")
    dppreduce("v_add_f32", [24, 25, 26, 27], R8)
    I("s_cmp_eq_u32 s44, 80"); I("s_cbranch_scc0 L_pubwo")
    for c in range(4): rbf(24+c, 24+c, 28)
    a.label("L_pubwo")
    for c in range(4): I(f"v_bfi_b32 v{24+c}, {sFF}, v{vTB}, v{24+c}")
    I("s_mov_b32 exec_lo, 0x01010101"); I("s_mov_b32 exec_hi, 0x01010101")
    I(f"buffer_store_dwordx4 v[24:27], v20, {SRD_WS}, s40 offen sc1")
    I("s_mov_b64 exec, -1")
    stamp(9)
    a.label("L_nopub4")
    I(f"s_cmp_lt_u32 {sI}, 27"); I("s_cbranch_scc0 L_FINISH")

    for base, raw in ((uW1, vW1), (uB1, vB1), (uW2, vW2)):
        for h in range(2):
            I(f"v_lshlrev_b32 v{base+2*h}, 16, v{raw+h}"); I(f"v_and_b32 v{base+2*h+1}, 0xffff0000, v{raw+h}")
    I(f"v_lshlrev_b32 v{vB2}, 16, v{vB2}")
    I(f"s_lshl_b32 s40, {sG}, 11"); I(f"s_add_u32 s40, s40, {BC}")
    I(f"s_mov_b32 s46, {f2h(GC1)}"); I(f"s_mov_b32 s47, {f2h(GC1)}")
    I("v_lshlrev_b32 v22, 7, v2"); I(f"s_lshl_b32 s41, {sW}, 4"); I("v_lshl_add_u32 v22, v3, 2, v22"); I("v_add_u32 v22, s41, v22")
    I("v_lshlrev_b32 v23, 7, v3"); I("v_lshl_add_u32 v23, v2, 2, v23")
    I("v_cmp_eq_u32 s[42:43], 1, v2"); I("v_cmp_eq_u32 s[44:45], 2, v2")
    def chkbc(): I(f"v_cmp_ne_u32 vcc, v27, v{vTG32}")
    poll([f"buffer_load_dwordx4 v[24:27], v{aBC}, {SRD_WS}, s40 offen sc1"], chkbc)
    stamp(10)
    for d in range(3): I(f"v_readlane_b32 s{32+2*d}, v24, {16*d}")
    U = lambda d, h: 28 + 4*d + 2*h
    E = lambda d, h: 40 + 4*d + 2*h
    pr = lambda r: f"v[{r}:{r+1}]"
    DH = [(d, h) for d in range(3) for h in range(2)]
    for d, h in DH: I(f"v_pk_fma_f32 {pr(U(d,h))}, s[{32+2*d}:{33+2*d}], {pr(uW1+2*h)}, {pr(uB1+2*h)} op_sel_hi:[0,1,1]")
    for d, h in DH: I(f"v_pk_mul_f32 {pr(E(d,h))}, {pr(U(d,h))}, {pr(U(d,h))}")
    for d, h in DH: I(f"v_pk_fma_f32 {pr(E(d,h))}, {pr(E(d,h))}, s[46:47], {pr(vC0)}")
    for d, h in DH: I(f"v_pk_mul_f32 {pr(E(d,h))}, {pr(U(d,h))}, {pr(E(d,h))}")
    for d, h in DH:
        I(f"v_exp_f32 v{E(d,h)}, v{E(d,h)}"); I(f"v_exp_f32 v{E(d,h)+1}, v{E(d,h)+1}")
        I(f"v_pk_mul_f32 {pr(U(d,h))}, {pr(U(d,h))}, {pr(uW2+2*h)}")
    for d, h in DH: I(f"v_pk_add_f32 {pr(E(d,h))}, {pr(E(d,h))}, 1.0 op_sel_hi:[1,0]")
    for d, h in DH: I(f"v_rcp_f32 v{E(d,h)}, v{E(d,h)}"); I(f"v_rcp_f32 v{E(d,h)+1}, v{E(d,h)+1}")
    for d in range(3): I(f"v_pk_mul_f32 {pr(U(d,0))}, {pr(U(d,0))}, {pr(E(d,0))}")
    for d in range(3): I(f"v_pk_fma_f32 {pr(U(d,0))}, {pr(U(d,1))}, {pr(E(d,1))}, {pr(U(d,0))}")
    for d in range(3): I(f"v_add_f32 v{52+d}, v{U(d,0)}, v{U(d,0)+1}")
    dppreduce("v_add_f32", [52, 53, 54], R16)
    I("v_cndmask_b32_e64 v52, v52, v53, s[42:43]"); I("v_cndmask_b32_e64 v52, v52, v54, s[44:45]")
    I("s_mov_b32 exec_lo, 0x00070007"); I("s_mov_b32 exec_hi, 0x00070007")
    I(f"ds_write_b32 v22, v52 offset:{L_FIN}")
    I("s_mov_b64 exec, -1")
    I(f"s_mul_i32 s40, {sI}, 3"); I("v_add_u32 v21, s40, v3"); I("v_cmp_gt_u32 vcc, 80, v21")
    I(f"s_mul_i32 s41, {sG}, 80"); I("v_add_u32 v21, s41, v21"); I("v_lshlrev_b32 v21, 1, v21")
    I("s_waitcnt lgkmcnt(0)")
    I("s_barrier")
    I(f"s_cmp_eq_u32 {sW}, 0"); I("s_cbranch_scc0 L_FINISH")
    I(f"ds_read2_b32 v[32:33], v23 offset0:{L_FIN//4} offset1:{L_FIN//4+16}") if L_FIN//4 + 16 < 256 else (I(f"v_add_u32 v23, {L_FIN}, v23"), I("ds_read2_b32 v[32:33], v23 offset0:0 offset1:16"))
    I("s_waitcnt lgkmcnt(0)")
    I("v_add_f32 v32, v32, v33")
    dppreduce("v_add_f32", [32], R16)
    rbf(32, 32, 33)
    I(f"v_add_f32 v32, v32, v{vB2}"); rbf(32, 32, 33)
    I("v_mul_f32 v32, v26, v32"); rbf(32, 32, 33)
    I("v_add_f32 v32, v25, v32"); I("v_cvt_pk_bf16_f32 v32, v32, v32")
    dbgstore([24, 25, 26, 32], 2)
    I("s_mov_b32 exec_lo, 0x00010001"); I("s_mov_b32 exec_hi, 0x00000001"); I("s_and_b64 exec, exec, vcc")
    I(f"global_store_short v21, v32, s[{P_OUT}:{P_OUT+1}]")
    I("s_mov_b64 exec, -1")
    stamp(11)
    I("s_branch L_FINISH")

    a.label("L_IMP")
    I("v_mul_u32_u24 v58, 20, v0")
    I(f"global_load_dwordx4 v[60:63], v58, s[{P_X}:{P_X+1}]"); I(f"global_load_dword v64, v58, s[{P_X}:{P_X+1}] offset:16")
    I(f"s_cmp_lt_u32 {sW}, 5"); I("s_cbranch_scc0 L_imp_gate")
    I("v_and_b32 v20, 31, v0"); I(f"s_lshl_b32 s41, {sW}, 5"); I("v_add_u32 v20, s41, v20"); I("v_lshlrev_b32 v20, 4, v20")
    I("v_lshrrev_b32 v21, 5, v0"); I("s_movk_i32 s41, 10240"); I("v_mad_u32_u24 v21, v21, s41, v20")
    I(f"s_mov_b32 s40, {H4}"); I(f"s_mov_b32 s41, {H4+5120}")
    poll([f"buffer_load_dwordx4 v[24:27], v21, {SRD_WS}, s40 offen sc1", f"buffer_load_dwordx4 v[28:31], v21, {SRD_WS}, s40 offen offset:2560 sc1",
          f"buffer_load_dwordx4 v[32:35], v21, {SRD_WS}, s41 offen sc1", f"buffer_load_dwordx4 v[36:39], v21, {SRD_WS}, s41 offen offset:2560 sc1"],
         chk24([24, 28, 32, 36], vTB, 56))
    stamp(7)
    for c in range(4): I(f"v_add_f32 v{24+c}, v{24+c}, v{28+c}"); I(f"v_add_f32 v{32+c}, v{32+c}, v{36+c}")
    for c in range(4): I(f"v_add_f32 v{24+c}, v{24+c}, v{32+c}")
    crossrow("v_add_f32", [24, 25, 26, 27], [28, 29, 30, 31], which=("v_permlane32_swap_b32",))
    setexec((1 << 32) - 1)
    I(f"ds_write_b128 v20, v[24:27] offset:{L_IA}")
    I("s_mov_b64 exec, -1")
    I("s_branch L_imp_b4")
    a.label("L_imp_gate")
    I(f"s_sub_u32 s41, {sW}, 5"); I("s_lshl_b32 s41, s41, 8"); I("v_add_u32 v20, s41, v0")
    for n in range(4):
        I(f"v_add_u32 v{44+n}, {64*n}, v20"); I(f"v_min_u32 v{44+n}, 639, v{44+n}"); I(f"v_lshlrev_b32 v{44+n}, 4, v{44+n}")
    I(f"s_mov_b32 s40, {RR}")
    poll([f"buffer_load_dwordx4 v[{24+4*n}:{27+4*n}], v{44+n}, {SRD_WS}, s40 offen sc1" for n in range(4)], chk24([24, 28, 32, 36], vTB, 56))
    for n in range(4): I(f"ds_write_b128 v{44+n}, v[{24+4*n}:{27+4*n}] offset:{L_MODS}")
    a.label("L_imp_b4")
    I("s_waitcnt vmcnt(0) lgkmcnt(0)")
    I("s_barrier")
    I(f"s_cmp_eq_u32 {sW}, 0"); I("s_cbranch_scc0 L_FINISH")
    stamp(8)
    I("v_lshlrev_b32 v58, 1, v58")
    for n in range(5): I(f"ds_read_b64 v[{24+2*n}:{25+2*n}], v58 offset:{L_IA + 8*n}")
    for n in range(5): I(f"ds_read_b64 v[{34+2*n}:{35+2*n}], v58 offset:{L_MODS + 8*n}")
    for n in range(5): I(f"ds_read_b64 v[{66+2*n}:{67+2*n}], v58 offset:{L_MODS + 5120 + 8*n}")
    for n in range(5): I(f"ds_read_b64 v[{44+2*n}:{45+2*n}], v58 offset:{L_MODS + 2560 + 8*n}")
    REC = 96
    for n in range(5):
        I(f"v_lshlrev_b32 v{76+2*n}, 16, v{60+n}"); I(f"v_and_b32 v{77+2*n}, 0xffff0000, v{60+n}")
    I("s_waitcnt lgkmcnt(10)")
    for n in range(5): I(f"v_pk_fma_f32 v[{24+2*n}:{25+2*n}], v[{34+2*n}:{35+2*n}], v[{24+2*n}:{25+2*n}], v[{76+2*n}:{77+2*n}]")
    for c in range(10): I(f"ds_read_b32 v{REC+4*c+2}, v58 offset:{L_MODS + 7680 + 4*c}")
    def stats(X, fill):
        I(f"v_pk_add_f32 v[54:55], v[{X}:{X+1}], v[{X+2}:{X+3}]"); I(f"v_pk_mul_f32 v[56:57], v[{X}:{X+1}], v[{X}:{X+1}]")
        for n in range(1, 5):
            if n > 1: I(f"v_pk_add_f32 v[54:55], v[54:55], v[{X+2*n}:{X+2*n+1}]")
            I(f"v_pk_fma_f32 v[56:57], v[{X+2*n}:{X+2*n+1}], v[{X+2*n}:{X+2*n+1}], v[56:57]")
        I("v_add_f32 v54, v54, v55"); I("v_add_f32 v56, v56, v57")
        steps = []
        for mod in R16: steps.append([f"v_add_f32_dpp v54, v54, v54 {mod} {DPPM}", f"v_add_f32_dpp v56, v56, v56 {mod} {DPPM}"])
        for sw in ("v_permlane16_swap_b32", "v_permlane32_swap_b32"):
            steps.append(["v_mov_b32 v55, v54", "v_mov_b32 v57, v56"])
            steps.append([f"{sw} v54, v55", f"{sw} v56, v57"])
            steps.append(["v_add_f32 v54, v54, v55", "v_add_f32 v56, v56, v57"])
        fill = list(fill)
        for st in steps:
            for s in st: I(s)
            if fill: I(fill.pop(0))
        for s in fill: I(s)
        I(f"v_mul_f32 v54, {hex(INV640)}, v54")
        I(f"v_mul_f32 v56, {hex(INV640)}, v56"); I("v_fma_f32 v56, -v54, v54, v56"); I("v_max_f32 v56, 0, v56")
        I(f"v_add_f32 v56, {hex(EPS)}, v56"); I("v_rsq_f32 v55, v56")
        I("v_mul_f32 v56, -v54, v55") if False else None
        I("v_mul_f32 v56, v54, v55"); I("v_mov_b32 v54, v55")
    fill1 = [f"v_mov_b32 v{REC+4*c+1}, v{24+c}" for c in range(10)]
    stats(24, fill1)
    I("s_waitcnt lgkmcnt(0)")
    for n in range(5): I(f"v_pk_fma_f32 v[{24+2*n}:{25+2*n}], v[{24+2*n}:{25+2*n}], v[54:55], v[56:57] op_sel_hi:[1,0,0] neg_lo:[0,0,1] neg_hi:[0,0,1]")
    for n in range(5): I(f"v_pk_add_f32 v[{44+2*n}:{45+2*n}], v[{44+2*n}:{45+2*n}], v[{24+2*n}:{25+2*n}]")
    for n in range(5): I(f"v_pk_fma_f32 v[{24+2*n}:{25+2*n}], v[{24+2*n}:{25+2*n}], v[{66+2*n}:{67+2*n}], v[{44+2*n}:{45+2*n}]")
    fill2 = [f"v_mov_b32 v{REC+4*c+3}, v{vTG32}" for c in range(10)]
    stats(24, fill2)
    for c in range(10): I(f"v_fma_f32 v{REC+4*c}, v{24+c}, v54, -v56")
    I(f"s_lshl_b32 s41, {sG}, 3"); I("v_subrev_u32 v58, s41, v0"); I("v_mul_u32_u24 v58, 160, v58")
    I(f"s_lshl_b32 s40, {sG}, 11"); I(f"s_add_u32 s40, s40, {BC}")
    I("s_mov_b64 s[42:43], 0xff"); I("s_lshl_b64 exec, s[42:43], s41")
    store_mode([f"buffer_store_dwordx4 v[{REC+4*c}:{REC+4*c+3}], v58, {SRD_WS}, s40 offen offset:{16*c}" for c in range(10)])
    I("s_mov_b64 exec, -1")
    stamp(9)
    I(f"s_cmp_eq_u32 {sG}, 0"); I("s_cbranch_scc0 L_FINISH")
    I(f"v_mov_b32 v58, 0"); setexec(1)
    I(f"buffer_store_dword v{vTG32}, v58, {SRD_WS}, 0 offen sc1")
    I("s_mov_b64 exec, -1")
    I("s_branch L_FINISH")

    a.label("L_CHAIN")
    inchain[0] = True
    stamp(10)
    vM_, vQ = 12, 52
    CR, C0, XR, vTG, cA0, cA1, cD0, cD1, XQ = 156, 132, 142, 147, 148, 152, 156, 160, 164
    I("v_mul_u32_u24 v8, 20, v0")
    I(f"global_load_dwordx4 v[{CR}:{CR+3}], v8, s[{P_C}:{P_C+1}]"); I(f"global_load_dword v{CR+4}, v8, s[{P_C}:{P_C+1}] offset:16")
    I(f"s_and_b32 s40, {sG}, 1"); I("s_mul_i32 s40, s40, 20"); I(f"s_add_u32 s40, s40, {sI}")
    I(f"s_lshr_b32 s41, {sG}, 1")
    I(f"s_mul_i32 s42, s41, {160*7680}"); I("s_lshl_b32 s43, s40, 6"); I("s_add_u32 s42, s42, s43")
    I(f"s_add_u32 s24, s{P_WM}, s42"); I(f"s_addc_u32 s25, s{P_WM+1}, 0"); I("s_and_b32 s25, s25, 0xffff")
    I("v_bfe_u32 v10, v0, 2, 2"); I("v_lshl_add_u32 v10, v10, 2, v3"); I("s_movk_i32 s43, 7680"); I("v_mul_lo_u32 v10, v10, s43")
    I("v_and_b32 v11, 3, v0"); I("v_lshl_add_u32 v10, v11, 4, v10")
    I(f"s_cmp_lt_u32 {sI}, {0 if 'M' in skip else 20}"); I(f"s_cselect_b32 s26, {159*7680+64}, 0"); I("s_mov_b32 s27, 0x20000")
    I("s_mov_b32 s44, 0"); I(f"s_cselect_b32 s49, {16*7680}, 0")
    for n in range(10):
        I(f"buffer_load_dwordx4 v[{vM_+4*n}:{vM_+4*n+3}], v10, {SRD_M}, s44 offen {ntw}")
        if n < 9: I(f"s_add_u32 s44, s44, s49")
    stamp(11)
    if b0 == "m": I("s_barrier")
    I(f"global_load_dwordx4 v[{XR}:{XR+3}], v8, s[{P_X}:{P_X+1}]"); I(f"global_load_dword v{XR+4}, v8, s[{P_X}:{P_X+1}] offset:16")
    I(f"s_mul_i32 s42, {sJ}, 160"); I("v_min_u32 v9, 19, v0"); I("v_lshlrev_b32 v9, 3, v9"); I("v_add_u32 v9, s42, v9")
    I(f"global_load_dwordx2 v[{XQ}:{XQ+1}], v9, s[{P_X}:{P_X+1}]")
    I(f"s_mul_i32 s42, {sJ}, {80*8192}"); I(f"s_lshl_b32 s43, {sHEAD}, 8"); I("s_add_u32 s42, s42, s43")
    I(f"s_add_u32 s20, s{P_WQ}, s42"); I(f"s_addc_u32 s21, s{P_WQ+1}, 0"); I("s_and_b32 s21, s21, 0xffff"); I(f"s_mov_b32 s22, {0 if 'Q' in skip else 79*8192+256}"); I("s_mov_b32 s23, 0x20000")
    I("v_lshlrev_b32 v11, 13, v3"); I("v_lshl_add_u32 v11, v2, 4, v11")
    def qloads():
        I("s_mov_b32 s44, 0")
        for m in range(20):
            I(f"buffer_load_dwordx4 v[{vQ+4*m}:{vQ+4*m+3}], v11, {SRD_A}, s44 offen {nt}")
            if m < 19 and 'Q' not in skip: I(f"s_add_u32 s44, s44, {4*8192}")
    if qearly: qloads()
    nq = 20 if qearly else 0
    if b0 == "issue": I("s_barrier")
    I("s_getreg_b32 s45, hwreg(HW_REG_XCC_ID, 0, 4)")
    I("s_waitcnt lgkmcnt(0)")
    I(f"s_add_u32 {sT32}, {sT32}, 1"); I(f"s_and_b32 {sT8}, {sT32}, 0xff")
    I(f"s_lshl_b32 s46, {sT32}, 4"); I("s_or_b32 s47, s46, s45")
    I("v_mov_b32 v166, s47"); I(f"s_lshl_b32 s48, {sG}, 7"); I(f"s_lshl_b32 s49, {sI}, 2"); I("s_add_u32 s48, s48, s49"); I(f"s_add_u32 s48, s48, {XT}"); I("v_mov_b32 v9, 0")
    setexec(1)
    I(f"buffer_store_dword v166, v9, {SRD_WS}, s48 offen" + ("" if 'S' in skip else " sc1"))
    I("s_mov_b64 exec, -1")
    I(f"v_mov_b32 v{vTG}, {sT32}")
    NTAIL = 3 + nq + 1
    if 'P' in skip: I("s_branch L_B1")
    I(f"s_waitcnt vmcnt({10 + NTAIL})")
    stamp(6)
    if b0 == "c": I("s_barrier")
    for n in range(5):
        I(f"v_lshlrev_b32 v{C0+2*n}, 16, v{CR+n}"); I(f"v_and_b32 v{C0+2*n+1}, 0xffff0000, v{CR+n}")
    for half in range(0, 10, 2):
        cs = (half, half+1)
        t = {c: 148 + 4*(c % 2) for c in cs}
        for c in cs: I(f"v_mul_f32 v{t[c]}, {hex(LOG2E ^ 0x80000000)}, v{C0+c}")
        for c in cs: I(f"v_exp_f32 v{t[c]}, v{t[c]}")
        for c in cs: I(f"v_add_f32 v{t[c]}, 1.0, v{t[c]}")
        for c in cs: I(f"v_rcp_f32 v{t[c]+1}, v{t[c]}")
        for c in cs: I(f"v_mul_f32 v{t[c]+2}, v{C0+c}, v{t[c]+1}")
        for c in cs: I(f"v_fma_f32 v{t[c]+3}, -v{t[c]+2}, v{t[c]}, v{C0+c}")
        for c in cs: I(f"v_fma_f32 v{t[c]+2}, v{t[c]+3}, v{t[c]+1}, v{t[c]+2}")
        for c in cs: I(f"v_cvt_pk_bf16_f32 v{C0+c}, v{t[c]+2}, v{t[c]+2}")
    I("v_lshlrev_b32 v8, 1, v8")
    for n in range(5): I(f"ds_write_b64 v8, v[{C0+2*n}:{C0+2*n+1}] offset:{L_SC + 8*n}")
    stamp(7)
    I(f"s_cmp_lt_u32 {sI}, 20"); I("s_cbranch_scc0 L_nomtask")
    I("s_mul_i32 s42, s41, 640"); I("v_bfe_u32 v8, v0, 3, 1"); I("v_lshl_add_u32 v8, v8, 2, v3"); I("v_lshlrev_b32 v8, 2, v8"); I("v_add_u32 v8, s42, v8")
    I("s_waitcnt lgkmcnt(0)")
    AV = C0
    for n in range(5): I(f"ds_read2_b32 v[{AV+2*n}:{AV+2*n+1}], v8 offset0:{16*n} offset1:{16*n+8}")
    for n in range(10):
        h = n % 5
        if n == 0 or n == 5: I(f"s_waitcnt vmcnt({9 - n + NTAIL}) lgkmcnt(0)")
        else: I(f"s_waitcnt vmcnt({9 - n + NTAIL})")
        for k, A_ in enumerate((cA0, cA1)):
            for r in range(4): I(f"v_and_b32 v{A_+r}, v{AV+2*h+k}, v{MASK[r]}")
        if n < 5: I(f"ds_read2_b32 v[{AV+2*h}:{AV+2*h+1}], v8 offset0:{16*(n+5)} offset1:{16*(n+5)+8}")
        for k, (A_, D_) in enumerate(((cA0, cD0), (cA1, cD1))):
            c = "0" if n == 0 else f"v[{D_}:{D_+3}]"
            I(f"v_mfma_f32_16x16x32_bf16 v[{D_}:{D_+3}], v[{A_}:{A_+3}], v[{vM_+4*n}:{vM_+4*n+3}], {c}")
    if b0 == "arrive": I("s_barrier")
    stamp(8)
    I("v_lshrrev_b32 v8, 2, v2"); I("v_and_b32 v9, 1, v8"); I("v_lshrrev_b32 v10, 1, v3")
    I("v_cmp_eq_u32 s[42:43], v9, v10"); I("v_cmp_gt_u32 vcc, 2, v8")
    for c in range(4): I(f"v_cndmask_b32 v{132+c}, v{cD1+c}, v{cD0+c}, vcc")
    for c in range(4): I(f"v_cndmask_b32_e64 v{132+c}, 0, v{132+c}, s[42:43]")
    dppreduce("v_add_f32", [132, 133, 134, 135], ["row_ror:4", "row_ror:8"])
    crossrow("v_add_f32", [132, 133, 134, 135], [136, 137, 138, 139], which=("v_permlane32_swap_b32",))
    I(f"v_mov_b32 v136, v135"); I(f"v_mov_b32 v135, v{vTG}"); I(f"v_mov_b32 v137, v{vTG}")
    I("v_lshl_add_u32 v8, v2, 1, v3"); I("v_lshlrev_b32 v9, 3, v8"); I("v_lshlrev_b32 v8, 4, v8")
    I("s_mul_i32 s42, s41, 7680"); I(f"s_add_u32 s42, s42, {H1}"); I("s_lshl_b32 s43, s40, 6"); I("s_add_u32 s43, s43, s42"); I("s_add_u32 s43, s43, 5120")
    I("s_lshl_b32 s40, s40, 7"); I("s_add_u32 s42, s42, s40")
    setexec(0x000f000f)
    I(f"buffer_store_dwordx4 v[132:135], v8, {SRD_WS}, s42 offen sc1")
    I(f"buffer_store_dwordx2 v[136:137], v9, {SRD_WS}, s43 offen sc1")
    I("s_mov_b64 exec, -1")
    stamp(1)
    if b0 == "arrive":
        I("s_branch L_mdone")
        a.label("L_nomtask"); I("s_barrier"); a.label("L_mdone")
    else:
        a.label("L_nomtask")
    if not qearly: qloads()
    nq2 = 0 if qearly else 20
    I(f"s_waitcnt vmcnt({nq + 1 + (0 if qearly else 20)})")
    X0 = 12
    for n in range(5):
        I(f"v_lshlrev_b32 v{X0+2*n}, 16, v{XR+n}"); I(f"v_and_b32 v{X0+2*n+1}, 0xffff0000, v{XR+n}")
    I(f"v_add_f32 v22, v{X0}, v{X0+1}")
    for c in range(2, 10): I(f"v_add_f32 v22, v22, v{X0+c}")
    allreduce("v_add_f32", [22], [23])
    I(f"v_mul_f32 v22, {hex(INV640)}, v22")
    I(f"v_sub_f32 v23, v{X0}, v22"); I("v_mul_f32 v24, v23, v23")
    for c in range(1, 10): I(f"v_sub_f32 v23, v{X0+c}, v22"); I("v_fmac_f32 v24, v23, v23")
    allreduce("v_add_f32", [24], [23])
    I(f"v_mul_f32 v24, {hex(INV640)}, v24")
    rbf2(22, 24, 22, 24, 23)
    I(f"v_add_f32 v24, {hex(EPS)}, v24"); rbf(24, 24, 23)
    I("v_sqrt_f32 v24, v24"); rbf(24, 24, 23)
    I("v_rcp_f32 v25, v24")
    vZ = 44
    for h in range(2):
        I(f"v_lshlrev_b32 v{vZ+2*h}, 16, v{XQ+h}"); I(f"v_and_b32 v{vZ+2*h+1}, 0xffff0000, v{XQ+h}")
    for c in range(4): I(f"v_sub_f32 v{vZ+c}, v{vZ+c}, v22")
    rbf2(vZ, vZ+1, vZ, vZ+1, 23); rbf2(vZ+2, vZ+3, vZ+2, vZ+3, 23)
    for c in range(4):
        I(f"v_mul_f32 v26, v{vZ+c}, v25"); I(f"v_fma_f32 v27, -v26, v24, v{vZ+c}"); I(f"v_fma_f32 v{vZ+c}, v27, v25, v26")
    rbf2(vZ, vZ+1, vZ, vZ+1, 23); rbf2(vZ+2, vZ+3, vZ+2, vZ+3, 23)
    I("v_min_u32 v8, 39, v0"); I(f"s_mul_i32 s42, {sJ}, 20"); I("v_add_u32 v9, s42, v8")
    I("v_cmp_lt_u32 vcc, 19, v8"); I("v_add_u32 v10, 140, v9"); I("v_cndmask_b32 v9, v9, v10, vcc"); I("v_lshlrev_b32 v10, 3, v9"); I("v_add_u32 v10, 5120, v10"); I("v_lshlrev_b32 v9, 4, v9")
    I("v_and_b32 v8, 31, v0"); I("v_lshlrev_b32 v8, 2, v8"); I(f"s_lshl_b32 s42, {sG}, 7"); I(f"s_add_u32 s42, s42, {XT}")
    for rb in range(4): I(f"s_mov_b32 s{32+rb}, {H1 + 7680*rb}")
    I(f"s_and_b32 s43, {sT32}, 0x0fffffff")
    G = 12
    lds_ = [f"buffer_load_dword v48, v8, {SRD_WS}, s42 offen sc1"]
    for rb in range(4):
        lds_.append(f"buffer_load_dwordx4 v[{G+6*rb}:{G+6*rb+3}], v9, {SRD_WS}, s{32+rb} offen sc1")
        lds_.append(f"buffer_load_dwordx2 v[{G+6*rb+4}:{G+6*rb+5}], v10, {SRD_WS}, s{32+rb} offen sc1")
    def chk1():
        for n in range(4): I(f"v_bitop3_b32 v{36+n}, v{G+6*n+3}, v{G+6*n+5}, v{vTG} bitop3:0x7e")
        I("v_lshrrev_b32 v40, 4, v48"); I("v_xor_b32 v40, s43, v40")
        I("v_or3_b32 v36, v36, v37, v38"); I("v_or3_b32 v36, v36, v39, v40")
        I("v_cmp_ne_u32 vcc, 0, v36")
    if ackwait: I("s_waitcnt vmcnt(0)")
    poll(lds_, chk1, mask=(1 << 40) - 1)
    stamp(2)
    setexec((1 << 32) - 1)
    I("v_cmp_ne_u32 vcc, s47, v48")
    I("s_mov_b64 exec, -1")
    I("s_cmp_eq_u64 vcc, 0"); I(f"s_cselect_b32 {sMODE}, 1, 0")
    if not fast: I(f"s_mov_b32 {sMODE}, 0")
    for c in range(4):
        src = (lambda rb: G + 6*rb + (c if c < 3 else 4))
        I(f"v_add_f32 v{40+c}, v{src(0)}, v{src(1)}"); I(f"v_add_f32 v{36+c}, v{src(2)}, v{src(3)}")
    for c in range(4): I(f"v_add_f32 v{40+c}, v{40+c}, v{36+c}")
    rbf2(40, 41, 40, 41, 36); rbf2(42, 43, 42, 43, 36)
    I("v_add_u32 v8, 20, v0"); I("v_lshlrev_b32 v8, 2, v8")
    for c in range(4): I(f"ds_bpermute_b32 v{12+c}, v8, v{40+c}")
    I(f"v_mov_b32 v9, {sMODE}"); I(f"v_mov_b32 v10, 0")
    setexec(1); I(f"ds_write_b32 v10, v9 offset:{L_MODE}"); I("s_mov_b64 exec, -1")
    I("s_waitcnt lgkmcnt(0)")
    for c in range(4): I(f"v_add_f32 v{12+c}, 1.0, v{12+c}")
    rbf2(12, 13, 12, 13, 36); rbf2(14, 15, 14, 15, 36)
    for c in range(4): I(f"v_mul_f32 v{12+c}, v{vZ+c}, v{12+c}")
    rbf2(12, 13, 12, 13, 36); rbf2(14, 15, 14, 15, 36)
    for c in range(4): I(f"v_add_f32 v{12+c}, v{12+c}, v{40+c}")
    for c in range(4): I(f"v_cvt_pk_bf16_f32 v{12+c}, v{12+c}, v{12+c}")
    dbgstore([12, 13, 14, 15], 3)
    I("v_lshlrev_b32 v8, 4, v0")
    setexec((1 << 20) - 1)
    I(f"ds_write_b128 v8, v[12:15] offset:{L_H16}")
    I("s_mov_b64 exec, -1")
    I(f"v_lshlrev_b32 v8, 2, v3"); I(f"v_add_u32 v8, {L_H16}, v8")
    I("s_waitcnt lgkmcnt(0)")
    HV = 12
    for n in range(10): I(f"ds_read2_b32 v[{HV+2*n}:{HV+2*n+1}], v8 offset0:{8*n} offset1:{8*n+4}")
    I("v_lshl_add_u32 v8, v2, 1, v3"); I("v_lshlrev_b32 v49, 3, v8"); I("v_lshlrev_b32 v8, 4, v8")
    I(f"s_lshl_b32 s42, {sHEAD}, 3"); I(f"s_add_u32 s43, s42, {sJ}"); I("s_mul_i32 s43, s43, 768"); I(f"s_add_u32 s43, s43, {H2}")
    I("s_waitcnt vmcnt(0) lgkmcnt(0)")
    for m in range(20):
        A_ = cA0 if m % 2 == 0 else cA1
        for r in range(4): I(f"v_and_b32 v{A_+r}, v{HV+m}, v{MASK[r]}")
        c = "0" if m == 0 else f"v[{cD0}:{cD0+3}]"
        I(f"v_mfma_f32_16x16x32_bf16 v[{cD0}:{cD0+3}], v[{A_}:{A_+3}], v[{vQ+4*m}:{vQ+4*m+3}], {c}")
    I(f"v_mov_b32 v135, v{vTG}"); I(f"v_mov_b32 v137, v{vTG}")
    I("v_and_b32 v10, 31, v0"); I("v_lshrrev_b32 v11, 5, v0"); I("s_movk_i32 s44, 3072")
    I("v_lshlrev_b32 v9, 4, v10"); I("v_mad_u32_u24 v9, v11, s44, v9"); I("v_lshlrev_b32 v50, 3, v10"); I("v_mad_u32_u24 v50, v11, s44, v50")
    I(f"s_mul_i32 s42, s42, 768"); I(f"s_add_u32 s42, s42, {H2}")
    for c in range(3): I(f"v_mov_b32 v{132+c}, v{cD0+c}")
    I(f"v_mov_b32 v136, v{cD0+3}")
    setexec((1 << 32) - 1)
    store_mode([f"buffer_store_dwordx4 v[132:135], v8, {SRD_WS}, s43 offen", f"buffer_store_dwordx2 v[136:137], v49, {SRD_WS}, s43 offen offset:512"])
    I("s_mov_b64 exec, -1")
    stamp(3)
    lds_ = []
    for n in range(4):
        lds_.append(f"buffer_load_dwordx4 v[{G+6*n}:{G+6*n+3}], v9, {SRD_WS}, s42 offen offset:{768*n} sc1")
        lds_.append(f"buffer_load_dwordx2 v[{G+6*n+4}:{G+6*n+5}], v50, {SRD_WS}, s42 offen offset:{768*n+512} sc1")
    def chk2():
        for n in range(4): I(f"v_bitop3_b32 v{36+n}, v{G+6*n+3}, v{G+6*n+5}, v{vTG} bitop3:0x7e")
        I("v_or3_b32 v36, v36, v37, v38"); I("v_or_b32 v36, v36, v39"); I("v_cmp_ne_u32 vcc, 0, v36")
    if ackwait: I("s_waitcnt vmcnt(0)")
    poll(lds_, chk2)
    stamp(4)
    for c in range(4):
        src = (lambda rb: G + 6*rb + (c if c < 3 else 4))
        I(f"v_add_f32 v{40+c}, v{src(0)}, v{src(1)}"); I(f"v_add_f32 v{44+c}, v{src(2)}, v{src(3)}")
    for c in range(4): I(f"v_add_f32 v{40+c}, v{40+c}, v{44+c}")
    crossrow("v_add_f32", [40, 41, 42, 43], [44, 45, 46, 47], which=("v_permlane32_swap_b32",))
    I("v_cvt_pk_bf16_f32 v44, v40, v41"); I("v_cvt_pk_bf16_f32 v45, v42, v43")
    dbgstore([44, 45], 4)
    I("v_lshlrev_b32 v10, 3, v10")
    setexec((1 << 32) - 1)
    I(f"ds_write_b64 v10, v[44:45] offset:{L_Q16}")
    I("s_mov_b64 exec, -1")
    I("s_waitcnt lgkmcnt(0)")
    a.label("L_B1")
    I("s_barrier")
    stamp(5)

    a.label("L_FINISH")
    if stamps:
        I("s_memrealtime s[50:51]"); I("s_waitcnt lgkmcnt(0)"); I(f"v_writelane_b32 {vST}, s50, 15")
        I("s_getreg_b32 s50, hwreg(HW_REG_XCC_ID, 0, 4)"); I(f"v_writelane_b32 {vST}, s50, 16")
        I("s_lshl_b32 s50, s2, 4"); I(f"s_add_u32 s50, s50, {sW}"); I("s_lshl_b32 s50, s50, 8"); I(f"s_add_u32 s50, s50, {STP}")
        I("v_lshlrev_b32 v166, 2, v0")
        I(f"buffer_store_dword {vST}, v166, {SRD_WS}, s50 offen")
    a.label("L_END")
    I("s_endpgm")
    a.raw('.section .rodata,"a"'); a.raw(".p2align 6"); a.raw(f".amdhsa_kernel {NAME}_kernel")
    a.raw("  .amdhsa_next_free_vgpr 168"); a.raw("  .amdhsa_next_free_sgpr 102"); a.raw("  .amdhsa_accum_offset 168")
    a.raw("  .amdhsa_group_segment_fixed_size 0"); a.raw("  .amdhsa_kernarg_size 120"); a.raw("  .amdhsa_user_sgpr_count 2")
    a.raw("  .amdhsa_user_sgpr_kernarg_segment_ptr 1"); a.raw("  .amdhsa_system_sgpr_workgroup_id_x 1"); a.raw(".end_amdhsa_kernel")
    return a

if __name__ == "__main__":
    kw = eval("dict(" + (sys.argv[2] if len(sys.argv) > 2 else "") + ")")
    a = gen(**kw)
    open(sys.argv[1], "w").write(a.text())
    print("instructions", a.ninstr, "nops", a.nops)
```

```python
import sys, struct
from asmdsl import Asm
NAME = "adaLN_cond__sliding_block_cached__mixer_token_mlp__decode"

XT   = 0x1000
H1   = 0xA000
H2   = 0x14000
H3   = 0x54000
H3ML = 0x94000
H4   = 0x95000
RR   = 0x9A000
BC   = 0x9D000
DBG = 0x200000
STP = 0x800000
L_SC = 0
L_H16 = 2560
L_Q16 = 2880
L_MW = 3136
L_LW = 3168
L_MODE = 3200
L_OW = 3328
L_AV = 7680
L_RED = 9728
L_IA = 14080
L_MODS = 16640
L_FIN = 26880
LDS_BYTES = 27648

LOG2E = 0x3fb8aa3b
SCALE = 0x3db504f3
INV640 = 0x3acccccd
EPS = 0x3727c5ac
def f2h(x): return "0x%08x" % struct.unpack("<I", struct.pack("<f", x))[0]
GC0 = -2*0.7978845608028654*1.4426950408889634
GC1 = GC0*0.044715

def gen(D=4, nt="nt", ntw="nt", ntt="nt", inter=True, stamps=False, dbg=False, fast=True, prefetch=True, LIMIT=400000,
        qearly=True, b0="issue", rotmul=5, D2=None, Dswitch=99, skip='', rotmode=0, tearly=False, ackwait=True, tpos='p', dbgmax=None):
    if D2 is None: D2 = D
    a = Asm(); I = a
    uid = [0]
    def lab(p):
        uid[0] += 1
        return f"L_{p}{uid[0]}"
    sB, sW, sG, sI, sHEAD, sJ, sT32, sT8, sMODE = "s2", "s3", "s4", "s5", "s6", "s7", "s8", "s9", "s10"
    SRD_K, SRD_V, SRD_A, SRD_M, SRD_WS = "s[12:15]", "s[16:19]", "s[20:23]", "s[24:27]", "s[28:31]"
    sOFF = [f"s{32+m}" for m in range(8)]
    P_X, P_K, P_V, P_WQ, P_WO, P_W1, P_B1, P_W2, P_B2, P_C, P_WM, P_OUT, P_DBG, P_WS = 52, 54, 56, 58, 60, 64, 66, 68, 70, 72, 74, 76, 78, 80
    sMU = [f"s[{82+2*m}:{83+2*m}]" for m in range(4)]
    sQ = [None, "s[90:91]", "s[92:93]", "s[94:95]"]
    sRV = "s[96:97]"
    sFF = "s98"
    vST = "v167"
    inchain = [False]
    def stamp(k, chain=False):
        if not stamps: return
        if stamps is not True and ((k + 100) if inchain[0] else k) not in stamps: return
        I("s_memrealtime s[50:51]"); I("s_waitcnt lgkmcnt(0)"); I(f"v_writelane_b32 {vST}, s50, {k}")
    DPPM = "row_mask:0xf bank_mask:0xf"
    def dppreduce(op, regs, mods):
        for mod in mods:
            for r in regs: I(f"{op}_dpp v{r}, v{r}, v{r} {mod} {DPPM}")
    Q2 = ["quad_perm:[1,0,3,2]", "quad_perm:[2,3,0,1]"]
    R8 = Q2 + ["row_half_mirror"]
    R16 = Q2 + ["row_ror:4", "row_ror:8"]
    def crossrow(op, regs, tmp, which=("v_permlane16_swap_b32", "v_permlane32_swap_b32")):
        for sw in which:
            for r, t in zip(regs, tmp): I(f"v_mov_b32 v{t}, v{r}")
            for r, t in zip(regs, tmp): I(f"{sw} v{r}, v{t}")
            for r, t in zip(regs, tmp): I(f"{op} v{r}, v{r}, v{t}")
    def allreduce(op, regs, tmp):
        dppreduce(op, regs, R16); crossrow(op, regs, tmp)
    def rbf(dst, src, tmp):
        I(f"v_cvt_pk_bf16_f32 v{tmp}, v{src}, v{src}"); I(f"v_lshlrev_b32 v{dst}, 16, v{tmp}")
    def rbf2(d0, d1, s0, s1, tmp):
        I(f"v_cvt_pk_bf16_f32 v{tmp}, v{s0}, v{s1}"); I(f"v_lshlrev_b32 v{d0}, 16, v{tmp}"); I(f"v_and_b32 v{d1}, 0xffff0000, v{tmp}")
    def setexec(mask):
        lo, hi = mask & 0xffffffff, mask >> 32
        if mask == (1 << 64) - 1: I("s_mov_b64 exec, -1")
        else: I(f"s_mov_b32 exec_lo, {hex(lo)}"); I(f"s_mov_b32 exec_hi, {hex(hi)}")
    def poll(loads, check, mask=None, cnt="s51"):
        l0, l1 = lab("poll"), lab("pdone")
        if mask is not None: setexec(mask)
        I(f"s_mov_b32 {cnt}, 0")
        a.label(l0)
        for s in loads: I(s)
        I(f"s_add_u32 {cnt}, {cnt}, 1")
        I("s_waitcnt vmcnt(0)")
        check()
        I("s_and_b64 exec, exec, vcc")
        I(f"s_cbranch_scc0 {l1}")
        I(f"s_cmp_lt_u32 {cnt}, {LIMIT}")
        I(f"s_cbranch_scc1 {l0}")
        a.label(l1)
        I("s_mov_b64 exec, -1")
    def chk24(granules, vTb, t0):
        def f():
            for b in granules:
                for c in range(4): I(f"v_xor_b32 v{b+c}, v{vTb}, v{b+c}")
            first = True
            for b in granules:
                if first: I(f"v_or3_b32 v{t0}, v{b}, v{b+1}, v{b+2}"); I(f"v_or_b32 v{t0}, v{t0}, v{b+3}"); first = False
                else: I(f"v_or3_b32 v{t0}, v{t0}, v{b}, v{b+1}"); I(f"v_or3_b32 v{t0}, v{t0}, v{b+2}, v{b+3}")
            I(f"v_and_b32 v{t0}, 0xff, v{t0}"); I(f"v_cmp_ne_u32 vcc, 0, v{t0}")
        return f
    def chk32(pairs, vT, t0, t1):
        def f():
            for n, (x, y) in enumerate(pairs):
                if n == 0: I(f"v_bitop3_b32 v{t0}, v{x}, v{y}, v{vT} bitop3:0x7e")
                else: I(f"v_bitop3_b32 v{t1}, v{x}, v{y}, v{vT} bitop3:0x7e"); I(f"v_or_b32 v{t0}, v{t0}, v{t1}")
            I(f"v_cmp_ne_u32 vcc, 0, v{t0}")
        return f
    def store_mode(texts):
        if not fast:
            for t in texts: I(t + " sc1")
            return
        l0, l1 = lab("sl"), lab("sd")
        I(f"s_cmp_eq_u32 {sMODE}, 1"); I(f"s_cbranch_scc0 {l0}")
        for t in texts: I(t)
        I(f"s_branch {l1}")
        a.label(l0)
        for t in texts: I(t + " sc1")
        a.label(l1)
    def dbgstore(regs, slot):
        if not dbg: return
        I("s_mul_i32 s50, s2, 0x4000"); I(f"s_add_u32 s50, s50, {DBG + slot*0x400}")
        I("v_lshlrev_b32 v166, 2, v0")
        for n, r in enumerate(regs): I(f"buffer_store_dword v{r}, v166, {SRD_WS}, s50 offen offset:{n*256}")
        I("s_waitcnt vmcnt(0)")

    a.raw(open("header.txt").read().rstrip("\n"))
    a.raw(f"; @launch grid=(256,1,1) block=(576,1,1) lds={LDS_BYTES}")
    a.raw('.amdgcn_target "amdgcn-amd-amdhsa--gfx950"')
    a.raw(".text"); a.raw(f".globl {NAME}_kernel"); a.raw(".p2align 8"); a.raw(f".type {NAME}_kernel,@function"); a.raw(f"{NAME}_kernel:")
    if stamps: I("s_memrealtime s[48:49]")
    I("s_cmp_ge_u32 s2, 256"); I("s_cbranch_scc1 L_END")
    I("s_load_dwordx16 s[52:67], s[0:1], 0")
    I("s_load_dwordx8 s[68:75], s[0:1], 64")
    I("s_load_dwordx4 s[76:79], s[0:1], 96")
    I("s_load_dwordx2 s[80:81], s[0:1], 112")
    I("v_lshrrev_b32 v1, 6, v0")
    I("v_and_b32 v0, 63, v0")
    I(f"v_readfirstlane_b32 {sW}, v1")
    I(f"s_and_b32 {sG}, s2, 7"); I(f"s_lshr_b32 {sI}, s2, 3")
    I(f"s_and_b32 s11, {sI}, 3"); I(f"s_lshl_b32 {sHEAD}, {sG}, 2"); I(f"s_add_u32 {sHEAD}, {sHEAD}, s11")
    I(f"s_lshr_b32 {sJ}, {sI}, 2")
    I("v_and_b32 v2, 15, v0"); I("v_lshrrev_b32 v3, 4, v0")
    I(f"s_mov_b32 {sFF}, 0xff")
    if stamps: I(f"v_mov_b32 {vST}, 0")
    I("v_and_b32 v8, 7, v0"); I("v_lshrrev_b32 v9, 1, v8"); I("v_and_b32 v8, 1, v8")
    I("v_mov_b32 v10, 0xffff"); I("v_mov_b32 v11, 0xffff0000")
    I("v_cmp_eq_u32 vcc, 1, v8"); I("v_cndmask_b32 v10, v10, v11, vcc")
    for r in range(4):
        I(f"v_cmp_eq_u32 s[{40+2*r}:{41+2*r}], {r}, v9")
    for r in range(4):
        I(f"v_cndmask_b32_e64 v{4+r}, 0, v10, s[{40+2*r}:{41+2*r}]")
    MASK = [4, 5, 6, 7]
    I("s_waitcnt lgkmcnt(0)")
    if stamps: I(f"v_writelane_b32 {vST}, s48, 0")
    I(f"s_load_dword {sT32}, s[{P_WS}:{P_WS+1}], 0")
    I(f"s_mov_b32 s28, s{P_WS}"); I(f"s_and_b32 s29, s{P_WS+1}, 0xffff"); I("s_mov_b32 s30, 0x100000" if not (dbg or stamps) else "s_mov_b32 s30, 0x10000000"); I("s_mov_b32 s31, 0x20000")
    I(f"s_cmp_eq_u32 {sW}, 8"); I("s_cbranch_scc1 L_CHAIN")

    vK, vV, vT, vBQ = 8, 40, 72, 92
    vD0, vD1, vA0, vA1, vDO = 112, 116, 120, 124, 128
    vP0, vP1 = 132, 133
    vW1, vB1, vW2, vB2 = 144, 146, 148, 150
    aOW, aOR, aH3, aG3, aML, aAVw, aAVr, aREDw, aREDr, aBC, aH3B, aG3B = 151, 152, 153, 154, 155, 156, 157, 158, 159, 160, 108, 109
    I(f"s_lshl_b32 s40, {sHEAD}, 21"); I(f"s_lshl_b32 s41, {sJ}, 16"); I("s_add_u32 s40, s40, s41"); I(f"s_add_u32 s40, s40, {6144*256}")
    I(f"s_add_u32 s12, s{P_K}, s40"); I(f"s_addc_u32 s13, s{P_K+1}, 0"); I("s_and_b32 s13, s13, 0xffff"); I("s_mov_b32 s14, 65536"); I("s_mov_b32 s15, 0x20000")
    I(f"s_add_u32 s16, s{P_V}, s40"); I(f"s_addc_u32 s17, s{P_V+1}, 0"); I("s_and_b32 s17, s17, 0xffff"); I("s_mov_b32 s18, 65536"); I("s_mov_b32 s19, 0x20000")
    if rotmode == 0: I(f"s_mul_i32 s40, s2, {rotmul}")
    elif rotmode == 1: I(f"s_add_u32 s40, {sI}, {sG}")
    elif rotmode == 2: I(f"s_mul_i32 s40, {sG}, 3"); I(f"s_add_u32 s40, s40, {sI}"); I(f"s_add_u32 s40, s40, {sW}")
    I(f"s_lshl_b32 s42, {sW}, {10 if inter else 13}")
    for m in range(8):
        if m: I(f"s_add_u32 s40, s40, 1")
        I("s_and_b32 s41, s40, 7"); I(f"s_lshl_b32 s41, s41, {13 if inter else 10}"); I(f"s_add_u32 {sOFF[m]}, s41, s42")
    I("v_and_b32 v134, 3, v0"); I("v_lshlrev_b32 v134, 4, v134")
    I("v_bfe_u32 v135, v0, 2, 2"); I("v_lshl_or_b32 v134, v135, 8, v134"); I("v_lshl_or_b32 v134, v3, 6, v134")
    I("v_lshlrev_b32 v135, 4, v0")
    vKO, vVO = 134, 135
    I(f"s_cmp_lt_u32 {sI}, 20"); I("s_cbranch_scc0 L_notwo")
    I(f"s_mul_i32 s40, {sG}, {512*1280}"); I(f"s_lshl_b32 s41, {sI}, 6"); I("s_add_u32 s40, s40, s41")
    I(f"s_add_u32 s20, s{P_WO}, s40"); I(f"s_addc_u32 s21, s{P_WO+1}, 0"); I(f"s_mov_b32 s22, {511*1280+64}")
    I("s_mov_b32 s43, 1280"); I("s_mov_b32 s44, 64"); I("s_branch L_tdesc")
    a.label("L_notwo")
    I(f"s_mul_i32 s40, {sG}, 10"); I(f"s_add_u32 s40, s40, {sI}"); I("s_sub_u32 s40, s40, 20"); I("s_lshl_b32 s40, s40, 6"); I("s_add_u32 s40, s40, 2560")
    I(f"s_add_u32 s20, s{P_WM}, s40"); I(f"s_addc_u32 s21, s{P_WM+1}, 0")
    I(f"s_cmp_lt_u32 {sI}, 30"); I(f"s_cselect_b32 s22, {639*7680+64}, 0")
    I("s_mov_b32 s43, 7680"); I("s_mov_b32 s44, 80")
    a.label("L_tdesc")
    I("s_and_b32 s21, s21, 0xffff"); I("s_mov_b32 s23, 0x20000")
    I("v_bfe_u32 v110, v0, 2, 2"); I("v_lshl_add_u32 v110, v110, 2, v3"); I("v_mul_lo_u32 v110, v110, s43")
    I("v_and_b32 v137, 3, v0"); I("v_lshl_add_u32 v110, v137, 4, v110")
    vTO = 110
    I(f"s_mul_i32 s45, {sW}, s44"); I("s_mul_i32 s45, s45, s43")
    I("s_lshl_b32 s46, s43, 4")
    I(f"s_cmp_lt_u32 {sI}, {0 if 'T' in skip else 30}"); I("s_cselect_b32 s45, s45, 0"); I("s_cselect_b32 s46, s46, 0"); I("s_cselect_b32 s22, s22, 0")
    I("s_cmp_eq_u32 s44, 80"); I("s_cselect_b32 s47, 0, 0x7ff00000"); I(f"v_add_u32 v111, s47, v110")
    I(f"s_mul_i32 s47, {sW}, 432"); I("v_lshlrev_b32 v137, 3, v0"); I("v_add_u32 v137, s47, v137")
    for r in range(6): I(f"v_mov_b32 v{vW1+r}, 0")
    I("v_mov_b32 v138, 0")
    stamp(12) if 'W' not in skip else None
    if b0: I("s_barrier")
    if prefetch:
        I(f"s_and_b32 s48, {sI}, 7"); I(f"s_lshl_b32 s48, s48, 3"); I(f"s_or_b32 s48, s48, {sW}"); I("s_cmp_eq_u32 s48, 7"); I("s_cbranch_scc0 L_nopf")
        I("s_getpc_b64 s[48:49]")
        a.label("L_PC")
        I("v_lshlrev_b32 v161, 7, v0")
        for pf in range(2):
            I(f"v_add_u32 v{162+pf}, {8192*pf}, v161"); I(f"v_min_u32 v{162+pf}, L_END-L_PC, v{162+pf}")
            I(f"global_load_dword v{164+pf}, v{162+pf}, s[48:49]")
        a.label("L_nopf")
    seq = []
    for m in range(8): seq.append(f"buffer_load_dwordx4 v[{vK+4*m}:{vK+4*m+3}], v{vKO}, {SRD_K}, {sOFF[m]} offen {nt}")
    for m in range(8): seq.append(f"buffer_load_dwordx4 v[{vV+4*m}:{vV+4*m+3}], v{vVO}, {SRD_V}, {sOFF[m]} offen {nt}")
    seq.append("W")
    if tearly:
        for n in range(5): seq.append(("T", n))
    issued = []
    for s in seq:
        if s == "W":
            setexec((1 << 54) - 1)
            I(f"global_load_dwordx2 v[{vW1}:{vW1+1}], v137, s[{P_W1}:{P_W1+1}]")
            I(f"global_load_dwordx2 v[{vB1}:{vB1+1}], v137, s[{P_B1}:{P_B1+1}]")
            I(f"global_load_dwordx2 v[{vW2}:{vW2+1}], v137, s[{P_W2}:{P_W2+1}]")
            I("s_mov_b64 exec, -1")
            I(f"global_load_ushort v{vB2}, v138, s[{P_B2}:{P_B2+1}]")
            issued += ["small"]*4
            continue
        bigs = [k for k, x in enumerate(issued) if x == "big"]
        depth = D if len(bigs) < Dswitch else D2
        if len(bigs) >= depth:
            n_after = len(issued) - 1 - bigs[len(bigs) - depth]
            if n_after < len(issued): I(f"s_waitcnt vmcnt({n_after})")
        issued.append("big")
        if isinstance(s, tuple):
            n = s[1]
            if n == 4:
                I("s_cmp_eq_u32 s44, 80"); I("s_cselect_b32 s47, s45, 0")
                I(f"buffer_load_dwordx4 v[{vT+4*n}:{vT+4*n+3}], v111, {SRD_A}, s47 offen {ntt}")
            else:
                I(f"buffer_load_dwordx4 v[{vT+4*n}:{vT+4*n+3}], v{vTO}, {SRD_A}, s45 offen {ntt}")
                I("s_add_u32 s45, s45, s46")
        else: I(s)
    NAFTER_V = 4 + 5
    def tail_loads():
        for n in range(5):
            if n == 4:
                I("s_cmp_eq_u32 s44, 80"); I("s_cselect_b32 s47, s45, 0")
                I(f"buffer_load_dwordx4 v[{vT+4*n}:{vT+4*n+3}], v111, {SRD_A}, s47 offen {ntt}")
            else:
                I(f"buffer_load_dwordx4 v[{vT+4*n}:{vT+4*n+3}], v{vTO}, {SRD_A}, s45 offen {ntt}")
                I("s_add_u32 s45, s45, s46")
    if 'W' in skip:
        I(f"s_waitcnt vmcnt({NAFTER_V if tearly else 4})"); stamp(12); I("s_waitcnt vmcnt(0)"); stamp(13)
    stamp(1)
    I("v_lshrrev_b32 v138, 2, v2")
    for m in range(4): I(f"v_cmp_eq_u32 {sMU[m]}, {m}, v138")
    I("v_and_b32 v139, 3, v2")
    for m in range(1, 4): I(f"v_cmp_eq_u32 {sQ[m]}, {m}, v139")
    I("v_and_b32 v140, 1, v138"); I("v_lshrrev_b32 v141, 1, v3"); I(f"v_cmp_eq_u32 {sRV}, v140, v141")
    I("v_and_b32 v140, 1, v3"); I("v_lshl_add_u32 v140, v139, 1, v140"); I("v_lshl_add_u32 v140, v138, 3, v140"); I("v_lshlrev_b32 v140, 4, v140")
    I(f"s_mul_i32 s40, {sW}, 544"); I(f"v_add_u32 v{aREDw}, s40, v140")
    I("v_and_b32 v140, 7, v0"); I("v_mul_u32_u24 v140, 544, v140"); I("v_lshrrev_b32 v141, 3, v0"); I(f"v_lshl_add_u32 v{aREDr}, v141, 4, v140")
    I(f"s_lshl_b32 s41, {sW}, 6"); I(f"v_add_u32 v{aOR}, s41, v{aREDr}")
    I(f"v_lshlrev_b32 v{aH3}, 4, v141"); I(f"s_lshl_b32 s41, {sW}, 6"); I(f"v_add_u32 v{aH3}, s41, v{aH3}")
    I(f"v_lshrrev_b32 v{aH3B}, 1, v{aH3}")
    I(f"v_lshl_add_u32 v{aOW}, v2, 1, v3"); I(f"v_lshlrev_b32 v{aOW}, 4, v{aOW}"); I(f"v_add_u32 v{aOW}, s40, v{aOW}")
    I("v_and_b32 v140, 31, v0"); I("v_lshrrev_b32 v141, 5, v0")
    I("s_movk_i32 s41, 3072"); I(f"v_lshlrev_b32 v{aG3}, 4, v140"); I(f"v_mad_u32_u24 v{aG3}, v141, s41, v{aG3}")
    I(f"v_lshlrev_b32 v{aG3B}, 3, v140"); I(f"v_mad_u32_u24 v{aG3B}, v141, s41, v{aG3B}")
    I(f"v_lshlrev_b32 v{aML}, 2, v141"); I(f"v_add_u32 v{aML}, v{aML}, v0"); I(f"v_and_b32 v{aML}, 7, v{aML}"); I(f"v_lshlrev_b32 v{aML}, 4, v{aML}")
    I(f"v_lshlrev_b32 v{aAVw}, 4, v140"); I(f"s_lshl_b32 s41, {sW}, 9"); I(f"v_add_u32 v{aAVw}, s41, v{aAVw}")
    I(f"s_lshl_b32 s40, {sW}, 8"); I(f"s_add_u32 s40, s40, {L_AV}"); I(f"s_mul_i32 s41, {sW}, 320"); I(f"s_add_u32 s41, s41, {L_SC}")
    I("s_cmp_eq_u32 s44, 80"); I("s_cselect_b32 s40, s41, s40")
    I("v_bfe_u32 v140, v0, 3, 1"); I("v_lshl_add_u32 v140, v140, 2, v3"); I(f"v_lshlrev_b32 v{aAVr}, 2, v140"); I(f"v_add_u32 v{aAVr}, s40, v{aAVr}")
    I("v_min_u32 v140, 2, v3"); I(f"s_mul_i32 s40, {sI}, 3"); I("v_add_u32 v140, s40, v140"); I("v_min_u32 v140, 79, v140"); I(f"v_lshlrev_b32 v{aBC}, 4, v140")
    I("v_lshl_add_u32 v139, v3, 2, v139"); I(f"v_lshlrev_b32 v139, 4, v139")
    I("s_waitcnt lgkmcnt(0)")
    I(f"s_add_u32 {sT32}, {sT32}, 1"); I(f"s_and_b32 {sT8}, {sT32}, 0xff")
    I("s_barrier")
    if not tearly and tpos == 'b1': tail_loads()
    stamp(2)
    I(f"ds_read_b128 v[140:143], v139 offset:{L_Q16}")
    I(f"v_mov_b32 v138, 0"); I(f"ds_read_b32 v138, v138 offset:{L_MODE}")
    I("s_waitcnt lgkmcnt(0)")
    I(f"v_readfirstlane_b32 {sMODE}, v138")
    for m in range(4):
        for r in range(4): I(f"v_cndmask_b32_e64 v{vBQ+4*m+r}, 0, v{140+r}, {sMU[m]}")
    I(f"s_waitcnt vmcnt({8 + (NAFTER_V if (tearly or tpos == 'b1') else 4)})")
    stamp(3)
    for m in range(8):
        t = m // 4; D_ = vD0 if t == 0 else vD1
        c = "0" if m % 4 == 0 else f"v[{D_}:{D_+3}]"
        I(f"v_mfma_f32_16x16x32_bf16 v[{D_}:{D_+3}], v[{vK+4*m}:{vK+4*m+3}], v[{vBQ+4*(m%4)}:{vBQ+4*(m%4)+3}], {c}")
    for k in (1, 2, 3):
        for t, D_ in ((0, vD0), (1, vD1)):
            s = 134 + t
            I(f"v_cndmask_b32_e64 v{s}, v{D_ if k == 1 else s}, v{D_+k}, {sQ[k]}")
    dppreduce("v_add_f32", [134, 135], Q2)
    rbf2(134, 135, 134, 135, 136)
    I(f"v_mul_f32 v134, {hex(SCALE)}, v134"); I(f"v_mul_f32 v135, {hex(SCALE)}, v135")
    rbf2(134, 135, 134, 135, 136)
    dbgstore([134, 135], 0)
    I("v_max_f32 v136, v134, v135")
    dppreduce("v_max_f32", [136], ["row_ror:4", "row_ror:8"]); crossrow("v_max_f32", [136], [137])
    I(f"s_lshl_b32 s40, {sW}, 2"); I("v_mov_b32 v138, s40")
    setexec(1)
    I(f"ds_write_b32 v138, v136 offset:{L_MW}")
    I("s_mov_b64 exec, -1")
    I("s_waitcnt lgkmcnt(0)")
    I("s_barrier")
    I("v_mov_b32 v137, 0")
    I(f"ds_read_b128 v[120:123], v137 offset:{L_MW}"); I(f"ds_read_b128 v[140:143], v137 offset:{L_MW+16}")
    I("s_waitcnt lgkmcnt(0)")
    I("v_max3_f32 v136, v120, v121, v122"); I("v_max3_f32 v136, v136, v123, v140"); I("v_max3_f32 v136, v136, v141, v142"); I("v_max_f32 v136, v136, v143")
    vM = 136
    I("v_sub_f32 v134, v134, v136"); I("v_sub_f32 v135, v135, v136")
    I(f"v_mul_f32 v134, {hex(LOG2E)}, v134"); I(f"v_mul_f32 v135, {hex(LOG2E)}, v135")
    I("v_exp_f32 v134, v134"); I("v_exp_f32 v135, v135")
    I(f"v_cvt_pk_bf16_f32 v{vP0}, v134, v134"); I(f"v_cvt_pk_bf16_f32 v{vP1}, v135, v135")
    I("v_add_f32 v137, v134, v135")
    for m in range(8):
        P_ = vP0 if m < 4 else vP1
        for r in range(4): I(f"v_and_b32_dpp v{vK+4*m+r}, v{P_}, v{MASK[r]} row_newbcast:{4*(m%4)} {DPPM}")
    dppreduce("v_add_f32", [137], ["row_ror:4", "row_ror:8"]); crossrow("v_add_f32", [137], [139])
    setexec(1)
    I(f"ds_write_b32 v138, v137 offset:{L_LW}")
    I("s_mov_b64 exec, -1")
    vTB, vTG32, vC0 = 92, 93, 94
    uW1, uB1, uW2 = 96, 100, 104
    I(f"v_mov_b32 v{vTB}, {sT8}"); I(f"v_mov_b32 v{vTG32}, {sT32}")
    I(f"v_mov_b32 v{vC0}, {f2h(GC0)}"); I(f"v_mov_b32 v{vC0+1}, {f2h(GC0)}")
    stamp(4)
    if not tearly and tpos == 'p': tail_loads()
    for m in range(8):
        I(f"s_waitcnt vmcnt({(7-m)+NAFTER_V})")
        c = "0" if m == 0 else f"v[{vDO}:{vDO+3}]"
        I(f"v_mfma_f32_16x16x32_bf16 v[{vDO}:{vDO+3}], v[{vK+4*m}:{vK+4*m+3}], v[{vV+4*m}:{vV+4*m+3}], {c}")
    stamp(5)
    I(f"s_lshl_b32 s40, {sHEAD}, 3"); I(f"s_add_u32 s40, s40, {sJ}"); I("s_mul_i32 s40, s40, 768"); I(f"s_add_u32 s40, s40, {H3}")
    I(f"s_lshl_b32 s41, {sHEAD}, 7"); I(f"s_lshl_b32 s42, {sJ}, 4"); I("s_add_u32 s41, s41, s42"); I(f"s_add_u32 s41, s41, {H3ML}")
    setexec((1 << 32) - 1)
    I(f"ds_write_b128 v{aOW}, v[{vDO}:{vDO+3}] offset:{L_OW}")
    I("s_mov_b64 exec, -1")
    I("s_waitcnt lgkmcnt(0)")
    I("s_barrier")
    I(f"ds_read_b128 v[24:27], v{aOR} offset:{L_OW}")
    I("v_mov_b32 v21, 0")
    I(f"ds_read_b128 v[40:43], v21 offset:{L_LW}"); I(f"ds_read_b128 v[44:47], v21 offset:{L_LW+16}")
    I(f"v_mov_b32 v31, v{vTG32}")
    I("s_waitcnt lgkmcnt(2)")
    dppreduce("v_add_f32", [24, 25, 26, 27], R8)
    I("v_mov_b32 v30, v27")
    I(f"v_mov_b32 v27, v{vTG32}")
    I("s_mov_b32 exec_lo, 0x01010101"); I("s_mov_b32 exec_hi, 0")
    store_mode([f"buffer_store_dwordx4 v[24:27], v{aH3}, {SRD_WS}, s40 offen", f"buffer_store_dwordx2 v[30:31], v{aH3B}, {SRD_WS}, s40 offen offset:512"])
    I("s_mov_b64 exec, -1")
    I(f"s_cmp_eq_u32 {sW}, 7"); I("s_cbranch_scc0 L_noml")
    I("s_waitcnt lgkmcnt(0)")
    I("v_add_f32 v40, v40, v41"); I("v_add_f32 v42, v42, v43"); I("v_add_f32 v44, v44, v45"); I("v_add_f32 v46, v46, v47")
    I("v_add_f32 v40, v40, v42"); I("v_add_f32 v44, v44, v46"); I("v_add_f32 v41, v40, v44")
    I(f"v_mov_b32 v40, v{vM}"); I("v_mov_b32 v42, 0"); I(f"v_mov_b32 v43, v{vTG32}")
    setexec(1)
    store_mode([f"buffer_store_dwordx4 v[40:43], v21, {SRD_WS}, s41 offen"])
    I("s_mov_b64 exec, -1")
    a.label("L_noml")
    stamp(6)
    I("s_waitcnt vmcnt(5)") if False else None
    I(f"s_cmp_lt_u32 {sI}, 20"); I("s_cbranch_scc1 L_WO")
    I(f"s_cmp_lt_u32 {sI}, 30"); I("s_cbranch_scc1 L_GEMV")
    I(f"s_cmp_eq_u32 {sI}, 30"); I("s_cbranch_scc1 L_IMP")
    I("s_branch L_FINISH")

    a.label("L_WO")
    I(f"s_cmp_lt_u32 {sW}, 4"); I("s_cbranch_scc0 L_wo_b4")
    I(f"s_lshl_b32 s40, {sG}, 2"); I(f"s_add_u32 s40, s40, {sW}"); I("s_lshl_b32 s41, s40, 7"); I(f"s_add_u32 s41, s41, {H3ML}")
    I(f"s_mul_i32 s40, s40, {8*768}"); I(f"s_add_u32 s40, s40, {H3}")
    lds_ = [f"buffer_load_dwordx4 v[40:43], v{aML}, {SRD_WS}, s41 offen sc1"]
    for n in range(4):
        lds_.append(f"buffer_load_dwordx4 v[{24+4*n}:{27+4*n}], v{aG3}, {SRD_WS}, s40 offen offset:{768*n} sc1")
        lds_.append(f"buffer_load_dwordx2 v[{44+2*n}:{45+2*n}], v{aG3B}, {SRD_WS}, s40 offen offset:{768*n+512} sc1")
    def chk3():
        I(f"v_bitop3_b32 v52, v27, v45, v{vTG32} bitop3:0x7e"); I(f"v_bitop3_b32 v53, v31, v47, v{vTG32} bitop3:0x7e")
        I(f"v_bitop3_b32 v54, v35, v49, v{vTG32} bitop3:0x7e"); I(f"v_bitop3_b32 v55, v39, v51, v{vTG32} bitop3:0x7e")
        I(f"v_xor_b32 v56, v43, v{vTG32}"); I("v_or3_b32 v52, v52, v53, v54"); I("v_or3_b32 v52, v52, v55, v56")
        I("v_cmp_ne_u32 vcc, 0, v52")
    poll(lds_, chk3)
    stamp(7)
    I("v_mov_b32 v42, v40")
    dppreduce("v_max_f32", [42], R8)
    I("v_sub_f32 v40, v40, v42"); I(f"v_mul_f32 v40, {hex(LOG2E)}, v40"); I("v_exp_f32 v40, v40")
    I("v_mul_f32 v41, v41, v40")
    dppreduce("v_add_f32", [41], R8)
    I("v_rcp_f32 v41, v41")
    I("v_mul_f32 v40, v40, v41")
    val = lambda n, c: (24 + 4*n + c) if c < 3 else (44 + 2*n)
    for c in range(4): I(f"v_mul_f32_dpp v{56+c}, v40, v{val(0, c)} row_newbcast:0 {DPPM}")
    for n in range(1, 4):
        for c in range(4): I(f"v_fmac_f32_dpp v{56+c}, v40, v{val(n, c)} row_newbcast:{n} {DPPM}")
    crossrow("v_add_f32", [56, 57, 58, 59], [60, 61, 62, 63], which=("v_permlane32_swap_b32",))
    for c in range(4): I(f"v_cvt_pk_bf16_f32 v{56+c}, v{56+c}, v{56+c}")
    dbgstore([56, 57, 58, 59], 1)
    setexec((1 << 32) - 1)
    I(f"ds_write_b128 v{aAVw}, v[56:59] offset:{L_AV}")
    I("s_mov_b64 exec, -1")
    I("s_waitcnt lgkmcnt(0)")
    a.label("L_wo_b4")
    I("s_barrier")
    a.label("L_GEMV")
    for n in range(5): I(f"ds_read2_b32 v[{24+2*n}:{25+2*n}], v{aAVr} offset0:{16*n} offset1:{16*n+8}")
    I("v_lshrrev_b32 v20, 2, v2"); I("v_cmp_gt_u32 s[40:41], 2, v20")
    I("s_waitcnt vmcnt(0) lgkmcnt(0)")
    stamp(8)
    def gemv_step(n, first):
        for k, A_ in enumerate((vA0, vA1)):
            for r in range(4): I(f"v_and_b32 v{A_+r}, v{24+2*n+k}, v{MASK[r]}")
        for k, (A_, D_) in enumerate(((vA0, vD0), (vA1, vD1))):
            c = "0" if first else f"v[{D_}:{D_+3}]"
            I(f"v_mfma_f32_16x16x32_bf16 v[{D_}:{D_+3}], v[{A_}:{A_+3}], v[{vT+4*n}:{vT+4*n+3}], {c}")
    for n in range(4): gemv_step(n, n == 0)
    I("s_cmp_eq_u32 s44, 80"); I("s_cbranch_scc0 L_gemv4")
    gemv_step(4, False)
    a.label("L_gemv4")
    a.nop(8)
    for c in range(4): I(f"v_cndmask_b32_e64 v{24+c}, v{vD1+c}, v{vD0+c}, s[40:41]")
    I(f"s_mov_b64 exec, {sRV}")
    I(f"ds_write_b128 v{aREDw}, v[24:27] offset:{L_RED}")
    I("s_mov_b64 exec, -1")
    I(f"s_mul_i32 s40, {sG}, 10"); I(f"s_add_u32 s40, s40, {sI}"); I("s_sub_u32 s40, s40, 20"); I("s_lshl_b32 s40, s40, 7"); I(f"s_add_u32 s40, s40, {RR}")
    I(f"s_mul_i32 s41, {sG}, 2560"); I(f"s_lshl_b32 s42, {sI}, 7"); I("s_add_u32 s41, s41, s42"); I(f"s_add_u32 s41, s41, {H4}")
    I("s_cmp_eq_u32 s44, 80"); I("s_cselect_b32 s40, s40, s41")
    I("v_lshrrev_b32 v20, 3, v0"); I("v_lshlrev_b32 v20, 4, v20")
    I("s_waitcnt lgkmcnt(0)")
    I("s_barrier")
    I(f"s_cmp_eq_u32 {sW}, 0"); I("s_cbranch_scc0 L_nopub4")
    for s in range(4): I(f"ds_read_b128 v[{24+4*s}:{27+4*s}], v{aREDr} offset:{L_RED + 128*s}")
    I("s_waitcnt lgkmcnt(0)")
    for c in range(4): I(f"v_add_f32 v{24+c}, v{24+c}, v{28+c}"); I(f"v_add_f32 v{32+c}, v{32+c}, v{36+c}")
    for c in range(4): I(f"v_add_f32 v{24+c}, v{24+c}, v{32+c}")
    dppreduce("v_add_f32", [24, 25, 26, 27], R8)
    I("s_cmp_eq_u32 s44, 80"); I("s_cbranch_scc0 L_pubwo")
    for c in range(4): rbf(24+c, 24+c, 28)
    a.label("L_pubwo")
    for c in range(4): I(f"v_bfi_b32 v{24+c}, {sFF}, v{vTB}, v{24+c}")
    I("s_mov_b32 exec_lo, 0x01010101"); I("s_mov_b32 exec_hi, 0x01010101")
    I(f"buffer_store_dwordx4 v[24:27], v20, {SRD_WS}, s40 offen sc1")
    I("s_mov_b64 exec, -1")
    stamp(9)
    a.label("L_nopub4")
    I(f"s_cmp_lt_u32 {sI}, 27"); I("s_cbranch_scc0 L_FINISH")

    for base, raw in ((uW1, vW1), (uB1, vB1), (uW2, vW2)):
        for h in range(2):
            I(f"v_lshlrev_b32 v{base+2*h}, 16, v{raw+h}"); I(f"v_and_b32 v{base+2*h+1}, 0xffff0000, v{raw+h}")
    I(f"v_lshlrev_b32 v{vB2}, 16, v{vB2}")
    I(f"s_lshl_b32 s40, {sG}, 11"); I(f"s_add_u32 s40, s40, {BC}")
    I(f"s_mov_b32 s46, {f2h(GC1)}"); I(f"s_mov_b32 s47, {f2h(GC1)}")
    I("v_lshlrev_b32 v22, 7, v2"); I(f"s_lshl_b32 s41, {sW}, 4"); I("v_lshl_add_u32 v22, v3, 2, v22"); I("v_add_u32 v22, s41, v22")
    I("v_lshlrev_b32 v23, 7, v3"); I("v_lshl_add_u32 v23, v2, 2, v23")
    I("v_cmp_eq_u32 s[42:43], 1, v2"); I("v_cmp_eq_u32 s[44:45], 2, v2")
    def chkbc(): I(f"v_cmp_ne_u32 vcc, v27, v{vTG32}")
    poll([f"buffer_load_dwordx4 v[24:27], v{aBC}, {SRD_WS}, s40 offen sc1"], chkbc)
    stamp(10)
    for d in range(3): I(f"v_readlane_b32 s{32+2*d}, v24, {16*d}")
    U = lambda d, h: 28 + 4*d + 2*h
    E = lambda d, h: 40 + 4*d + 2*h
    pr = lambda r: f"v[{r}:{r+1}]"
    DH = [(d, h) for d in range(3) for h in range(2)]
    for d, h in DH: I(f"v_pk_fma_f32 {pr(U(d,h))}, s[{32+2*d}:{33+2*d}], {pr(uW1+2*h)}, {pr(uB1+2*h)} op_sel_hi:[0,1,1]")
    for d, h in DH: I(f"v_pk_mul_f32 {pr(E(d,h))}, {pr(U(d,h))}, {pr(U(d,h))}")
    for d, h in DH: I(f"v_pk_fma_f32 {pr(E(d,h))}, {pr(E(d,h))}, s[46:47], {pr(vC0)}")
    for d, h in DH: I(f"v_pk_mul_f32 {pr(E(d,h))}, {pr(U(d,h))}, {pr(E(d,h))}")
    for d, h in DH:
        I(f"v_exp_f32 v{E(d,h)}, v{E(d,h)}"); I(f"v_exp_f32 v{E(d,h)+1}, v{E(d,h)+1}")
        I(f"v_pk_mul_f32 {pr(U(d,h))}, {pr(U(d,h))}, {pr(uW2+2*h)}")
    for d, h in DH: I(f"v_pk_add_f32 {pr(E(d,h))}, {pr(E(d,h))}, 1.0 op_sel_hi:[1,0]")
    for d, h in DH: I(f"v_rcp_f32 v{E(d,h)}, v{E(d,h)}"); I(f"v_rcp_f32 v{E(d,h)+1}, v{E(d,h)+1}")
    for d in range(3): I(f"v_pk_mul_f32 {pr(U(d,0))}, {pr(U(d,0))}, {pr(E(d,0))}")
    for d in range(3): I(f"v_pk_fma_f32 {pr(U(d,0))}, {pr(U(d,1))}, {pr(E(d,1))}, {pr(U(d,0))}")
    for d in range(3): I(f"v_add_f32 v{52+d}, v{U(d,0)}, v{U(d,0)+1}")
    dppreduce("v_add_f32", [52, 53, 54], R16)
    I("v_cndmask_b32_e64 v52, v52, v53, s[42:43]"); I("v_cndmask_b32_e64 v52, v52, v54, s[44:45]")
    I("s_mov_b32 exec_lo, 0x00070007"); I("s_mov_b32 exec_hi, 0x00070007")
    I(f"ds_write_b32 v22, v52 offset:{L_FIN}")
    I("s_mov_b64 exec, -1")
    I(f"s_mul_i32 s40, {sI}, 3"); I("v_add_u32 v21, s40, v3"); I("v_cmp_gt_u32 vcc, 80, v21")
    I(f"s_mul_i32 s41, {sG}, 80"); I("v_add_u32 v21, s41, v21"); I("v_lshlrev_b32 v21, 1, v21")
    I("s_waitcnt lgkmcnt(0)")
    I("s_barrier")
    I(f"s_cmp_eq_u32 {sW}, 0"); I("s_cbranch_scc0 L_FINISH")
    I(f"ds_read2_b32 v[32:33], v23 offset0:{L_FIN//4} offset1:{L_FIN//4+16}") if L_FIN//4 + 16 < 256 else (I(f"v_add_u32 v23, {L_FIN}, v23"), I("ds_read2_b32 v[32:33], v23 offset0:0 offset1:16"))
    I("s_waitcnt lgkmcnt(0)")
    I("v_add_f32 v32, v32, v33")
    dppreduce("v_add_f32", [32], R16)
    rbf(32, 32, 33)
    I(f"v_add_f32 v32, v32, v{vB2}"); rbf(32, 32, 33)
    I("v_mul_f32 v32, v26, v32"); rbf(32, 32, 33)
    I("v_add_f32 v32, v25, v32"); I("v_cvt_pk_bf16_f32 v32, v32, v32")
    dbgstore([24, 25, 26, 32], 2)
    I("s_mov_b32 exec_lo, 0x00010001"); I("s_mov_b32 exec_hi, 0x00000001"); I("s_and_b64 exec, exec, vcc")
    I(f"global_store_short v21, v32, s[{P_OUT}:{P_OUT+1}]")
    I("s_mov_b64 exec, -1")
    stamp(11)
    I("s_branch L_FINISH")

    a.label("L_IMP")
    I("v_mul_u32_u24 v58, 20, v0")
    I(f"global_load_dwordx4 v[60:63], v58, s[{P_X}:{P_X+1}]"); I(f"global_load_dword v64, v58, s[{P_X}:{P_X+1}] offset:16")
    I(f"s_cmp_lt_u32 {sW}, 5"); I("s_cbranch_scc0 L_imp_gate")
    I("v_and_b32 v20, 31, v0"); I(f"s_lshl_b32 s41, {sW}, 5"); I("v_add_u32 v20, s41, v20"); I("v_lshlrev_b32 v20, 4, v20")
    I("v_lshrrev_b32 v21, 5, v0"); I("s_movk_i32 s41, 10240"); I("v_mad_u32_u24 v21, v21, s41, v20")
    I(f"s_mov_b32 s40, {H4}"); I(f"s_mov_b32 s41, {H4+5120}")
    poll([f"buffer_load_dwordx4 v[24:27], v21, {SRD_WS}, s40 offen sc1", f"buffer_load_dwordx4 v[28:31], v21, {SRD_WS}, s40 offen offset:2560 sc1",
          f"buffer_load_dwordx4 v[32:35], v21, {SRD_WS}, s41 offen sc1", f"buffer_load_dwordx4 v[36:39], v21, {SRD_WS}, s41 offen offset:2560 sc1"],
         chk24([24, 28, 32, 36], vTB, 56))
    stamp(7)
    for c in range(4): I(f"v_add_f32 v{24+c}, v{24+c}, v{28+c}"); I(f"v_add_f32 v{32+c}, v{32+c}, v{36+c}")
    for c in range(4): I(f"v_add_f32 v{24+c}, v{24+c}, v{32+c}")
    crossrow("v_add_f32", [24, 25, 26, 27], [28, 29, 30, 31], which=("v_permlane32_swap_b32",))
    setexec((1 << 32) - 1)
    I(f"ds_write_b128 v20, v[24:27] offset:{L_IA}")
    I("s_mov_b64 exec, -1")
    I("s_branch L_imp_b4")
    a.label("L_imp_gate")
    I(f"s_sub_u32 s41, {sW}, 5"); I("s_lshl_b32 s41, s41, 8"); I("v_add_u32 v20, s41, v0")
    for n in range(4):
        I(f"v_add_u32 v{44+n}, {64*n}, v20"); I(f"v_min_u32 v{44+n}, 639, v{44+n}"); I(f"v_lshlrev_b32 v{44+n}, 4, v{44+n}")
    I(f"s_mov_b32 s40, {RR}")
    poll([f"buffer_load_dwordx4 v[{24+4*n}:{27+4*n}], v{44+n}, {SRD_WS}, s40 offen sc1" for n in range(4)], chk24([24, 28, 32, 36], vTB, 56))
    for n in range(4): I(f"ds_write_b128 v{44+n}, v[{24+4*n}:{27+4*n}] offset:{L_MODS}")
    a.label("L_imp_b4")
    I("s_waitcnt vmcnt(0) lgkmcnt(0)")
    I("s_barrier")
    I(f"s_cmp_eq_u32 {sW}, 0"); I("s_cbranch_scc0 L_FINISH")
    stamp(8)
    I("v_lshlrev_b32 v58, 1, v58")
    for n in range(5): I(f"ds_read_b64 v[{24+2*n}:{25+2*n}], v58 offset:{L_IA + 8*n}")
    for n in range(5): I(f"ds_read_b64 v[{34+2*n}:{35+2*n}], v58 offset:{L_MODS + 8*n}")
    for n in range(5): I(f"ds_read_b64 v[{66+2*n}:{67+2*n}], v58 offset:{L_MODS + 5120 + 8*n}")
    for n in range(5): I(f"ds_read_b64 v[{44+2*n}:{45+2*n}], v58 offset:{L_MODS + 2560 + 8*n}")
    REC = 96
    for n in range(5):
        I(f"v_lshlrev_b32 v{76+2*n}, 16, v{60+n}"); I(f"v_and_b32 v{77+2*n}, 0xffff0000, v{60+n}")
    I("s_waitcnt lgkmcnt(10)")
    for n in range(5): I(f"v_pk_fma_f32 v[{24+2*n}:{25+2*n}], v[{34+2*n}:{35+2*n}], v[{24+2*n}:{25+2*n}], v[{76+2*n}:{77+2*n}]")
    for c in range(10): I(f"ds_read_b32 v{REC+4*c+2}, v58 offset:{L_MODS + 7680 + 4*c}")
    def stats(X, fill):
        I(f"v_pk_add_f32 v[54:55], v[{X}:{X+1}], v[{X+2}:{X+3}]"); I(f"v_pk_mul_f32 v[56:57], v[{X}:{X+1}], v[{X}:{X+1}]")
        for n in range(1, 5):
            if n > 1: I(f"v_pk_add_f32 v[54:55], v[54:55], v[{X+2*n}:{X+2*n+1}]")
            I(f"v_pk_fma_f32 v[56:57], v[{X+2*n}:{X+2*n+1}], v[{X+2*n}:{X+2*n+1}], v[56:57]")
        I("v_add_f32 v54, v54, v55"); I("v_add_f32 v56, v56, v57")
        steps = []
        for mod in R16: steps.append([f"v_add_f32_dpp v54, v54, v54 {mod} {DPPM}", f"v_add_f32_dpp v56, v56, v56 {mod} {DPPM}"])
        for sw in ("v_permlane16_swap_b32", "v_permlane32_swap_b32"):
            steps.append(["v_mov_b32 v55, v54", "v_mov_b32 v57, v56"])
            steps.append([f"{sw} v54, v55", f"{sw} v56, v57"])
            steps.append(["v_add_f32 v54, v54, v55", "v_add_f32 v56, v56, v57"])
        fill = list(fill)
        for st in steps:
            for s in st: I(s)
            if fill: I(fill.pop(0))
        for s in fill: I(s)
        I(f"v_mul_f32 v54, {hex(INV640)}, v54")
        I(f"v_mul_f32 v56, {hex(INV640)}, v56"); I("v_fma_f32 v56, -v54, v54, v56"); I("v_max_f32 v56, 0, v56")
        I(f"v_add_f32 v56, {hex(EPS)}, v56"); I("v_rsq_f32 v55, v56")
        I("v_mul_f32 v56, -v54, v55") if False else None
        I("v_mul_f32 v56, v54, v55"); I("v_mov_b32 v54, v55")
    fill1 = [f"v_mov_b32 v{REC+4*c+1}, v{24+c}" for c in range(10)]
    stats(24, fill1)
    I("s_waitcnt lgkmcnt(0)")
    for n in range(5): I(f"v_pk_fma_f32 v[{24+2*n}:{25+2*n}], v[{24+2*n}:{25+2*n}], v[54:55], v[56:57] op_sel_hi:[1,0,0] neg_lo:[0,0,1] neg_hi:[0,0,1]")
    for n in range(5): I(f"v_pk_add_f32 v[{44+2*n}:{45+2*n}], v[{44+2*n}:{45+2*n}], v[{24+2*n}:{25+2*n}]")
    for n in range(5): I(f"v_pk_fma_f32 v[{24+2*n}:{25+2*n}], v[{24+2*n}:{25+2*n}], v[{66+2*n}:{67+2*n}], v[{44+2*n}:{45+2*n}]")
    fill2 = [f"v_mov_b32 v{REC+4*c+3}, v{vTG32}" for c in range(10)]
    stats(24, fill2)
    for c in range(10): I(f"v_fma_f32 v{REC+4*c}, v{24+c}, v54, -v56")
    I(f"s_lshl_b32 s41, {sG}, 3"); I("v_subrev_u32 v58, s41, v0"); I("v_mul_u32_u24 v58, 160, v58")
    I(f"s_lshl_b32 s40, {sG}, 11"); I(f"s_add_u32 s40, s40, {BC}")
    I("s_mov_b64 s[42:43], 0xff"); I("s_lshl_b64 exec, s[42:43], s41")
    store_mode([f"buffer_store_dwordx4 v[{REC+4*c}:{REC+4*c+3}], v58, {SRD_WS}, s40 offen offset:{16*c}" for c in range(10)])
    I("s_mov_b64 exec, -1")
    stamp(9)
    I(f"s_cmp_eq_u32 {sG}, 0"); I("s_cbranch_scc0 L_FINISH")
    I(f"v_mov_b32 v58, 0"); setexec(1)
    I(f"buffer_store_dword v{vTG32}, v58, {SRD_WS}, 0 offen sc1")
    I("s_mov_b64 exec, -1")
    I("s_branch L_FINISH")

    a.label("L_CHAIN")
    inchain[0] = True
    stamp(10)
    vM_, vQ = 12, 52
    CR, C0, XR, vTG, cA0, cA1, cD0, cD1, XQ = 156, 132, 142, 147, 148, 152, 156, 160, 164
    I("v_mul_u32_u24 v8, 20, v0")
    I(f"global_load_dwordx4 v[{CR}:{CR+3}], v8, s[{P_C}:{P_C+1}]"); I(f"global_load_dword v{CR+4}, v8, s[{P_C}:{P_C+1}] offset:16")
    I(f"s_and_b32 s40, {sG}, 1"); I("s_mul_i32 s40, s40, 20"); I(f"s_add_u32 s40, s40, {sI}")
    I(f"s_lshr_b32 s41, {sG}, 1")
    I(f"s_mul_i32 s42, s41, {160*7680}"); I("s_lshl_b32 s43, s40, 6"); I("s_add_u32 s42, s42, s43")
    I(f"s_add_u32 s24, s{P_WM}, s42"); I(f"s_addc_u32 s25, s{P_WM+1}, 0"); I("s_and_b32 s25, s25, 0xffff")
    I("v_bfe_u32 v10, v0, 2, 2"); I("v_lshl_add_u32 v10, v10, 2, v3"); I("s_movk_i32 s43, 7680"); I("v_mul_lo_u32 v10, v10, s43")
    I("v_and_b32 v11, 3, v0"); I("v_lshl_add_u32 v10, v11, 4, v10")
    I(f"s_cmp_lt_u32 {sI}, {0 if 'M' in skip else 20}"); I(f"s_cselect_b32 s26, {159*7680+64}, 0"); I("s_mov_b32 s27, 0x20000")
    I("s_mov_b32 s44, 0"); I(f"s_cselect_b32 s49, {16*7680}, 0")
    for n in range(10):
        I(f"buffer_load_dwordx4 v[{vM_+4*n}:{vM_+4*n+3}], v10, {SRD_M}, s44 offen {ntw}")
        if n < 9: I(f"s_add_u32 s44, s44, s49")
    stamp(11)
    if b0 == "m": I("s_barrier")
    I(f"global_load_dwordx4 v[{XR}:{XR+3}], v8, s[{P_X}:{P_X+1}]"); I(f"global_load_dword v{XR+4}, v8, s[{P_X}:{P_X+1}] offset:16")
    I(f"s_mul_i32 s42, {sJ}, 160"); I("v_min_u32 v9, 19, v0"); I("v_lshlrev_b32 v9, 3, v9"); I("v_add_u32 v9, s42, v9")
    I(f"global_load_dwordx2 v[{XQ}:{XQ+1}], v9, s[{P_X}:{P_X+1}]")
    I(f"s_mul_i32 s42, {sJ}, {80*8192}"); I(f"s_lshl_b32 s43, {sHEAD}, 8"); I("s_add_u32 s42, s42, s43")
    I(f"s_add_u32 s20, s{P_WQ}, s42"); I(f"s_addc_u32 s21, s{P_WQ+1}, 0"); I("s_and_b32 s21, s21, 0xffff"); I(f"s_mov_b32 s22, {0 if 'Q' in skip else 79*8192+256}"); I("s_mov_b32 s23, 0x20000")
    I("v_lshlrev_b32 v11, 13, v3"); I("v_lshl_add_u32 v11, v2, 4, v11")
    def qloads():
        I("s_mov_b32 s44, 0")
        for m in range(20):
            I(f"buffer_load_dwordx4 v[{vQ+4*m}:{vQ+4*m+3}], v11, {SRD_A}, s44 offen {nt}")
            if m < 19 and 'Q' not in skip: I(f"s_add_u32 s44, s44, {4*8192}")
    if qearly: qloads()
    nq = 20 if qearly else 0
    if b0 == "issue": I("s_barrier")
    I("s_getreg_b32 s45, hwreg(HW_REG_XCC_ID, 0, 4)")
    I("s_waitcnt lgkmcnt(0)")
    I(f"s_add_u32 {sT32}, {sT32}, 1"); I(f"s_and_b32 {sT8}, {sT32}, 0xff")
    I(f"s_lshl_b32 s46, {sT32}, 4"); I("s_or_b32 s47, s46, s45")
    I("v_mov_b32 v166, s47"); I(f"s_lshl_b32 s48, {sG}, 7"); I(f"s_lshl_b32 s49, {sI}, 2"); I("s_add_u32 s48, s48, s49"); I(f"s_add_u32 s48, s48, {XT}"); I("v_mov_b32 v9, 0")
    setexec(1)
    I(f"buffer_store_dword v166, v9, {SRD_WS}, s48 offen" + ("" if 'S' in skip else " sc1"))
    I("s_mov_b64 exec, -1")
    I(f"v_mov_b32 v{vTG}, {sT32}")
    NTAIL = 3 + nq + 1
    if 'P' in skip: I("s_branch L_B1")
    I(f"s_waitcnt vmcnt({10 + NTAIL})")
    stamp(6)
    if b0 == "c": I("s_barrier")
    for n in range(5):
        I(f"v_lshlrev_b32 v{C0+2*n}, 16, v{CR+n}"); I(f"v_and_b32 v{C0+2*n+1}, 0xffff0000, v{CR+n}")
    for half in range(0, 10, 2):
        cs = (half, half+1)
        t = {c: 148 + 4*(c % 2) for c in cs}
        for c in cs: I(f"v_mul_f32 v{t[c]}, {hex(LOG2E ^ 0x80000000)}, v{C0+c}")
        for c in cs: I(f"v_exp_f32 v{t[c]}, v{t[c]}")
        for c in cs: I(f"v_add_f32 v{t[c]}, 1.0, v{t[c]}")
        for c in cs: I(f"v_rcp_f32 v{t[c]+1}, v{t[c]}")
        for c in cs: I(f"v_mul_f32 v{t[c]+2}, v{C0+c}, v{t[c]+1}")
        for c in cs: I(f"v_fma_f32 v{t[c]+3}, -v{t[c]+2}, v{t[c]}, v{C0+c}")
        for c in cs: I(f"v_fma_f32 v{t[c]+2}, v{t[c]+3}, v{t[c]+1}, v{t[c]+2}")
        for c in cs: I(f"v_cvt_pk_bf16_f32 v{C0+c}, v{t[c]+2}, v{t[c]+2}")
    I("v_lshlrev_b32 v8, 1, v8")
    for n in range(5): I(f"ds_write_b64 v8, v[{C0+2*n}:{C0+2*n+1}] offset:{L_SC + 8*n}")
    stamp(7)
    I(f"s_cmp_lt_u32 {sI}, 20"); I("s_cbranch_scc0 L_nomtask")
    I("s_mul_i32 s42, s41, 640"); I("v_bfe_u32 v8, v0, 3, 1"); I("v_lshl_add_u32 v8, v8, 2, v3"); I("v_lshlrev_b32 v8, 2, v8"); I("v_add_u32 v8, s42, v8")
    I("s_waitcnt lgkmcnt(0)")
    AV = C0
    for n in range(5): I(f"ds_read2_b32 v[{AV+2*n}:{AV+2*n+1}], v8 offset0:{16*n} offset1:{16*n+8}")
    for n in range(10):
        h = n % 5
        if n == 0 or n == 5: I(f"s_waitcnt vmcnt({9 - n + NTAIL}) lgkmcnt(0)")
        else: I(f"s_waitcnt vmcnt({9 - n + NTAIL})")
        for k, A_ in enumerate((cA0, cA1)):
            for r in range(4): I(f"v_and_b32 v{A_+r}, v{AV+2*h+k}, v{MASK[r]}")
        if n < 5: I(f"ds_read2_b32 v[{AV+2*h}:{AV+2*h+1}], v8 offset0:{16*(n+5)} offset1:{16*(n+5)+8}")
        for k, (A_, D_) in enumerate(((cA0, cD0), (cA1, cD1))):
            c = "0" if n == 0 else f"v[{D_}:{D_+3}]"
            I(f"v_mfma_f32_16x16x32_bf16 v[{D_}:{D_+3}], v[{A_}:{A_+3}], v[{vM_+4*n}:{vM_+4*n+3}], {c}")
    if b0 == "arrive": I("s_barrier")
    stamp(8)
    I("v_lshrrev_b32 v8, 2, v2"); I("v_and_b32 v9, 1, v8"); I("v_lshrrev_b32 v10, 1, v3")
    I("v_cmp_eq_u32 s[42:43], v9, v10"); I("v_cmp_gt_u32 vcc, 2, v8")
    for c in range(4): I(f"v_cndmask_b32 v{132+c}, v{cD1+c}, v{cD0+c}, vcc")
    for c in range(4): I(f"v_cndmask_b32_e64 v{132+c}, 0, v{132+c}, s[42:43]")
    dppreduce("v_add_f32", [132, 133, 134, 135], ["row_ror:4", "row_ror:8"])
    crossrow("v_add_f32", [132, 133, 134, 135], [136, 137, 138, 139], which=("v_permlane32_swap_b32",))
    I(f"v_mov_b32 v136, v135"); I(f"v_mov_b32 v135, v{vTG}"); I(f"v_mov_b32 v137, v{vTG}")
    I("v_lshl_add_u32 v8, v2, 1, v3"); I("v_lshlrev_b32 v9, 3, v8"); I("v_lshlrev_b32 v8, 4, v8")
    I("s_mul_i32 s42, s41, 7680"); I(f"s_add_u32 s42, s42, {H1}"); I("s_lshl_b32 s43, s40, 6"); I("s_add_u32 s43, s43, s42"); I("s_add_u32 s43, s43, 5120")
    I("s_lshl_b32 s40, s40, 7"); I("s_add_u32 s42, s42, s40")
    setexec(0x000f000f)
    I(f"buffer_store_dwordx4 v[132:135], v8, {SRD_WS}, s42 offen sc1")
    I(f"buffer_store_dwordx2 v[136:137], v9, {SRD_WS}, s43 offen sc1")
    I("s_mov_b64 exec, -1")
    stamp(1)
    if b0 == "arrive":
        I("s_branch L_mdone")
        a.label("L_nomtask"); I("s_barrier"); a.label("L_mdone")
    else:
        a.label("L_nomtask")
    if not qearly: qloads()
    nq2 = 0 if qearly else 20
    I(f"s_waitcnt vmcnt({nq + 1 + (0 if qearly else 20)})")
    X0 = 12
    for n in range(5):
        I(f"v_lshlrev_b32 v{X0+2*n}, 16, v{XR+n}"); I(f"v_and_b32 v{X0+2*n+1}, 0xffff0000, v{XR+n}")
    I(f"v_add_f32 v22, v{X0}, v{X0+1}")
    for c in range(2, 10): I(f"v_add_f32 v22, v22, v{X0+c}")
    allreduce("v_add_f32", [22], [23])
    I(f"v_mul_f32 v22, {hex(INV640)}, v22")
    I(f"v_sub_f32 v23, v{X0}, v22"); I("v_mul_f32 v24, v23, v23")
    for c in range(1, 10): I(f"v_sub_f32 v23, v{X0+c}, v22"); I("v_fmac_f32 v24, v23, v23")
    allreduce("v_add_f32", [24], [23])
    I(f"v_mul_f32 v24, {hex(INV640)}, v24")
    rbf2(22, 24, 22, 24, 23)
    I(f"v_add_f32 v24, {hex(EPS)}, v24"); rbf(24, 24, 23)
    I("v_sqrt_f32 v24, v24"); rbf(24, 24, 23)
    I("v_rcp_f32 v25, v24")
    vZ = 44
    for h in range(2):
        I(f"v_lshlrev_b32 v{vZ+2*h}, 16, v{XQ+h}"); I(f"v_and_b32 v{vZ+2*h+1}, 0xffff0000, v{XQ+h}")
    for c in range(4): I(f"v_sub_f32 v{vZ+c}, v{vZ+c}, v22")
    rbf2(vZ, vZ+1, vZ, vZ+1, 23); rbf2(vZ+2, vZ+3, vZ+2, vZ+3, 23)
    for c in range(4):
        I(f"v_mul_f32 v26, v{vZ+c}, v25"); I(f"v_fma_f32 v27, -v26, v24, v{vZ+c}"); I(f"v_fma_f32 v{vZ+c}, v27, v25, v26")
    rbf2(vZ, vZ+1, vZ, vZ+1, 23); rbf2(vZ+2, vZ+3, vZ+2, vZ+3, 23)
    I("v_min_u32 v8, 39, v0"); I(f"s_mul_i32 s42, {sJ}, 20"); I("v_add_u32 v9, s42, v8")
    I("v_cmp_lt_u32 vcc, 19, v8"); I("v_add_u32 v10, 140, v9"); I("v_cndmask_b32 v9, v9, v10, vcc"); I("v_lshlrev_b32 v10, 3, v9"); I("v_add_u32 v10, 5120, v10"); I("v_lshlrev_b32 v9, 4, v9")
    I("v_and_b32 v8, 31, v0"); I("v_lshlrev_b32 v8, 2, v8"); I(f"s_lshl_b32 s42, {sG}, 7"); I(f"s_add_u32 s42, s42, {XT}")
    for rb in range(4): I(f"s_mov_b32 s{32+rb}, {H1 + 7680*rb}")
    I(f"s_and_b32 s43, {sT32}, 0x0fffffff")
    G = 12
    lds_ = [f"buffer_load_dword v48, v8, {SRD_WS}, s42 offen sc1"]
    for rb in range(4):
        lds_.append(f"buffer_load_dwordx4 v[{G+6*rb}:{G+6*rb+3}], v9, {SRD_WS}, s{32+rb} offen sc1")
        lds_.append(f"buffer_load_dwordx2 v[{G+6*rb+4}:{G+6*rb+5}], v10, {SRD_WS}, s{32+rb} offen sc1")
    def chk1():
        for n in range(4): I(f"v_bitop3_b32 v{36+n}, v{G+6*n+3}, v{G+6*n+5}, v{vTG} bitop3:0x7e")
        I("v_lshrrev_b32 v40, 4, v48"); I("v_xor_b32 v40, s43, v40")
        I("v_or3_b32 v36, v36, v37, v38"); I("v_or3_b32 v36, v36, v39, v40")
        I("v_cmp_ne_u32 vcc, 0, v36")
    if ackwait: I("s_waitcnt vmcnt(0)")
    poll(lds_, chk1, mask=(1 << 40) - 1)
    stamp(2)
    setexec((1 << 32) - 1)
    I("v_cmp_ne_u32 vcc, s47, v48")
    I("s_mov_b64 exec, -1")
    I("s_cmp_eq_u64 vcc, 0"); I(f"s_cselect_b32 {sMODE}, 1, 0")
    if not fast: I(f"s_mov_b32 {sMODE}, 0")
    for c in range(4):
        src = (lambda rb: G + 6*rb + (c if c < 3 else 4))
        I(f"v_add_f32 v{40+c}, v{src(0)}, v{src(1)}"); I(f"v_add_f32 v{36+c}, v{src(2)}, v{src(3)}")
    for c in range(4): I(f"v_add_f32 v{40+c}, v{40+c}, v{36+c}")
    rbf2(40, 41, 40, 41, 36); rbf2(42, 43, 42, 43, 36)
    I("v_add_u32 v8, 20, v0"); I("v_lshlrev_b32 v8, 2, v8")
    for c in range(4): I(f"ds_bpermute_b32 v{12+c}, v8, v{40+c}")
    I(f"v_mov_b32 v9, {sMODE}"); I(f"v_mov_b32 v10, 0")
    setexec(1); I(f"ds_write_b32 v10, v9 offset:{L_MODE}"); I("s_mov_b64 exec, -1")
    I("s_waitcnt lgkmcnt(0)")
    for c in range(4): I(f"v_add_f32 v{12+c}, 1.0, v{12+c}")
    rbf2(12, 13, 12, 13, 36); rbf2(14, 15, 14, 15, 36)
    for c in range(4): I(f"v_mul_f32 v{12+c}, v{vZ+c}, v{12+c}")
    rbf2(12, 13, 12, 13, 36); rbf2(14, 15, 14, 15, 36)
    for c in range(4): I(f"v_add_f32 v{12+c}, v{12+c}, v{40+c}")
    for c in range(4): I(f"v_cvt_pk_bf16_f32 v{12+c}, v{12+c}, v{12+c}")
    dbgstore([12, 13, 14, 15], 3)
    I("v_lshlrev_b32 v8, 4, v0")
    setexec((1 << 20) - 1)
    I(f"ds_write_b128 v8, v[12:15] offset:{L_H16}")
    I("s_mov_b64 exec, -1")
    I(f"v_lshlrev_b32 v8, 2, v3"); I(f"v_add_u32 v8, {L_H16}, v8")
    I("s_waitcnt lgkmcnt(0)")
    HV = 12
    for n in range(10): I(f"ds_read2_b32 v[{HV+2*n}:{HV+2*n+1}], v8 offset0:{8*n} offset1:{8*n+4}")
    I("v_lshl_add_u32 v8, v2, 1, v3"); I("v_lshlrev_b32 v49, 3, v8"); I("v_lshlrev_b32 v8, 4, v8")
    I(f"s_lshl_b32 s42, {sHEAD}, 3"); I(f"s_add_u32 s43, s42, {sJ}"); I("s_mul_i32 s43, s43, 768"); I(f"s_add_u32 s43, s43, {H2}")
    I("s_waitcnt vmcnt(0) lgkmcnt(0)")
    for m in range(20):
        A_ = cA0 if m % 2 == 0 else cA1
        for r in range(4): I(f"v_and_b32 v{A_+r}, v{HV+m}, v{MASK[r]}")
        c = "0" if m == 0 else f"v[{cD0}:{cD0+3}]"
        I(f"v_mfma_f32_16x16x32_bf16 v[{cD0}:{cD0+3}], v[{A_}:{A_+3}], v[{vQ+4*m}:{vQ+4*m+3}], {c}")
    I(f"v_mov_b32 v135, v{vTG}"); I(f"v_mov_b32 v137, v{vTG}")
    I("v_and_b32 v10, 31, v0"); I("v_lshrrev_b32 v11, 5, v0"); I("s_movk_i32 s44, 3072")
    I("v_lshlrev_b32 v9, 4, v10"); I("v_mad_u32_u24 v9, v11, s44, v9"); I("v_lshlrev_b32 v50, 3, v10"); I("v_mad_u32_u24 v50, v11, s44, v50")
    I(f"s_mul_i32 s42, s42, 768"); I(f"s_add_u32 s42, s42, {H2}")
    for c in range(3): I(f"v_mov_b32 v{132+c}, v{cD0+c}")
    I(f"v_mov_b32 v136, v{cD0+3}")
    setexec((1 << 32) - 1)
    store_mode([f"buffer_store_dwordx4 v[132:135], v8, {SRD_WS}, s43 offen", f"buffer_store_dwordx2 v[136:137], v49, {SRD_WS}, s43 offen offset:512"])
    I("s_mov_b64 exec, -1")
    stamp(3)
    lds_ = []
    for n in range(4):
        lds_.append(f"buffer_load_dwordx4 v[{G+6*n}:{G+6*n+3}], v9, {SRD_WS}, s42 offen offset:{768*n} sc1")
        lds_.append(f"buffer_load_dwordx2 v[{G+6*n+4}:{G+6*n+5}], v50, {SRD_WS}, s42 offen offset:{768*n+512} sc1")
    def chk2():
        for n in range(4): I(f"v_bitop3_b32 v{36+n}, v{G+6*n+3}, v{G+6*n+5}, v{vTG} bitop3:0x7e")
        I("v_or3_b32 v36, v36, v37, v38"); I("v_or_b32 v36, v36, v39"); I("v_cmp_ne_u32 vcc, 0, v36")
    if ackwait: I("s_waitcnt vmcnt(0)")
    poll(lds_, chk2)
    stamp(4)
    for c in range(4):
        src = (lambda rb: G + 6*rb + (c if c < 3 else 4))
        I(f"v_add_f32 v{40+c}, v{src(0)}, v{src(1)}"); I(f"v_add_f32 v{44+c}, v{src(2)}, v{src(3)}")
    for c in range(4): I(f"v_add_f32 v{40+c}, v{40+c}, v{44+c}")
    crossrow("v_add_f32", [40, 41, 42, 43], [44, 45, 46, 47], which=("v_permlane32_swap_b32",))
    I("v_cvt_pk_bf16_f32 v44, v40, v41"); I("v_cvt_pk_bf16_f32 v45, v42, v43")
    dbgstore([44, 45], 4)
    I("v_lshlrev_b32 v10, 3, v10")
    setexec((1 << 32) - 1)
    I(f"ds_write_b64 v10, v[44:45] offset:{L_Q16}")
    I("s_mov_b64 exec, -1")
    I("s_waitcnt lgkmcnt(0)")
    a.label("L_B1")
    I("s_barrier")
    stamp(5)

    a.label("L_FINISH")
    if stamps and dbgmax is not None:
        I("s_memrealtime s[50:51]"); I("s_waitcnt lgkmcnt(0)"); I(f"v_writelane_b32 {vST}, s50, 15")
        I(f"v_readlane_b32 s50, {vST}, 0"); I("s_nop 3"); I("s_not_b32 s50, s50"); I(f"v_writelane_b32 {vST}, s50, 0")
        I(f"s_cmp_eq_u32 {sW}, 8"); I(f"s_cselect_b32 s50, 1, 0"); I(f"s_cmp_eq_u32 s50, {1 if dbgmax == 'chain' else 0}"); I("s_cbranch_scc1 L_dm1")
        I(f"v_readlane_b32 s48, {vST}, 0"); I(f"v_readlane_b32 s49, {vST}, 15"); I(f"v_mov_b32 {vST}, 0"); I("s_nop 3"); I(f"v_writelane_b32 {vST}, s48, 0"); I(f"v_writelane_b32 {vST}, s49, 15")
        a.label("L_dm1")
        I("v_lshlrev_b32 v166, 2, v0"); setexec(0xffff)
        I(f"global_atomic_umax v166, {vST}, s[{P_DBG}:{P_DBG+1}]")
        I("s_mov_b64 exec, -1")
    elif stamps:
        I("s_memrealtime s[50:51]"); I("s_waitcnt lgkmcnt(0)"); I(f"v_writelane_b32 {vST}, s50, 15")
        I("s_getreg_b32 s50, hwreg(HW_REG_XCC_ID, 0, 4)"); I(f"v_writelane_b32 {vST}, s50, 16")
        I("s_lshl_b32 s50, s2, 4"); I(f"s_add_u32 s50, s50, {sW}"); I("s_lshl_b32 s50, s50, 8"); I(f"s_add_u32 s50, s50, {STP}")
        I("v_lshlrev_b32 v166, 2, v0")
        I(f"buffer_store_dword {vST}, v166, {SRD_WS}, s50 offen")
    a.label("L_END")
    I("s_endpgm")
    a.raw('.section .rodata,"a"'); a.raw(".p2align 6"); a.raw(f".amdhsa_kernel {NAME}_kernel")
    a.raw("  .amdhsa_next_free_vgpr 168"); a.raw("  .amdhsa_next_free_sgpr 102"); a.raw("  .amdhsa_accum_offset 168")
    a.raw("  .amdhsa_group_segment_fixed_size 0"); a.raw("  .amdhsa_kernarg_size 120"); a.raw("  .amdhsa_user_sgpr_count 2")
    a.raw("  .amdhsa_user_sgpr_kernarg_segment_ptr 1"); a.raw("  .amdhsa_system_sgpr_workgroup_id_x 1"); a.raw(".end_amdhsa_kernel")
    return a

if __name__ == "__main__":
    kw = eval("dict(" + (sys.argv[2] if len(sys.argv) > 2 else "") + ")")
    a = gen(**kw)
    open(sys.argv[1], "w").write(a.text())
    print("instructions", a.ninstr, "nops", a.nops)
```

```python
import sys, struct
from asmdsl import Asm
NAME = "adaLN_cond__sliding_block_cached__mixer_token_mlp__decode"

XT   = 0x1000
H1   = 0xA000
H2   = 0x14000
H3   = 0x54000
H3ML = 0x94000
H4   = 0x95000
RR   = 0xA0000
BC   = 0xA6000
DBG = 0x200000
STP = 0x800000
L_SC = 0
L_H16 = 2560
L_Q16 = 2880
L_MW = 3136
L_LW = 3168
L_MODE = 3200
L_ZERO = 3216
L_OW = 3328
L_AV = 7680
L_RED = 9728
L_IA = 14080
L_MODS = 16640
L_FIN = 26880
LDS_BYTES = 27648

LOG2E = 0x3fb8aa3b
SCALE = 0x3db504f3
INV640 = 0x3acccccd
EPS = 0x3727c5ac
def f2h(x): return "0x%08x" % struct.unpack("<I", struct.pack("<f", x))[0]
GC0 = -2*0.7978845608028654*1.4426950408889634
GC1 = GC0*0.044715

def gen(D=3, nt="nt", ntw="nt", ntt="nt", inter=False, stamps=False, dbg=False, fast=True, prefetch=True, LIMIT=400000,
        rotmul=5, D2=None, Dswitch=99, skip='', tpos='p', dbgmax=None, nset1=1, nset2=1, sl1=12, sl2=8, mgroups=4, pfall=False, align4k=False, b0='mq', torder='kv', nvpre=8, ackw1='rt', ackw2=True, sl0=0, kgate=0, diagnop=0):
    if D2 is None: D2 = D
    a = Asm(); I = a
    uid = [0]
    def lab(p):
        uid[0] += 1
        return f"L_{p}{uid[0]}"
    sB, sW, sG, sI, sHEAD, sJ, sT32, sT8, sMODE = "s2", "s3", "s4", "s5", "s6", "s7", "s8", "s9", "s10"
    SRD_K, SRD_V, SRD_A, SRD_WS = "s[12:15]", "s[16:19]", "s[20:23]", "s[28:31]"
    sOFF = [f"s{32+m}" for m in range(8)]
    P_X, P_K, P_V, P_WQ, P_WO, P_W1, P_B1, P_W2, P_B2, P_C, P_WM, P_OUT, P_DBG, P_WS = 52, 54, 56, 58, 60, 64, 66, 68, 70, 72, 74, 76, 78, 80
    sQ = [None, "s[90:91]", "s[92:93]", "s[94:95]"]
    sRV = "s[96:97]"
    sFF = "s98"
    vST = "v167"
    role = ["kv"]
    def stamp(k):
        if not stamps: return
        key = k + {"kv": 0, "q": 100, "m": 200}[role[0]]
        if stamps is not True and key not in stamps: return
        I("s_memrealtime s[50:51]"); I("s_waitcnt lgkmcnt(0)"); I(f"v_writelane_b32 {vST}, s50, {k}")
    DPPM = "row_mask:0xf bank_mask:0xf"
    def dppreduce(op, regs, mods):
        for mod in mods:
            for r in regs: I(f"{op}_dpp v{r}, v{r}, v{r} {mod} {DPPM}")
    Q2 = ["quad_perm:[1,0,3,2]", "quad_perm:[2,3,0,1]"]
    R8 = Q2 + ["row_half_mirror"]
    R16 = Q2 + ["row_ror:4", "row_ror:8"]
    def crossrow(op, regs, tmp, which=("v_permlane16_swap_b32", "v_permlane32_swap_b32")):
        for sw in which:
            for r, t in zip(regs, tmp): I(f"v_mov_b32 v{t}, v{r}")
            for r, t in zip(regs, tmp): I(f"{sw} v{r}, v{t}")
            for r, t in zip(regs, tmp): I(f"{op} v{r}, v{r}, v{t}")
    def allreduce(op, regs, tmp):
        dppreduce(op, regs, R16); crossrow(op, regs, tmp)
    def rbf(dst, src, tmp):
        I(f"v_cvt_pk_bf16_f32 v{tmp}, v{src}, v{src}"); I(f"v_lshlrev_b32 v{dst}, 16, v{tmp}")
    def rbf2(d0, d1, s0, s1, tmp):
        I(f"v_cvt_pk_bf16_f32 v{tmp}, v{s0}, v{s1}"); I(f"v_lshlrev_b32 v{d0}, 16, v{tmp}"); I(f"v_and_b32 v{d1}, 0xffff0000, v{tmp}")
    def setexec(mask):
        lo, hi = mask & 0xffffffff, mask >> 32
        if mask == (1 << 64) - 1: I("s_mov_b64 exec, -1")
        elif hi == 0 and lo <= 64: I(f"s_mov_b64 exec, {lo}")
        else: I(f"s_mov_b32 exec_lo, {hex(lo)}"); I(f"s_mov_b32 exec_hi, {hex(hi)}")
    def masks(t0, sp):
        I(f"v_and_b32 v{t0}, 7, v0"); I(f"v_lshrrev_b32 v{t0+1}, 1, v{t0}"); I(f"v_and_b32 v{t0}, 1, v{t0}")
        I(f"v_mov_b32 v{t0+2}, 0xffff"); I(f"v_mov_b32 v{t0+3}, 0xffff0000")
        I(f"v_cmp_eq_u32 vcc, 1, v{t0}")
        for r in range(4): I(f"v_cmp_eq_u32 s[{sp+2*r}:{sp+2*r+1}], {r}, v{t0+1}")
        I(f"v_cndmask_b32 v{t0+2}, v{t0+2}, v{t0+3}, vcc")
        for r in range(4): I(f"v_cndmask_b32_e64 v{4+r}, 0, v{t0+2}, s[{sp+2*r}:{sp+2*r+1}]")
    MASK = [4, 5, 6, 7]
    def poll(loads, check, cnt="s51"):
        l0, l1 = lab("poll"), lab("pdone")
        I(f"s_mov_b32 {cnt}, 0")
        a.label(l0)
        for s in loads: I(s)
        I(f"s_add_u32 {cnt}, {cnt}, 1")
        I("s_waitcnt vmcnt(0)")
        check()
        I("s_and_b64 exec, exec, vcc")
        I(f"s_cbranch_scc0 {l1}")
        I(f"s_cmp_lt_u32 {cnt}, {LIMIT}")
        I(f"s_cbranch_scc1 {l0}")
        a.label(l1)
        I("s_mov_b64 exec, -1")
    def ppoll(nset, loads, check, done, sl, cnt="s51", after_first=None):
        n = len(loads(0))
        lp = lab("pp"); ld = [lab("ppd") for _ in range(nset)]; lj = lab("ppj")
        I(f"s_mov_b32 {cnt}, 0")
        for k in range(nset):
            for s in loads(k): I(s)
            if k == 0 and after_first: after_first()
            if k < nset - 1 and sl: I(f"s_sleep {sl}")
        a.label(lp)
        for k in range(nset):
            I(f"s_waitcnt vmcnt({n*(nset-1)})")
            check(k)
            I(f"s_cbranch_vccz {ld[k]}")
            for s in loads(k): I(s)
        I(f"s_add_u32 {cnt}, {cnt}, 1"); I(f"s_cmp_lt_u32 {cnt}, {LIMIT}"); I(f"s_cbranch_scc1 {lp}")
        for k in range(nset):
            a.label(ld[k]); done(k)
            if k < nset - 1: I(f"s_branch {lj}")
        a.label(lj)
    def chk24(granules, vTb, t0):
        def f():
            for b in granules:
                for c in range(4): I(f"v_xor_b32 v{b+c}, v{vTb}, v{b+c}")
            first = True
            for b in granules:
                if first: I(f"v_or3_b32 v{t0}, v{b}, v{b+1}, v{b+2}"); I(f"v_or_b32 v{t0}, v{t0}, v{b+3}"); first = False
                else: I(f"v_or3_b32 v{t0}, v{t0}, v{b}, v{b+1}"); I(f"v_or3_b32 v{t0}, v{t0}, v{b+2}, v{b+3}")
            I(f"v_and_b32 v{t0}, 0xff, v{t0}"); I(f"v_cmp_ne_u32 vcc, 0, v{t0}")
        return f
    slow = []
    def store_mode(texts):
        if not fast:
            for t in texts: I(t + " sc1")
            return
        l0, l1 = lab("sl"), lab("sd")
        I(f"s_cmp_eq_u32 {sMODE}, 1"); I(f"s_cbranch_scc0 {l0}")
        for t in texts: I(t)
        a.label(l1)
        slow.append((l0, l1, texts))
    def dbgstore(regs, slot):
        if not dbg: return
        I("s_mul_i32 s50, s2, 0x4000"); I(f"s_add_u32 s50, s50, {DBG + slot*0x400}")
        I("v_lshlrev_b32 v166, 2, v0")
        for n, r in enumerate(regs): I(f"buffer_store_dword v{r}, v166, {SRD_WS}, s50 offen offset:{n*256}")
        I("s_waitcnt vmcnt(0)")
    def epoch():
        I("s_waitcnt lgkmcnt(0)")
        I(f"s_add_u32 {sT32}, {sT32}, 1"); I(f"s_and_b32 {sT8}, {sT32}, 0xff")

    NW = 10
    a.raw(open("header.txt").read().rstrip("\n"))
    a.raw(f"; @launch grid=(256,1,1) block=({64*NW},1,1) lds={LDS_BYTES}")
    a.raw('.amdgcn_target "amdgcn-amd-amdhsa--gfx950"')
    a.raw(".text"); a.raw(f".globl {NAME}_kernel")
    if align4k: a.raw(".p2align 12")
    a.raw(".p2align 8"); a.raw(f".type {NAME}_kernel,@function"); a.raw(f"{NAME}_kernel:")
    if stamps: I("s_memrealtime s[48:49]")
    I("s_cmp_ge_u32 s2, 256"); I("s_cbranch_scc1 L_END")
    I("s_load_dwordx16 s[52:67], s[0:1], 0")
    I("s_load_dwordx8 s[68:75], s[0:1], 64")
    I("s_load_dwordx4 s[76:79], s[0:1], 96")
    I("s_load_dwordx2 s[80:81], s[0:1], 112")
    I("v_lshrrev_b32 v1, 6, v0")
    I("v_and_b32 v0, 63, v0")
    I(f"v_readfirstlane_b32 {sW}, v1")
    I(f"s_and_b32 {sG}, s2, 7"); I(f"s_lshr_b32 {sI}, s2, 3")
    if prefetch:
        I(f"s_and_b32 s46, {sI}, {0 if pfall else 7}"); I(f"s_or_b32 s46, s46, {sW}"); I("s_cmp_eq_u32 s46, 0"); I("s_cbranch_scc0 L_nopf")
        I("s_getpc_b64 s[46:47]")
        a.label("L_PC")
        I("v_lshlrev_b32 v161, 7, v0")
        for pf in range(2):
            I(f"v_add_u32 v{162+pf}, {8192*pf}, v161"); I(f"v_min_u32 v{162+pf}, L_END-L_PC, v{162+pf}")
            I(f"global_load_dword v{164+pf}, v{162+pf}, s[46:47]")
        a.label("L_nopf")
    I(f"s_and_b32 s11, {sI}, 3"); I(f"s_lshl_b32 {sHEAD}, {sG}, 2"); I(f"s_add_u32 {sHEAD}, {sHEAD}, s11")
    I(f"s_lshr_b32 {sJ}, {sI}, 2")
    I("v_and_b32 v2, 15, v0"); I("v_lshrrev_b32 v3, 4, v0")
    I(f"s_mov_b32 {sFF}, 0xff")
    if stamps: I(f"v_mov_b32 {vST}, 0")
    I("s_mov_b32 s30, 0x100000" if not (dbg or stamps) else "s_mov_b32 s30, 0x10000000"); I("s_mov_b32 s31, 0x20000")
    I("s_mov_b32 s15, 0x20000"); I("s_mov_b32 s19, 0x20000"); I("s_mov_b32 s23, 0x20000")
    I("s_waitcnt lgkmcnt(0)")
    if stamps: I(f"v_writelane_b32 {vST}, s48, 0")
    I(f"s_load_dword {sT32}, s[{P_WS}:{P_WS+1}], 0")
    I(f"s_mov_b32 s28, s{P_WS}"); I(f"s_and_b32 s29, s{P_WS+1}, 0xffff")
    I(f"s_cmp_lt_u32 {sW}, 8"); I("s_cbranch_scc1 L_KV")
    I(f"s_cmp_eq_u32 {sW}, 8"); I("s_cbranch_scc1 L_QW")

    role[0] = "m"
    vM_ = 12
    CR, C0, vTG, cA0, cA1, cD0, cD1 = 156, 132, 147, 148, 152, 156, 160
    rows = 640 // mgroups
    nld = rows // 8
    I(f"s_cmp_lt_u32 {sG}, {mgroups}"); I("s_cselect_b32 s40, 20, 0"); I(f"s_cmp_lt_u32 {sI}, s40"); I("s_cselect_b32 s48, 1, 0")
    I("s_cbranch_scc1 L_mgo")
    I(f"s_sub_u32 s40, {sI}, 20"); I("s_cmp_lt_u32 s40, 10"); I("s_cbranch_scc0 L_FINISH")
    a.label("L_mgo")
    I("v_mul_u32_u24 v8, 20, v0")
    I(f"global_load_dwordx4 v[{CR}:{CR+3}], v8, s[{P_C}:{P_C+1}]"); I(f"global_load_dword v{CR+4}, v8, s[{P_C}:{P_C+1}] offset:16")
    I(f"s_mul_i32 s42, {sG}, {rows*7680}"); I(f"s_lshl_b32 s43, {sI}, 7"); I("s_add_u32 s42, s42, s43")
    I("v_bfe_u32 v10, v0, 3, 1"); I("v_lshl_add_u32 v10, v10, 2, v3"); I("s_movk_i32 s43, 7680"); I("v_mul_lo_u32 v10, v10, s43")
    I("v_and_b32 v11, 7, v0"); I("v_lshl_add_u32 v10, v11, 4, v10")
    I("s_cmp_eq_u32 s48, 1"); I("s_cselect_b32 s42, s42, 0")
    I(f"s_cselect_b32 s22, {0 if 'M' in skip else (rows-1)*7680+128}, 0"); I(f"s_cselect_b32 s49, {0 if 'M' in skip else 8*7680}, 0")
    I(f"s_add_u32 s20, s{P_WM}, s42"); I(f"s_addc_u32 s21, s{P_WM+1}, 0"); I("s_and_b32 s21, s21, 0xffff")
    I("s_mov_b32 s44, 0")
    for n in range(nld):
        I(f"buffer_load_dwordx4 v[{vM_+4*n}:{vM_+4*n+3}], v10, {SRD_A}, s44 offen {ntw}")
        if n < nld - 1: I(f"s_add_u32 s44, s44, s49")
    if b0: I("s_barrier")
    if b0 == 'mq': I("s_barrier")
    I("s_branch L_M2")
    a.label("L_QW")
    role[0] = "q"
    NRB = mgroups
    vQ = 52
    XR, vTG, cA0, cA1, cD0, XQ = 142, 147, 148, 152, 156, 164
    I("v_mul_u32_u24 v8, 20, v0")
    I(f"global_load_dwordx4 v[{XR}:{XR+3}], v8, s[{P_X}:{P_X+1}]"); I(f"global_load_dword v{XR+4}, v8, s[{P_X}:{P_X+1}] offset:16")
    I(f"s_mul_i32 s42, {sJ}, 160"); I("v_min_u32 v9, 19, v0"); I("v_lshlrev_b32 v9, 3, v9"); I("v_add_u32 v9, s42, v9")
    I(f"global_load_dwordx2 v[{XQ}:{XQ+1}], v9, s[{P_X}:{P_X+1}]")
    I(f"s_mul_i32 s42, {sJ}, {80*8192}"); I(f"s_lshl_b32 s43, {sHEAD}, 8"); I("s_add_u32 s42, s42, s43")
    I(f"s_add_u32 s20, s{P_WQ}, s42"); I(f"s_addc_u32 s21, s{P_WQ+1}, 0"); I("s_and_b32 s21, s21, 0xffff"); I(f"s_mov_b32 s22, {0 if 'Q' in skip else 79*8192+256}")
    I("v_lshlrev_b32 v11, 13, v3"); I("v_lshl_add_u32 v11, v2, 4, v11")
    I("s_mov_b32 s44, 0")
    I(f"s_mov_b32 s49, {0 if 'Q' in skip else 4*8192}")
    if b0 in ('m', 'mq'): I("s_barrier")
    for m in range(20):
        I(f"buffer_load_dwordx4 v[{vQ+4*m}:{vQ+4*m+3}], v11, {SRD_A}, s44 offen {nt}")
        if m < 19: I(f"s_add_u32 s44, s44, s49")
    if b0 in ('mq', 'both'): I("s_barrier")
    I("s_branch L_Q2")
    def m2():
        role[0] = 'm'
        vTG, cA0, cA1, cD0, cD1 = 147, 148, 152, 156, 160
        a.label('L_M2')
        stamp(11)
        masks(148, 32)
        I(f"s_waitcnt vmcnt({nld})")
        stamp(6)
        for n in range(5):
            I(f"v_lshlrev_b32 v{C0+2*n}, 16, v{CR+n}"); I(f"v_and_b32 v{C0+2*n+1}, 0xffff0000, v{CR+n}")
        for half in range(0, 10, 2):
            cs = (half, half+1)
            t = {c: 148 + 4*(c % 2) for c in cs}
            for c in cs: I(f"v_mul_f32 v{t[c]}, {hex(LOG2E ^ 0x80000000)}, v{C0+c}")
            for c in cs: I(f"v_exp_f32 v{t[c]}, v{t[c]}")
            for c in cs: I(f"v_add_f32 v{t[c]}, 1.0, v{t[c]}")
            for c in cs: I(f"v_rcp_f32 v{t[c]+1}, v{t[c]}")
            for c in cs: I(f"v_mul_f32 v{t[c]+2}, v{C0+c}, v{t[c]+1}")
            for c in cs: I(f"v_fma_f32 v{t[c]+3}, -v{t[c]+2}, v{t[c]}, v{C0+c}")
            for c in cs: I(f"v_fma_f32 v{t[c]+2}, v{t[c]+3}, v{t[c]+1}, v{t[c]+2}")
            for c in cs: I(f"v_cvt_pk_bf16_f32 v{C0+c}, v{t[c]+2}, v{t[c]+2}")
        I("v_lshlrev_b32 v8, 1, v8")
        for n in range(5): I(f"ds_write_b64 v8, v[{C0+2*n}:{C0+2*n+1}] offset:{L_SC + 8*n}")
        I(f"s_mul_i32 s42, {sG}, {rows*4}"); I("v_bfe_u32 v8, v0, 3, 1"); I("v_lshl_add_u32 v8, v8, 2, v3"); I("v_lshlrev_b32 v8, 2, v8"); I("v_add_u32 v8, s42, v8")
        I("s_waitcnt lgkmcnt(0)")
        stamp(7)
        I("s_cmp_eq_u32 s48, 1"); I("s_cbranch_scc0 L_FINISH")
        AV = 112
        for n in range(0, nld, 2): I(f"ds_read2_b32 v[{AV+n}:{AV+n+1}], v8 offset0:{8*n} offset1:{8*n+8}")
        epoch()
        I(f"v_mov_b32 v{vTG}, {sT32}")
        I("v_lshrrev_b32 v9, 3, v2"); I("v_lshrrev_b32 v10, 1, v3"); I("v_cmp_eq_u32 s[42:43], v9, v10")
        I("v_and_b32 v9, 7, v2"); I("v_and_b32 v10, 1, v3"); I("v_lshl_add_u32 v9, v9, 1, v10"); I("v_lshlrev_b32 v8, 4, v9"); I("v_lshlrev_b32 v9, 3, v9")
        I(f"s_mul_i32 s44, {sG}, 7680"); I(f"s_add_u32 s44, s44, {H1}"); I(f"s_lshl_b32 s45, {sI}, 7"); I("s_add_u32 s45, s45, s44"); I("s_add_u32 s45, s45, 5120")
        I(f"s_lshl_b32 s40, {sI}, 8"); I("s_add_u32 s44, s44, s40")
        for n in range(nld):
            A_ = cA0 if n % 2 == 0 else cA1
            for r in range(4): I(f"v_and_b32 v{A_+r}, v{AV+n}, v{MASK[r]}")
            I(f"s_waitcnt vmcnt({nld - 1 - n})")
            c = "0" if n == 0 else f"v[{cD0}:{cD0+3}]"
            I(f"v_mfma_f32_16x16x32_bf16 v[{cD0}:{cD0+3}], v[{A_}:{A_+3}], v[{vM_+4*n}:{vM_+4*n+3}], {c}")
        stamp(8)
        I(f"v_mov_b32 v137, v{vTG}")
        for c in range(4): I(f"v_cndmask_b32_e64 v{132+c}, 0, v{cD0+c}, s[42:43]")
        dppreduce("v_add_f32", [132, 133, 134, 135], ["row_ror:8"])
        crossrow("v_add_f32", [132, 133, 134, 135], [138, 139, 140, 141], which=("v_permlane32_swap_b32",))
        I(f"v_mov_b32 v136, v135"); I(f"v_mov_b32 v135, v{vTG}")
        setexec(0x00ff00ff)
        I(f"buffer_store_dwordx4 v[132:135], v8, {SRD_WS}, s44 offen sc1")
        I(f"buffer_store_dwordx2 v[136:137], v9, {SRD_WS}, s45 offen sc1")
        I("s_mov_b64 exec, -1")
        stamp(1)
        I("s_branch L_FINISH")

    def q2():
        role[0] = 'q'
        vTG, cA0, cA1, cD0 = 147, 148, 152, 156
        a.label('L_Q2')
        stamp(11)
        masks(148, 32)
        I("s_getreg_b32 s45, hwreg(HW_REG_XCC_ID, 0, 4)")
        epoch()
        I(f"s_lshl_b32 s46, {sT32}, 4"); I("s_or_b32 s47, s46, s45")
        I("v_mov_b32 v163, s47"); I(f"s_lshl_b32 s48, {sG}, 12"); I(f"s_lshl_b32 s49, {sI}, 7"); I("s_add_u32 s48, s48, s49"); I(f"s_add_u32 s48, s48, {XT}"); I("v_mov_b32 v9, 0")
        setexec(1)
        I(f"buffer_store_dword v163, v9, {SRD_WS}, s48 offen sc1")
        I("s_mov_b64 exec, -1")
        I(f"v_mov_b32 v{vTG}, {sT32}")
        I("s_waitcnt vmcnt(21)")
        stamp(6)
        X0 = 132
        for n in range(5):
            I(f"v_lshlrev_b32 v{X0+2*n}, 16, v{XR+n}"); I(f"v_and_b32 v{X0+2*n+1}, 0xffff0000, v{XR+n}")
        I(f"v_add_f32 v148, v{X0}, v{X0+1}")
        for c in range(2, 10): I(f"v_add_f32 v148, v148, v{X0+c}")
        allreduce("v_add_f32", [148], [149])
        I(f"v_mul_f32 v148, {hex(INV640)}, v148")
        I(f"v_sub_f32 v149, v{X0}, v148"); I("v_mul_f32 v150, v149, v149")
        for c in range(1, 10): I(f"v_sub_f32 v149, v{X0+c}, v148"); I("v_fmac_f32 v150, v149, v149")
        allreduce("v_add_f32", [150], [149])
        I(f"v_mul_f32 v150, {hex(INV640)}, v150")
        rbf2(148, 150, 148, 150, 149)
        I(f"v_add_f32 v150, {hex(EPS)}, v150"); rbf(150, 150, 149)
        I("v_sqrt_f32 v150, v150"); rbf(150, 150, 149)
        I("v_rcp_f32 v151, v150")
        vZ = 48
        for h in range(2):
            I(f"v_lshlrev_b32 v{vZ+2*h}, 16, v{XQ+h}"); I(f"v_and_b32 v{vZ+2*h+1}, 0xffff0000, v{XQ+h}")
        for c in range(4): I(f"v_sub_f32 v{vZ+c}, v{vZ+c}, v148")
        rbf2(vZ, vZ+1, vZ, vZ+1, 149); rbf2(vZ+2, vZ+3, vZ+2, vZ+3, 149)
        for c in range(4):
            I(f"v_mul_f32 v152, v{vZ+c}, v151"); I(f"v_fma_f32 v153, -v152, v150, v{vZ+c}"); I(f"v_fma_f32 v{vZ+c}, v153, v151, v152")
        rbf2(vZ, vZ+1, vZ, vZ+1, 149); rbf2(vZ+2, vZ+3, vZ+2, vZ+3, 149)
        stamp(7)
        I("v_min_u32 v8, 39, v0"); I(f"s_mul_i32 s42, {sJ}, 20"); I("v_add_u32 v9, s42, v8")
        I("v_cmp_lt_u32 vcc, 19, v8"); I("v_add_u32 v10, 140, v9"); I("v_cndmask_b32 v9, v9, v10, vcc"); I("v_lshlrev_b32 v10, 3, v9"); I("v_add_u32 v10, 5120, v10"); I("v_lshlrev_b32 v9, 4, v9")
        I("v_and_b32 v8, 31, v0"); I("v_lshlrev_b32 v8, 7, v8"); I(f"s_lshl_b32 s42, {sG}, 12"); I(f"s_add_u32 s42, s42, {XT}")
        for rb in range(NRB): I(f"s_mov_b32 s{32+rb}, {H1 + 7680*rb}")
        I(f"s_and_b32 s43, {sT32}, 0x0fffffff")
        SETSZ = 6*NRB
        assert 12 + SETSZ*nset1 <= 48 or (nset1 == 1 and NRB == 8 and False)
        G1 = lambda k: 12 + SETSZ*k
        XR1 = lambda k: 160 + k
        def ld1(k):
            out = [f"buffer_load_dword v{XR1(k)}, v8, {SRD_WS}, s42 offen sc1"]
            for rb in range(NRB):
                b = G1(k) + 6*rb
                out.append(f"buffer_load_dwordx4 v[{b}:{b+3}], v9, {SRD_WS}, s{32+rb} offen sc1")
                out.append(f"buffer_load_dwordx2 v[{b+4}:{b+5}], v10, {SRD_WS}, s{32+rb} offen sc1")
            return out
        def ck1(k):
            I(f"v_lshrrev_b32 v132, 4, v{XR1(k)}"); I("v_xor_b32 v132, s43, v132")
            for rb in range(NRB):
                b = G1(k) + 6*rb
                I(f"v_bitop3_b32 v133, v{b+3}, v{b+5}, v{vTG} bitop3:0x7e"); I("v_or_b32 v132, v132, v133")
            I("v_cmp_ne_u32 vcc, 0, v132")
        def dn1(k):
            for c in range(4):
                src = (lambda rb: G1(k) + 6*rb + (c if c < 3 else 4))
                I(f"v_add_f32 v{136+c}, v{src(0)}, v{src(1)}")
                for rb in range(2, NRB): I(f"v_add_f32 v{136+c}, v{136+c}, v{src(rb)}")
            I(f"v_mov_b32 v140, v{XR1(k)}")
        if ackw1 == 'q': I("s_waitcnt vmcnt(1)")
        elif ackw1 == 'rt':
            I("s_waitcnt vmcnt(1)"); I("v_mov_b32 v147, 0"); setexec(1)
            I(f"buffer_store_dword v163, v147, {SRD_WS}, s48 offen sc1")
            I("s_mov_b64 exec, -1"); I(f"v_mov_b32 v{vTG}, {sT32}"); I("s_waitcnt vmcnt(0)")
        elif ackw1: I("s_waitcnt vmcnt(0)")
        if sl0: I(f"s_sleep {sl0}")
        stamp(8)
        setexec((1 << 40) - 1)
        ppoll(nset1, ld1, ck1, dn1, sl1, after_first=(lambda: I("s_barrier")) if kgate else None)
        I("s_mov_b64 exec, -1")
        if stamps: I(f"v_writelane_b32 {vST}, s51, 12")
        stamp(2)
        setexec((1 << 32) - 1)
        I("v_cmp_ne_u32 vcc, s47, v140")
        I("s_mov_b64 exec, -1")
        I("s_cmp_eq_u64 vcc, 0"); I(f"s_cselect_b32 {sMODE}, 1, 0")
        if not fast: I(f"s_mov_b32 {sMODE}, 0")
        rbf2(136, 137, 136, 137, 132); rbf2(138, 139, 138, 139, 132)
        I("v_add_u32 v8, 20, v0"); I("v_lshlrev_b32 v8, 2, v8")
        for c in range(4): I(f"ds_bpermute_b32 v{140+c}, v8, v{136+c}")
        I(f"v_mov_b32 v144, {sMODE}"); I(f"v_mov_b32 v8, 0"); I("v_mov_b32 v145, 0"); I("v_mov_b32 v146, 0")
        setexec(1); I(f"ds_write_b32 v8, v144 offset:{L_MODE}"); I(f"ds_write_b64 v8, v[145:146] offset:{L_ZERO}") if False else None
        I("s_mov_b64 exec, -1")
        I("s_waitcnt lgkmcnt(1)")
        for c in range(4): I(f"v_add_f32 v{140+c}, 1.0, v{140+c}")
        rbf2(140, 141, 140, 141, 132); rbf2(142, 143, 142, 143, 132)
        for c in range(4): I(f"v_mul_f32 v{140+c}, v{vZ+c}, v{140+c}")
        rbf2(140, 141, 140, 141, 132); rbf2(142, 143, 142, 143, 132)
        for c in range(4): I(f"v_add_f32 v{140+c}, v{140+c}, v{136+c}")
        for c in range(4): I(f"v_cvt_pk_bf16_f32 v{140+c}, v{140+c}, v{140+c}")
        dbgstore([140, 141, 142, 143], 3)
        I("v_lshlrev_b32 v8, 4, v0")
        setexec((1 << 20) - 1)
        I(f"ds_write_b128 v8, v[140:143] offset:{L_H16}")
        I("s_mov_b64 exec, -1")
        I(f"v_lshlrev_b32 v8, 2, v3"); I(f"v_add_u32 v8, {L_H16}, v8")
        I("s_waitcnt lgkmcnt(0)")
        HP = [(132, 133), (134, 135), (136, 137), (138, 139), (140, 141), (142, 143), (144, 145), (48, 49), (50, 51), (164, 165)]
        for n in range(10): I(f"ds_read2_b32 v[{HP[n][0]}:{HP[n][1]}], v8 offset0:{8*n} offset1:{8*n+4}")
        I("v_lshl_add_u32 v8, v2, 1, v3"); I("v_lshlrev_b32 v11, 3, v8"); I("v_lshlrev_b32 v8, 4, v8")
        I(f"s_lshl_b32 s42, {sHEAD}, 3"); I(f"s_add_u32 s43, s42, {sJ}"); I("s_mul_i32 s43, s43, 768"); I(f"s_add_u32 s43, s43, {H2}")
        I("s_waitcnt lgkmcnt(0)")
        for m in range(20):
            A_ = cA0 if m % 2 == 0 else cA1
            for r in range(4): I(f"v_and_b32 v{A_+r}, v{HP[m//2][m%2]}, v{MASK[r]}")
            c = "0" if m == 0 else f"v[{cD0}:{cD0+3}]"
            I(f"v_mfma_f32_16x16x32_bf16 v[{cD0}:{cD0+3}], v[{A_}:{A_+3}], v[{vQ+4*m}:{vQ+4*m+3}], {c}")
        I(f"v_mov_b32 v135, v{vTG}"); I(f"v_mov_b32 v137, v{vTG}")
        I("v_and_b32 v146, 31, v0"); I("v_lshrrev_b32 v138, 5, v0"); I("s_movk_i32 s44, 3072")
        I("v_lshlrev_b32 v9, 4, v146"); I("v_mad_u32_u24 v9, v138, s44, v9"); I("v_lshlrev_b32 v10, 3, v146"); I("v_mad_u32_u24 v10, v138, s44, v10")
        I(f"s_mul_i32 s42, s42, 768"); I(f"s_add_u32 s42, s42, {H2}")
        for c in range(3): I(f"v_mov_b32 v{132+c}, v{cD0+c}")
        I(f"v_mov_b32 v136, v{cD0+3}")
        setexec((1 << 32) - 1)
        store_mode([f"buffer_store_dwordx4 v[132:135], v8, {SRD_WS}, s43 offen", f"buffer_store_dwordx2 v[136:137], v11, {SRD_WS}, s43 offen offset:512"])
        I("s_mov_b64 exec, -1")
        stamp(3)
        G2 = lambda k: vQ + 24*k
        def ld2(k):
            out = []
            for n in range(4):
                b = G2(k) + 6*n
                out.append(f"buffer_load_dwordx4 v[{b}:{b+3}], v9, {SRD_WS}, s42 offen offset:{768*n} sc1")
                out.append(f"buffer_load_dwordx2 v[{b+4}:{b+5}], v10, {SRD_WS}, s42 offen offset:{768*n+512} sc1")
            return out
        def ck2(k):
            for n in range(4): I(f"v_bitop3_b32 v{138+n}, v{G2(k)+6*n+3}, v{G2(k)+6*n+5}, v{vTG} bitop3:0x7e")
            I("v_or3_b32 v138, v138, v139, v140"); I("v_or_b32 v138, v138, v141"); I("v_cmp_ne_u32 vcc, 0, v138")
        def dn2(k):
            for c in range(4):
                src = (lambda n: G2(k) + 6*n + (c if c < 3 else 4))
                I(f"v_add_f32 v{138+c}, v{src(0)}, v{src(1)}"); I(f"v_add_f32 v{142+c}, v{src(2)}, v{src(3)}")
        if ackw2 is True: I("s_waitcnt vmcnt(0)")
        elif ackw2: I(f"s_sleep {ackw2}")
        stamp(9)
        ppoll(nset2, ld2, ck2, dn2, sl2)
        if stamps: I(f"v_writelane_b32 {vST}, s51, 13")
        stamp(4)
        for c in range(4): I(f"v_add_f32 v{138+c}, v{138+c}, v{142+c}")
        crossrow("v_add_f32", [138, 139, 140, 141], [142, 143, 144, 145], which=("v_permlane32_swap_b32",))
        I("v_cvt_pk_bf16_f32 v142, v138, v139"); I("v_cvt_pk_bf16_f32 v143, v140, v141")
        dbgstore([142, 143], 4)
        I("v_lshlrev_b32 v146, 3, v146")
        I("v_mov_b32 v144, 0"); I("v_mov_b32 v145, 0"); I("v_mov_b32 v8, 0")
        setexec((1 << 32) - 1)
        I(f"ds_write_b64 v146, v[142:143] offset:{L_Q16}")
        setexec(1)
        I(f"ds_write_b64 v8, v[144:145] offset:{L_ZERO}"); I(f"ds_write_b64 v8, v[144:145] offset:{L_ZERO+8}")
        I("s_mov_b64 exec, -1")
        I("s_waitcnt lgkmcnt(0)")
        I("s_barrier")
        stamp(5)
        I("s_branch L_FINISH")

    a.label("L_KV")
    role[0] = "kv"
    vK, vV, vT, vBQ = 8, 40, 72, 92
    vD0, vD1, vA0, vA1, vDO = 112, 116, 120, 124, 128
    vP0, vP1 = 132, 133
    vW1, vB1, vW2, vB2 = 144, 146, 148, 150
    aOW, aOR, aH3, aG3, aML, aAVw, aAVr, aREDw, aREDr, aBC, aH3B, aG3B = 151, 152, 153, 154, 155, 156, 157, 158, 159, 160, 108, 109
    aBQ = [140, 141, 142, 143]
    I(f"s_lshl_b32 s40, {sHEAD}, 21"); I(f"s_lshl_b32 s41, {sJ}, 16"); I("s_add_u32 s40, s40, s41"); I(f"s_add_u32 s40, s40, {6144*256}")
    I(f"s_add_u32 s12, s{P_K}, s40"); I(f"s_addc_u32 s13, s{P_K+1}, 0"); I("s_and_b32 s13, s13, 0xffff"); I("s_mov_b32 s14, 65536")
    I("v_and_b32 v134, 3, v0"); I("v_lshlrev_b32 v134, 4, v134")
    I("v_bfe_u32 v135, v0, 2, 2"); I("v_lshl_or_b32 v134, v135, 8, v134"); I("v_lshl_or_b32 v134, v3, 6, v134")
    vKO, vVO = 134, 161
    I(f"s_mul_i32 s41, s2, {rotmul}"); I(f"s_lshl_b32 s42, {sW}, {10 if inter else 13}")
    issued = []
    def paced(text):
        bigs = [k for k, x in enumerate(issued) if x == "big"]
        depth = D if len(bigs) < Dswitch else D2
        if len(bigs) >= depth: I(f"s_waitcnt vmcnt({len(issued) - 1 - bigs[len(bigs) - depth]})")
        issued.append("big"); I(text)
    def offs(m):
        if m: I(f"s_add_u32 s41, s41, 1")
        I("s_and_b32 s43, s41, 7"); I(f"s_lshl_b32 s43, s43, {13 if inter else 10}"); I(f"s_add_u32 {sOFF[m]}, s43, s42")
    nfirst = min(D, 8) if not kgate else 0
    if not kgate:
        if b0: I("s_barrier")
        if b0 == 'mq': I("s_barrier")
    for m in range(nfirst):
        offs(m); paced(f"buffer_load_dwordx4 v[{vK+4*m}:{vK+4*m+3}], v{vKO}, {SRD_K}, {sOFF[m]} offen {nt}")
    if not kgate: stamp(12)
    for m in range(nfirst, 8): offs(m)
    I(f"s_add_u32 s16, s{P_V}, s40"); I(f"s_addc_u32 s17, s{P_V+1}, 0"); I("s_and_b32 s17, s17, 0xffff"); I("s_mov_b32 s18, 65536")
    I("v_lshlrev_b32 v161, 4, v0")
    I(f"s_cmp_ge_u32 {sI}, 10"); I("s_cselect_b32 s41, 1, 0"); I("s_mul_i32 s42, s41, 10"); I(f"s_sub_u32 s42, {sI}, s42")
    I(f"s_lshl_b32 s40, {sG}, 1"); I("s_add_u32 s40, s40, s41"); I("s_add_u32 s99, s40, 0")
    I(f"s_mul_i32 s40, s40, {256*1280}"); I("s_lshl_b32 s42, s42, 7"); I("s_add_u32 s40, s40, s42")
    I(f"s_and_b32 s41, {sG}, 3"); I("s_mul_i32 s41, s41, 10"); I(f"s_add_u32 s41, s41, {sI}"); I("s_sub_u32 s41, s41, 20"); I("s_add_u32 s100, s41, 0")
    I("s_lshl_b32 s41, s41, 7"); I(f"s_lshr_b32 s42, {sG}, 2"); I(f"s_mul_i32 s42, s42, {320*7680}"); I("s_add_u32 s42, s42, s41"); I("s_add_u32 s42, s42, 2560")
    I(f"s_cmp_lt_u32 {sI}, 20")
    I(f"s_cselect_b32 s40, s40, s42"); I(f"s_cselect_b32 s20, s{P_WO}, s{P_WM}"); I(f"s_cselect_b32 s21, s{P_WO+1}, s{P_WM+1}")
    I(f"s_mov_b32 s22, {319*7680+128}"); I(f"s_cmov_b32 s22, {255*1280+128}"); I("s_movk_i32 s43, 7680"); I("s_cmov_b32 s43, 1280"); I("s_movk_i32 s44, 40"); I("s_cmov_b32 s44, 32")
    I(f"s_cmp_lt_u32 {sI}, 30"); I("s_cselect_b32 s40, s40, 0")
    I("s_add_u32 s20, s20, s40"); I("s_addc_u32 s21, s21, 0"); I("s_and_b32 s21, s21, 0xffff")
    I("v_bfe_u32 v110, v0, 3, 1"); I("v_lshl_add_u32 v110, v110, 2, v3"); I("v_mul_lo_u32 v110, v110, s43")
    I("v_and_b32 v137, 7, v0"); I("v_lshl_add_u32 v110, v137, 4, v110")
    vTO = 110
    I(f"s_mul_i32 s45, {sW}, s44"); I("s_mul_i32 s45, s45, s43")
    I("s_lshl_b32 s46, s43, 3")
    I(f"s_cmp_lt_u32 {sI}, {0 if 'T' in skip else 30}"); I("s_cselect_b32 s45, s45, 0"); I("s_cselect_b32 s46, s46, 0"); I("s_cselect_b32 s22, s22, 0")
    I("s_cmp_eq_u32 s44, 40"); I("s_cselect_b32 s47, 0, 0x7ff00000"); I(f"v_add_u32 v111, s47, v110")
    if kgate:
        if b0: I("s_barrier")
        if b0 == 'mq': I("s_barrier")
        for n in range(kgate):
            if n == 4:
                I("s_cmp_eq_u32 s44, 40"); I("s_cselect_b32 s47, s45, 0")
                I(f"buffer_load_dwordx4 v[{vT+4*n}:{vT+4*n+3}], v111, {SRD_A}, s47 offen {ntt}")
            else:
                I(f"buffer_load_dwordx4 v[{vT+4*n}:{vT+4*n+3}], v{vTO}, {SRD_A}, s45 offen {ntt}")
                I("s_add_u32 s45, s45, s46")
    I(f"s_mul_i32 s47, {sW}, 432"); I("v_lshlrev_b32 v137, 3, v0"); I("v_add_u32 v137, s47, v137")
    for r in range(6): I(f"v_mov_b32 v{vW1+r}, 0")
    I("v_mov_b32 v138, 0")
    masks(136 + 0 if False else 120, 82)
    I("v_lshrrev_b32 v138, 2, v2")
    I("v_and_b32 v139, 3, v2")
    for m in range(1, 4): I(f"v_cmp_eq_u32 {sQ[m]}, {m}, v139")
    I("v_lshrrev_b32 v120, 3, v2"); I("v_lshrrev_b32 v121, 1, v3"); I(f"v_cmp_eq_u32 {sRV}, v120, v121")
    I("v_and_b32 v121, 7, v2"); I("v_and_b32 v122, 1, v3"); I("v_lshl_add_u32 v121, v121, 1, v122"); I("v_lshl_add_u32 v120, v120, 4, v121"); I("v_lshlrev_b32 v120, 4, v120")
    I(f"s_mul_i32 s40, {sW}, 544"); I(f"v_add_u32 v{aREDw}, s40, v120")
    I("v_and_b32 v120, 3, v0"); I("v_mul_u32_u24 v120, 1088, v120"); I("v_lshrrev_b32 v121, 2, v0"); I(f"v_lshl_add_u32 v{aREDr}, v121, 4, v120")
    I("v_and_b32 v120, 7, v0"); I("v_mul_u32_u24 v120, 544, v120"); I("v_lshrrev_b32 v121, 3, v0"); I(f"v_lshl_add_u32 v{aOR}, v121, 4, v120")
    I(f"s_lshl_b32 s41, {sW}, 6"); I(f"v_add_u32 v{aOR}, s41, v{aOR}")
    I(f"v_lshlrev_b32 v{aH3}, 4, v121"); I(f"v_add_u32 v{aH3}, s41, v{aH3}")
    I(f"v_lshrrev_b32 v{aH3B}, 1, v{aH3}")
    I(f"v_lshl_add_u32 v{aOW}, v2, 1, v3"); I(f"v_lshlrev_b32 v{aOW}, 4, v{aOW}"); I(f"v_add_u32 v{aOW}, s40, v{aOW}")
    I("v_and_b32 v120, 31, v0"); I("v_lshrrev_b32 v121, 5, v0")
    I("s_movk_i32 s41, 3072"); I(f"v_lshlrev_b32 v{aG3}, 4, v120"); I(f"v_mad_u32_u24 v{aG3}, v121, s41, v{aG3}")
    I(f"v_lshlrev_b32 v{aG3B}, 3, v120"); I(f"v_mad_u32_u24 v{aG3B}, v121, s41, v{aG3B}")
    I(f"v_lshlrev_b32 v{aML}, 2, v121"); I(f"v_add_u32 v{aML}, v{aML}, v0"); I(f"v_and_b32 v{aML}, 7, v{aML}"); I(f"v_lshlrev_b32 v{aML}, 4, v{aML}")
    I(f"v_lshlrev_b32 v{aAVw}, 4, v120"); I(f"s_lshl_b32 s41, {sW}, 9"); I(f"v_add_u32 v{aAVw}, s41, v{aAVw}")
    I(f"s_lshl_b32 s40, {sW}, 7"); I(f"s_add_u32 s40, s40, {L_AV}")
    I(f"s_mul_i32 s41, {sW}, 160"); I(f"s_lshr_b32 s42, {sG}, 2"); I("s_mul_i32 s42, s42, 1280"); I("s_add_u32 s41, s41, s42"); I(f"s_add_u32 s41, s41, {L_SC}")
    I("s_cmp_eq_u32 s44, 40"); I("s_cselect_b32 s40, s41, s40")
    I("v_bfe_u32 v120, v0, 3, 1"); I("v_lshl_add_u32 v120, v120, 2, v3"); I(f"v_lshlrev_b32 v{aAVr}, 2, v120"); I(f"v_add_u32 v{aAVr}, s40, v{aAVr}")
    I("v_min_u32 v120, 2, v3"); I(f"s_mul_i32 s40, {sI}, 3"); I("v_add_u32 v120, s40, v120"); I("v_min_u32 v120, 79, v120"); I(f"v_lshlrev_b32 v{aBC}, 4, v120")
    I("v_lshl_add_u32 v139, v3, 2, v139"); I(f"v_lshlrev_b32 v139, 4, v139"); I(f"v_add_u32 v139, {L_Q16}, v139"); I(f"v_mov_b32 v120, {L_ZERO}")
    for m in range(4): I(f"v_cmp_eq_u32 s[{82+2*m}:{83+2*m}], {m}, v138")
    for m in range(4): I(f"v_cndmask_b32_e64 v{aBQ[m]}, v120, v139, s[{82+2*m}:{83+2*m}]")
    I("v_mov_b32 v138, 0")
    def tail_load(n, pace):
        f = paced if pace else I
        if n == 4:
            I("s_cmp_eq_u32 s44, 40"); I("s_cselect_b32 s47, s45, 0")
            f(f"buffer_load_dwordx4 v[{vT+4*n}:{vT+4*n+3}], v111, {SRD_A}, s47 offen {ntt}")
        else:
            f(f"buffer_load_dwordx4 v[{vT+4*n}:{vT+4*n+3}], v{vTO}, {SRD_A}, s45 offen {ntt}")
            I("s_add_u32 s45, s45, s46")
    def tail_loads():
        for n in range(5): tail_load(n, False)
    nearly = {'kv': 0, 'ktv': 5, 'kt4v': 4, 'kt3v': 3}[torder]
    if kgate:
        nearly = kgate
        I("s_barrier")
        stamp(12)
    for m in range(nfirst, 8): paced(f"buffer_load_dwordx4 v[{vK+4*m}:{vK+4*m+3}], v{vKO}, {SRD_K}, {sOFF[m]} offen {nt}")
    if not kgate:
        for n in range(nearly): tail_load(n, True)
    for m in range(nvpre): paced(f"buffer_load_dwordx4 v[{vV+4*m}:{vV+4*m+3}], v{vVO}, {SRD_V}, {sOFF[m]} offen {nt}")
    def late_v():
        for m in range(nvpre, 8): I(f"buffer_load_dwordx4 v[{vV+4*m}:{vV+4*m+3}], v{vVO}, {SRD_V}, {sOFF[m]} offen {nt}")
    setexec((1 << 54) - 1)
    I(f"global_load_dwordx2 v[{vW1}:{vW1+1}], v137, s[{P_W1}:{P_W1+1}]")
    I(f"global_load_dwordx2 v[{vB1}:{vB1+1}], v137, s[{P_B1}:{P_B1+1}]")
    I(f"global_load_dwordx2 v[{vW2}:{vW2+1}], v137, s[{P_W2}:{P_W2+1}]")
    I("s_mov_b64 exec, -1")
    I(f"global_load_ushort v{vB2}, v138, s[{P_B2}:{P_B2+1}]")
    def tail_loads():
        for n in range(nearly, 5): tail_load(n, False)
    NLATE = 5 - nearly
    NAFTER_V = 4 + NLATE
    if 'W' in skip:
        I("s_waitcnt vmcnt(4)"); stamp(13)
    stamp(1)
    epoch()
    I("s_barrier")
    stamp(2)
    for m in range(4): I(f"ds_read_b128 v[{vBQ+4*m}:{vBQ+4*m+3}], v{aBQ[m]}")
    I(f"ds_read_b32 v138, v138 offset:{L_MODE}")
    late_v()
    if tpos == 'b1': tail_loads()
    I(f"s_waitcnt vmcnt({8 + (NAFTER_V if tpos == 'b1' else 4)})")
    I("s_waitcnt lgkmcnt(4)")
    for m in range(8):
        t = m // 4; D_ = vD0 if t == 0 else vD1
        if m in (1, 2, 3): I(f"s_waitcnt lgkmcnt({4-m})")
        c = "0" if m % 4 == 0 else f"v[{D_}:{D_+3}]"
        I(f"v_mfma_f32_16x16x32_bf16 v[{D_}:{D_+3}], v[{vK+4*m}:{vK+4*m+3}], v[{vBQ+4*(m%4)}:{vBQ+4*(m%4)+3}], {c}")
    I("s_waitcnt lgkmcnt(0)")
    I(f"v_readfirstlane_b32 {sMODE}, v138")
    I(f"s_lshl_b32 s40, {sW}, 2"); I("v_mov_b32 v138, s40")
    for k in (1, 2, 3):
        for t, D_ in ((0, vD0), (1, vD1)):
            s = 134 + t
            I(f"v_cndmask_b32_e64 v{s}, v{D_ if k == 1 else s}, v{D_+k}, {sQ[k]}")
    dppreduce("v_add_f32", [134, 135], Q2)
    rbf2(134, 135, 134, 135, 136)
    I(f"v_mul_f32 v134, {hex(SCALE)}, v134"); I(f"v_mul_f32 v135, {hex(SCALE)}, v135")
    rbf2(134, 135, 134, 135, 136)
    dbgstore([134, 135], 0)
    I("v_max_f32 v136, v134, v135")
    dppreduce("v_max_f32", [136], ["row_ror:4", "row_ror:8"]); crossrow("v_max_f32", [136], [137])
    setexec(1)
    I(f"ds_write_b32 v138, v136 offset:{L_MW}")
    I("s_mov_b64 exec, -1")
    I("v_mov_b32 v137, 0")
    I("s_waitcnt lgkmcnt(0)")
    I("s_barrier")
    I(f"ds_read_b128 v[120:123], v137 offset:{L_MW}"); I(f"ds_read_b128 v[140:143], v137 offset:{L_MW+16}")
    I("s_waitcnt lgkmcnt(0)")
    I("v_max3_f32 v136, v120, v121, v122"); I("v_max3_f32 v137, v123, v140, v141"); I("v_max3_f32 v136, v136, v142, v143"); I("v_max_f32 v136, v136, v137")
    vM = 136
    I("v_sub_f32 v134, v134, v136"); I("v_sub_f32 v135, v135, v136")
    I(f"v_mul_f32 v134, {hex(LOG2E)}, v134"); I(f"v_mul_f32 v135, {hex(LOG2E)}, v135")
    I("v_exp_f32 v134, v134"); I("v_exp_f32 v135, v135")
    I(f"v_cvt_pk_bf16_f32 v{vP0}, v134, v134"); I(f"v_cvt_pk_bf16_f32 v{vP1}, v135, v135")
    I("v_add_f32 v137, v134, v135")
    if tpos == 'p0': tail_loads()
    for m in range(8):
        P_ = vP0 if m < 4 else vP1
        for r in range(4): I(f"v_and_b32_dpp v{vK+4*m+r}, v{P_}, v{MASK[r]} row_newbcast:{4*(m%4)} {DPPM}")
    dppreduce("v_add_f32", [137], ["row_ror:4", "row_ror:8"]); crossrow("v_add_f32", [137], [139])
    setexec(1)
    I(f"ds_write_b32 v138, v137 offset:{L_LW}")
    I("s_mov_b64 exec, -1")
    vTB, vTG32, vC0 = 92, 93, 94
    uW1, uB1, uW2 = 96, 100, 104
    I(f"v_mov_b32 v{vTB}, {sT8}"); I(f"v_mov_b32 v{vTG32}, {sT32}")
    I(f"v_mov_b32 v{vC0}, {f2h(GC0)}"); I(f"v_mov_b32 v{vC0+1}, {f2h(GC0)}")
    I(f"s_lshl_b32 s40, {sHEAD}, 3"); I(f"s_add_u32 s40, s40, {sJ}"); I("s_mul_i32 s40, s40, 768"); I(f"s_add_u32 s40, s40, {H3}")
    I(f"s_lshl_b32 s41, {sHEAD}, 7"); I(f"s_lshl_b32 s42, {sJ}, 4"); I("s_add_u32 s41, s41, s42"); I(f"s_add_u32 s41, s41, {H3ML}")
    I("v_mov_b32 v140, 0")
    stamp(4)
    if tpos == 'p': tail_loads()
    for m in range(8):
        I(f"s_waitcnt vmcnt({(7-m) + (NAFTER_V if m < nvpre else NLATE)})")
        c = "0" if m == 0 else f"v[{vDO}:{vDO+3}]"
        I(f"v_mfma_f32_16x16x32_bf16 v[{vDO}:{vDO+3}], v[{vK+4*m}:{vK+4*m+3}], v[{vV+4*m}:{vV+4*m+3}], {c}")
    stamp(5)
    setexec((1 << 32) - 1)
    I(f"ds_write_b128 v{aOW}, v[{vDO}:{vDO+3}] offset:{L_OW}")
    I("s_mov_b64 exec, -1")
    I("s_waitcnt lgkmcnt(0)")
    I("s_barrier")
    I(f"ds_read_b128 v[24:27], v{aOR} offset:{L_OW}")
    I(f"ds_read_b128 v[40:43], v140 offset:{L_LW}"); I(f"ds_read_b128 v[44:47], v140 offset:{L_LW+16}")
    I(f"v_mov_b32 v31, v{vTG32}")
    I("s_waitcnt lgkmcnt(2)")
    dppreduce("v_add_f32", [24, 25, 26, 27], R8)
    I("v_mov_b32 v30, v27")
    I(f"v_mov_b32 v27, v{vTG32}")
    I("s_mov_b32 exec_lo, 0x01010101"); I("s_mov_b32 exec_hi, 0")
    store_mode([f"buffer_store_dwordx4 v[24:27], v{aH3}, {SRD_WS}, s40 offen", f"buffer_store_dwordx2 v[30:31], v{aH3B}, {SRD_WS}, s40 offen offset:512"])
    I("s_mov_b64 exec, -1")
    I(f"s_cmp_eq_u32 {sW}, 7"); I("s_cbranch_scc0 L_noml")
    I("s_waitcnt lgkmcnt(0)")
    I("v_add_f32 v40, v40, v41"); I("v_add_f32 v42, v42, v43"); I("v_add_f32 v44, v44, v45"); I("v_add_f32 v46, v46, v47")
    I("v_add_f32 v40, v40, v42"); I("v_add_f32 v44, v44, v46"); I("v_add_f32 v41, v40, v44")
    I(f"v_mov_b32 v40, v{vM}"); I("v_mov_b32 v42, 0"); I(f"v_mov_b32 v43, v{vTG32}")
    setexec(1)
    store_mode([f"buffer_store_dwordx4 v[40:43], v140, {SRD_WS}, s41 offen"])
    I("s_mov_b64 exec, -1")
    a.label("L_noml")
    stamp(6)
    I(f"s_cmp_lt_u32 {sI}, 20"); I("s_cbranch_scc0 L_NOTWO")

    I(f"s_cmp_lt_u32 {sW}, 2"); I("s_cbranch_scc0 L_wo_b4")
    I(f"s_lshl_b32 s40, s99, 1"); I(f"s_add_u32 s40, s40, {sW}"); I("s_lshl_b32 s41, s40, 7"); I(f"s_add_u32 s41, s41, {H3ML}")
    I(f"s_mul_i32 s40, s40, {8*768}"); I(f"s_add_u32 s40, s40, {H3}")
    lds_ = [f"buffer_load_dwordx4 v[40:43], v{aML}, {SRD_WS}, s41 offen sc1"]
    for n in range(4):
        lds_.append(f"buffer_load_dwordx4 v[{24+4*n}:{27+4*n}], v{aG3}, {SRD_WS}, s40 offen offset:{768*n} sc1")
        lds_.append(f"buffer_load_dwordx2 v[{44+2*n}:{45+2*n}], v{aG3B}, {SRD_WS}, s40 offen offset:{768*n+512} sc1")
    def chk3():
        I(f"v_bitop3_b32 v52, v27, v45, v{vTG32} bitop3:0x7e"); I(f"v_bitop3_b32 v53, v31, v47, v{vTG32} bitop3:0x7e")
        I(f"v_bitop3_b32 v54, v35, v49, v{vTG32} bitop3:0x7e"); I(f"v_bitop3_b32 v55, v39, v51, v{vTG32} bitop3:0x7e")
        I(f"v_xor_b32 v56, v43, v{vTG32}"); I("v_or3_b32 v52, v52, v53, v54"); I("v_or3_b32 v52, v52, v55, v56")
        I("v_cmp_ne_u32 vcc, 0, v52")
    poll(lds_, chk3)
    stamp(7)
    I("v_mov_b32 v42, v40")
    dppreduce("v_max_f32", [42], R8)
    I("v_sub_f32 v40, v40, v42"); I(f"v_mul_f32 v40, {hex(LOG2E)}, v40"); I("v_exp_f32 v40, v40")
    I("v_mul_f32 v41, v41, v40")
    dppreduce("v_add_f32", [41], R8)
    I("v_rcp_f32 v41, v41")
    I("v_mul_f32 v40, v40, v41")
    val = lambda n, c: (24 + 4*n + c) if c < 3 else (44 + 2*n)
    for c in range(4): I(f"v_mul_f32_dpp v{56+c}, v40, v{val(0, c)} row_newbcast:0 {DPPM}")
    for n in range(1, 4):
        for c in range(4): I(f"v_fmac_f32_dpp v{56+c}, v40, v{val(n, c)} row_newbcast:{n} {DPPM}")
    crossrow("v_add_f32", [56, 57, 58, 59], [60, 61, 62, 63], which=("v_permlane32_swap_b32",))
    for c in range(4): I(f"v_cvt_pk_bf16_f32 v{56+c}, v{56+c}, v{56+c}")
    dbgstore([56, 57, 58, 59], 1)
    setexec((1 << 32) - 1)
    I(f"ds_write_b128 v{aAVw}, v[56:59] offset:{L_AV}")
    I("s_mov_b64 exec, -1")
    I("s_waitcnt lgkmcnt(0)")
    a.label("L_wo_b4")
    I("s_barrier")
    a.label("L_GEMV")
    I(f"ds_read2_b32 v[24:25], v{aAVr} offset0:0 offset1:8"); I(f"ds_read2_b32 v[26:27], v{aAVr} offset0:16 offset1:24"); I(f"ds_read_b32 v28, v{aAVr} offset:128")
    I(f"s_lshr_b32 s40, {sG}, 2"); I("s_mul_i32 s40, s40, 10240"); I("s_lshl_b32 s41, s100, 8"); I("s_add_u32 s40, s40, s41"); I(f"s_add_u32 s40, s40, {RR}")
    I(f"s_mul_i32 s41, s99, 2560"); I(f"s_cmp_ge_u32 {sI}, 10"); I("s_cselect_b32 s42, 10, 0"); I(f"s_sub_u32 s42, {sI}, s42"); I("s_lshl_b32 s42, s42, 8"); I("s_add_u32 s41, s41, s42"); I(f"s_add_u32 s41, s41, {H4}")
    I("s_cmp_eq_u32 s44, 40"); I("s_cselect_b32 s40, s40, s41")
    I("v_lshrrev_b32 v20, 2, v0"); I("v_lshlrev_b32 v20, 4, v20")
    I("s_waitcnt vmcnt(0) lgkmcnt(0)")
    stamp(8)
    def gemv_step(n, first):
        A_ = vA0 if n % 2 == 0 else vA1
        for r in range(4): I(f"v_and_b32 v{A_+r}, v{24+n}, v{MASK[r]}")
        c = "0" if first else f"v[{vD0}:{vD0+3}]"
        I(f"v_mfma_f32_16x16x32_bf16 v[{vD0}:{vD0+3}], v[{A_}:{A_+3}], v[{vT+4*n}:{vT+4*n+3}], {c}")
    for n in range(4): gemv_step(n, n == 0)
    I("s_cmp_eq_u32 s44, 40"); I("s_cbranch_scc0 L_gemv4")
    gemv_step(4, False)
    a.label("L_gemv4")
    a.nop(8)
    I(f"s_mov_b64 exec, {sRV}")
    I(f"ds_write_b128 v{aREDw}, v[{vD0}:{vD0+3}] offset:{L_RED}")
    I("s_mov_b64 exec, -1")
    I("s_waitcnt lgkmcnt(0)")
    I("s_barrier")
    I(f"s_cmp_eq_u32 {sW}, 0"); I("s_cbranch_scc0 L_nopub4")
    for s_, off in enumerate((0, 256, 544, 544 + 256)): I(f"ds_read_b128 v[{24+4*s_}:{27+4*s_}], v{aREDr} offset:{L_RED + off}")
    I("s_waitcnt lgkmcnt(2)")
    for c in range(4): I(f"v_add_f32 v{24+c}, v{24+c}, v{28+c}")
    I("s_waitcnt lgkmcnt(0)")
    for c in range(4): I(f"v_add_f32 v{32+c}, v{32+c}, v{36+c}")
    for c in range(4): I(f"v_add_f32 v{24+c}, v{24+c}, v{32+c}")
    dppreduce("v_add_f32", [24, 25, 26, 27], Q2)
    for c in range(4): I(f"v_bfi_b32 v{24+c}, {sFF}, v{vTB}, v{24+c}")
    I("s_mov_b32 exec_lo, 0x11111111"); I("s_mov_b32 exec_hi, 0x11111111")
    I(f"buffer_store_dwordx4 v[24:27], v20, {SRD_WS}, s40 offen sc1")
    I("s_mov_b64 exec, -1")
    stamp(9)
    a.label("L_nopub4")
    I(f"s_cmp_lt_u32 {sI}, 27"); I("s_cbranch_scc0 L_FINISH")

    for base, raw in ((uW1, vW1), (uB1, vB1), (uW2, vW2)):
        for h in range(2):
            I(f"v_lshlrev_b32 v{base+2*h}, 16, v{raw+h}"); I(f"v_and_b32 v{base+2*h+1}, 0xffff0000, v{raw+h}")
    I(f"v_lshlrev_b32 v{vB2}, 16, v{vB2}")
    I(f"s_lshl_b32 s40, {sG}, 11"); I(f"s_add_u32 s40, s40, {BC}")
    I(f"s_mov_b32 s46, {f2h(GC1)}"); I(f"s_mov_b32 s47, {f2h(GC1)}")
    I("v_lshlrev_b32 v22, 7, v2"); I(f"s_lshl_b32 s41, {sW}, 4"); I("v_lshl_add_u32 v22, v3, 2, v22"); I("v_add_u32 v22, s41, v22")
    I("v_lshlrev_b32 v23, 7, v3"); I("v_lshl_add_u32 v23, v2, 2, v23"); I(f"v_add_u32 v23, {L_FIN}, v23")
    I("v_cmp_eq_u32 s[42:43], 1, v2"); I("v_cmp_eq_u32 s[44:45], 2, v2")
    I(f"s_mul_i32 s41, {sI}, 3"); I("v_add_u32 v21, s41, v3"); I("v_cmp_gt_u32 vcc, 80, v21")
    I(f"s_mul_i32 s41, {sG}, 80"); I("v_add_u32 v21, s41, v21"); I("v_lshlrev_b32 v21, 1, v21")
    I("s_and_b32 s48, vcc_lo, 0x00010001"); I("s_and_b32 s49, vcc_hi, 0x00000001")
    def chkbc(): I(f"v_cmp_ne_u32 vcc, v27, v{vTG32}")
    poll([f"buffer_load_dwordx4 v[24:27], v{aBC}, {SRD_WS}, s40 offen sc1"], chkbc)
    stamp(10)
    for d in range(3): I(f"v_readlane_b32 s{32+2*d}, v24, {16*d}")
    U = lambda d, h: 28 + 4*d + 2*h
    E = lambda d, h: 40 + 4*d + 2*h
    pr = lambda r: f"v[{r}:{r+1}]"
    DH = [(d, h) for d in range(3) for h in range(2)]
    for d, h in DH: I(f"v_pk_fma_f32 {pr(U(d,h))}, s[{32+2*d}:{33+2*d}], {pr(uW1+2*h)}, {pr(uB1+2*h)} op_sel_hi:[0,1,1]")
    for d, h in DH: I(f"v_pk_mul_f32 {pr(E(d,h))}, {pr(U(d,h))}, {pr(U(d,h))}")
    for d, h in DH: I(f"v_pk_fma_f32 {pr(E(d,h))}, {pr(E(d,h))}, s[46:47], {pr(vC0)}")
    for d, h in DH: I(f"v_pk_mul_f32 {pr(E(d,h))}, {pr(U(d,h))}, {pr(E(d,h))}")
    for d, h in DH:
        I(f"v_exp_f32 v{E(d,h)}, v{E(d,h)}"); I(f"v_exp_f32 v{E(d,h)+1}, v{E(d,h)+1}")
        I(f"v_pk_mul_f32 {pr(U(d,h))}, {pr(U(d,h))}, {pr(uW2+2*h)}")
    for d, h in DH: I(f"v_pk_add_f32 {pr(E(d,h))}, {pr(E(d,h))}, 1.0 op_sel_hi:[1,0]")
    for d, h in DH: I(f"v_rcp_f32 v{E(d,h)}, v{E(d,h)}"); I(f"v_rcp_f32 v{E(d,h)+1}, v{E(d,h)+1}")
    for d in range(3): I(f"v_pk_mul_f32 {pr(U(d,0))}, {pr(U(d,0))}, {pr(E(d,0))}")
    for d in range(3): I(f"v_pk_fma_f32 {pr(U(d,0))}, {pr(U(d,1))}, {pr(E(d,1))}, {pr(U(d,0))}")
    for d in range(3): I(f"v_add_f32 v{52+d}, v{U(d,0)}, v{U(d,0)+1}")
    dppreduce("v_add_f32", [52, 53, 54], R16)
    I("v_cndmask_b32_e64 v52, v52, v53, s[42:43]"); I("v_cndmask_b32_e64 v52, v52, v54, s[44:45]")
    I("s_mov_b32 exec_lo, 0x00070007"); I("s_mov_b32 exec_hi, 0x00070007")
    I(f"ds_write_b32 v22, v52 offset:{L_FIN}")
    I("s_mov_b64 exec, -1")
    I("s_waitcnt lgkmcnt(0)")
    I("s_barrier")
    I(f"s_cmp_eq_u32 {sW}, 0"); I("s_cbranch_scc0 L_FINISH")
    for _ in range(diagnop): I("s_nop 15")
    I("ds_read2_b32 v[32:33], v23 offset0:0 offset1:16")
    I("s_waitcnt lgkmcnt(0)")
    I("v_add_f32 v32, v32, v33")
    dppreduce("v_add_f32", [32], R16)
    rbf(32, 32, 33)
    I(f"v_add_f32 v32, v32, v{vB2}"); rbf(32, 32, 33)
    I("v_mul_f32 v32, v26, v32"); rbf(32, 32, 33)
    I("v_add_f32 v32, v25, v32"); I("v_cvt_pk_bf16_f32 v32, v32, v32")
    dbgstore([24, 25, 26, 32], 2)
    I("s_mov_b64 exec, s[48:49]")
    I(f"global_store_short v21, v32, s[{P_OUT}:{P_OUT+1}]")
    I("s_mov_b64 exec, -1")
    stamp(11)
    I("s_branch L_FINISH")

    a.label("L_NOTWO")
    I(f"s_cmp_lt_u32 {sI}, 30"); I("s_cbranch_scc1 L_GEMV")
    I(f"s_cmp_eq_u32 {sI}, 30"); I("s_cbranch_scc0 L_FINISH")
    I("v_mul_u32_u24 v58, 20, v0")
    I(f"global_load_dwordx4 v[60:63], v58, s[{P_X}:{P_X+1}]"); I(f"global_load_dword v64, v58, s[{P_X}:{P_X+1}] offset:16")
    I(f"s_cmp_lt_u32 {sW}, 5"); I("s_cbranch_scc0 L_imp_gate")
    I("v_and_b32 v20, 31, v0"); I(f"s_lshl_b32 s41, {sW}, 5"); I("v_add_u32 v20, s41, v20"); I("v_lshlrev_b32 v20, 4, v20")
    I("v_lshrrev_b32 v21, 5, v0"); I("s_movk_i32 s41, 20480"); I("v_mad_u32_u24 v21, v21, s41, v20")
    for n in range(4): I(f"s_mov_b32 s{32+n}, {H4 + 5120*n}")
    poll([f"buffer_load_dwordx4 v[{24+4*n}:{27+4*n}], v21, {SRD_WS}, s{32+n//2} offen offset:{2560*(n%2)} sc1" for n in range(8)],
         chk24([24+4*n for n in range(8)], vTB, 56))
    stamp(7)
    for st in (4, 2, 1):
        for n in range(st):
            for c in range(4): I(f"v_add_f32 v{24+4*n+c}, v{24+4*n+c}, v{24+4*(n+st)+c}")
    crossrow("v_add_f32", [24, 25, 26, 27], [28, 29, 30, 31], which=("v_permlane32_swap_b32",))
    setexec((1 << 32) - 1)
    I(f"ds_write_b128 v20, v[24:27] offset:{L_IA}")
    I("s_mov_b64 exec, -1")
    I("s_branch L_imp_b4")
    a.label("L_imp_gate")
    I(f"s_sub_u32 s41, {sW}, 5"); I("s_lshl_b32 s41, s41, 8"); I("v_add_u32 v20, s41, v0")
    for n in range(4):
        I(f"v_add_u32 v{66+n}, {64*n}, v20"); I(f"v_min_u32 v{66+n}, 639, v{66+n}"); I(f"v_lshlrev_b32 v{66+n}, 4, v{66+n}")
    I(f"s_mov_b32 s40, {RR}"); I(f"s_mov_b32 s41, {RR + 10240}")
    poll([f"buffer_load_dwordx4 v[{24+4*n}:{27+4*n}], v{66+n%4}, {SRD_WS}, s{40+n//4} offen sc1" for n in range(8)], chk24([24+4*n for n in range(8)], vTB, 56))
    for n in range(4):
        for c in range(4): I(f"v_add_f32 v{24+4*n+c}, v{24+4*n+c}, v{40+4*n+c}")
    for n in range(4):
        rbf2(24+4*n, 25+4*n, 24+4*n, 25+4*n, 56); rbf2(26+4*n, 27+4*n, 26+4*n, 27+4*n, 57)
    for n in range(4): I(f"ds_write_b128 v{66+n}, v[{24+4*n}:{27+4*n}] offset:{L_MODS}")
    a.label("L_imp_b4")
    I("s_waitcnt vmcnt(0) lgkmcnt(0)")
    I("s_barrier")
    I(f"s_cmp_eq_u32 {sW}, 0"); I("s_cbranch_scc0 L_FINISH")
    stamp(8)
    I("v_lshlrev_b32 v58, 1, v58")
    for n in range(5): I(f"ds_read_b64 v[{24+2*n}:{25+2*n}], v58 offset:{L_IA + 8*n}")
    for n in range(5): I(f"ds_read_b64 v[{34+2*n}:{35+2*n}], v58 offset:{L_MODS + 8*n}")
    for n in range(5): I(f"ds_read_b64 v[{66+2*n}:{67+2*n}], v58 offset:{L_MODS + 5120 + 8*n}")
    for n in range(5): I(f"ds_read_b64 v[{44+2*n}:{45+2*n}], v58 offset:{L_MODS + 2560 + 8*n}")
    REC = 96
    for n in range(5):
        I(f"v_lshlrev_b32 v{76+2*n}, 16, v{60+n}"); I(f"v_and_b32 v{77+2*n}, 0xffff0000, v{60+n}")
    I("s_waitcnt lgkmcnt(10)")
    for n in range(5): I(f"v_pk_fma_f32 v[{24+2*n}:{25+2*n}], v[{34+2*n}:{35+2*n}], v[{24+2*n}:{25+2*n}], v[{76+2*n}:{77+2*n}]")
    for c in range(10): I(f"ds_read_b32 v{REC+4*c+2}, v58 offset:{L_MODS + 7680 + 4*c}")
    def stats(X, fill):
        I(f"v_pk_add_f32 v[54:55], v[{X}:{X+1}], v[{X+2}:{X+3}]"); I(f"v_pk_mul_f32 v[56:57], v[{X}:{X+1}], v[{X}:{X+1}]")
        for n in range(1, 5):
            if n > 1: I(f"v_pk_add_f32 v[54:55], v[54:55], v[{X+2*n}:{X+2*n+1}]")
            I(f"v_pk_fma_f32 v[56:57], v[{X+2*n}:{X+2*n+1}], v[{X+2*n}:{X+2*n+1}], v[56:57]")
        I("v_add_f32 v54, v54, v55"); I("v_add_f32 v56, v56, v57")
        steps = []
        for mod in R16: steps.append([f"v_add_f32_dpp v54, v54, v54 {mod} {DPPM}", f"v_add_f32_dpp v56, v56, v56 {mod} {DPPM}"])
        for sw in ("v_permlane16_swap_b32", "v_permlane32_swap_b32"):
            steps.append(["v_mov_b32 v55, v54", "v_mov_b32 v57, v56"])
            steps.append([f"{sw} v54, v55", f"{sw} v56, v57"])
            steps.append(["v_add_f32 v54, v54, v55", "v_add_f32 v56, v56, v57"])
        fill = list(fill)
        for st in steps:
            for s in st: I(s)
            if fill: I(fill.pop(0))
        for s in fill: I(s)
        I(f"v_mul_f32 v54, {hex(INV640)}, v54")
        I(f"v_mul_f32 v56, {hex(INV640)}, v56"); I("v_fma_f32 v56, -v54, v54, v56"); I("v_max_f32 v56, 0, v56")
        I(f"v_add_f32 v56, {hex(EPS)}, v56"); I("v_rsq_f32 v55, v56")
        I("v_mul_f32 v56, v54, v55"); I("v_mov_b32 v54, v55")
    fill1 = [f"v_mov_b32 v{REC+4*c+1}, v{24+c}" for c in range(10)]
    stats(24, fill1)
    I("s_waitcnt lgkmcnt(0)")
    for n in range(5): I(f"v_pk_fma_f32 v[{24+2*n}:{25+2*n}], v[{24+2*n}:{25+2*n}], v[54:55], v[56:57] op_sel_hi:[1,0,0] neg_lo:[0,0,1] neg_hi:[0,0,1]")
    for n in range(5): I(f"v_pk_add_f32 v[{44+2*n}:{45+2*n}], v[{44+2*n}:{45+2*n}], v[{24+2*n}:{25+2*n}]")
    for n in range(5): I(f"v_pk_fma_f32 v[{24+2*n}:{25+2*n}], v[{24+2*n}:{25+2*n}], v[{66+2*n}:{67+2*n}], v[{44+2*n}:{45+2*n}]")
    fill2 = [f"v_mov_b32 v{REC+4*c+3}, v{vTG32}" for c in range(10)]
    stats(24, fill2)
    I(f"s_lshl_b32 s41, {sG}, 3"); I("v_subrev_u32 v58, s41, v0"); I("v_mul_u32_u24 v58, 160, v58")
    I(f"s_lshl_b32 s40, {sG}, 11"); I(f"s_add_u32 s40, s40, {BC}")
    I("s_mov_b64 s[42:43], 0xff")
    for c in range(10): I(f"v_fma_f32 v{REC+4*c}, v{24+c}, v54, -v56")
    I("s_lshl_b64 exec, s[42:43], s41")
    store_mode([f"buffer_store_dwordx4 v[{REC+4*c}:{REC+4*c+3}], v58, {SRD_WS}, s40 offen offset:{16*c}" for c in range(10)])
    I("s_mov_b64 exec, -1")
    stamp(9)
    I(f"s_cmp_eq_u32 {sG}, 0"); I("s_cbranch_scc0 L_FINISH")
    I(f"v_mov_b32 v58, 0"); setexec(1)
    I(f"buffer_store_dword v{vTG32}, v58, {SRD_WS}, 0 offen sc1")
    I("s_mov_b64 exec, -1")

    I("s_branch L_FINISH")
    q2()
    m2()
    a.label("L_FINISH")
    if stamps and dbgmax is not None:
        I("s_memrealtime s[50:51]"); I("s_waitcnt lgkmcnt(0)"); I(f"v_writelane_b32 {vST}, s50, 15")
        I(f"v_readlane_b32 s50, {vST}, 0"); I("s_nop 3"); I("s_not_b32 s50, s50"); I(f"v_writelane_b32 {vST}, s50, 0")
        I(f"s_min_u32 s50, {sW}, 8") ; I(f"s_cmp_eq_u32 {sW}, 9"); I("s_cselect_b32 s50, 9, s50"); I(f"s_cmp_lt_u32 {sW}, 8"); I("s_cselect_b32 s50, 0, s50")
        I(f"s_cmp_eq_u32 s50, {dict(kv=0, q=8, m=9)[dbgmax]}"); I("s_cbranch_scc1 L_dm1")
        I(f"v_readlane_b32 s48, {vST}, 0"); I(f"v_readlane_b32 s49, {vST}, 15"); I(f"v_mov_b32 {vST}, 0"); I("s_nop 3"); I(f"v_writelane_b32 {vST}, s48, 0"); I(f"v_writelane_b32 {vST}, s49, 15")
        a.label("L_dm1")
        I("v_lshlrev_b32 v166, 2, v0"); setexec(0xffff)
        I(f"global_atomic_umax v166, {vST}, s[{P_DBG}:{P_DBG+1}]")
        I("s_mov_b64 exec, -1")
    elif stamps:
        I("s_memrealtime s[50:51]"); I("s_waitcnt lgkmcnt(0)"); I(f"v_writelane_b32 {vST}, s50, 15")
        I("s_getreg_b32 s50, hwreg(HW_REG_XCC_ID, 0, 4)"); I(f"v_writelane_b32 {vST}, s50, 16")
        I("s_lshl_b32 s50, s2, 4"); I(f"s_add_u32 s50, s50, {sW}"); I("s_lshl_b32 s50, s50, 8"); I(f"s_add_u32 s50, s50, {STP}")
        I("v_lshlrev_b32 v166, 2, v0")
        I(f"buffer_store_dword {vST}, v166, {SRD_WS}, s50 offen")
    I("s_endpgm")
    for l0, l1, texts in slow:
        a.label(l0)
        for t in texts: I(t + " sc1")
        I(f"s_branch {l1}")
    a.label("L_END")
    I("s_endpgm")
    a.raw('.section .rodata,"a"'); a.raw(".p2align 6"); a.raw(f".amdhsa_kernel {NAME}_kernel")
    a.raw("  .amdhsa_next_free_vgpr 168"); a.raw("  .amdhsa_next_free_sgpr 102"); a.raw("  .amdhsa_accum_offset 168")
    a.raw("  .amdhsa_group_segment_fixed_size 0"); a.raw("  .amdhsa_kernarg_size 120"); a.raw("  .amdhsa_user_sgpr_count 2")
    a.raw("  .amdhsa_user_sgpr_kernarg_segment_ptr 1"); a.raw("  .amdhsa_system_sgpr_workgroup_id_x 1"); a.raw(".end_amdhsa_kernel")
    return a

if __name__ == "__main__":
    kw = eval("dict(" + (sys.argv[2] if len(sys.argv) > 2 else "") + ")")
    a = gen(**kw)
    open(sys.argv[1], "w").write(a.text())
    print("instructions", a.ninstr, "nops", a.nops)
```

```python
import sys, struct
from asmdsl import Asm
NAME = "adaLN_cond__sliding_block_cached__mixer_token_mlp__decode"

XT   = 0x1000
H1   = 0xA000
H2   = 0x14000
H3   = 0x54000
H3ML = 0x94000
H4   = 0x95000
RR   = 0xA0000
BC   = 0xA6000
DBG = 0x200000
STP = 0x800000
L_SC = 0
L_H16 = 2560
L_Q16 = 2880
L_MW = 3136
L_LW = 3168
L_MODE = 3200
L_ZERO = 3216
L_OW = 3328
L_AV = 7680
L_RED = 9728
L_IA = 14080
L_MODS = 16640
L_FIN = 26880
LDS_BYTES = 27648

LOG2E = 0x3fb8aa3b
SCALE = 0x3db504f3
INV640 = 0x3acccccd
EPS = 0x3727c5ac
def f2h(x): return "0x%08x" % struct.unpack("<I", struct.pack("<f", x))[0]
GC0 = -2*0.7978845608028654*1.4426950408889634
GC1 = GC0*0.044715

def gen(D=3, nt="nt", ntw="nt", ntt="nt", inter=False, stamps=False, dbg=False, fast=True, prefetch=True, LIMIT=400000,
        rotmul=5, D2=None, Dswitch=99, skip='', tpos='p', dbgmax=None, nset1=1, nset2=1, sl1=12, sl2=8, mgroups=4, pfall=False, align4k=False, b0='mq', torder='kv', nvpre=8, ackw1='rt', ackw2=True, sl0=0, kgate=0, diagnop=0, amp=None, ampk=8):
    if amp: stamps = [amp[1] + {'kv': 0, 'q': 100, 'm': 200}[amp[0]]]
    if D2 is None: D2 = D
    a = Asm(); I = a
    uid = [0]
    def lab(p):
        uid[0] += 1
        return f"L_{p}{uid[0]}"
    sB, sW, sG, sI, sHEAD, sJ, sT32, sT8, sMODE = "s2", "s3", "s4", "s5", "s6", "s7", "s8", "s9", "s10"
    SRD_K, SRD_V, SRD_A, SRD_WS = "s[12:15]", "s[16:19]", "s[20:23]", "s[28:31]"
    sOFF = [f"s{32+m}" for m in range(8)]
    P_X, P_K, P_V, P_WQ, P_WO, P_W1, P_B1, P_W2, P_B2, P_C, P_WM, P_OUT, P_DBG, P_WS = 52, 54, 56, 58, 60, 64, 66, 68, 70, 72, 74, 76, 78, 80
    sQ = [None, "s[90:91]", "s[92:93]", "s[94:95]"]
    sRV = "s[96:97]"
    sFF = "s98"
    vST = "v167"
    role = ["kv"]
    def stamp(k):
        if not stamps: return
        key = k + {"kv": 0, "q": 100, "m": 200}[role[0]]
        if stamps is not True and key not in stamps: return
        I("s_memrealtime s[50:51]"); I("s_waitcnt lgkmcnt(0)"); I(f"v_writelane_b32 {vST}, s50, {k}")
    DPPM = "row_mask:0xf bank_mask:0xf"
    def dppreduce(op, regs, mods):
        for mod in mods:
            for r in regs: I(f"{op}_dpp v{r}, v{r}, v{r} {mod} {DPPM}")
    Q2 = ["quad_perm:[1,0,3,2]", "quad_perm:[2,3,0,1]"]
    R8 = Q2 + ["row_half_mirror"]
    R16 = Q2 + ["row_ror:4", "row_ror:8"]
    def crossrow(op, regs, tmp, which=("v_permlane16_swap_b32", "v_permlane32_swap_b32")):
        for sw in which:
            for r, t in zip(regs, tmp): I(f"v_mov_b32 v{t}, v{r}")
            for r, t in zip(regs, tmp): I(f"{sw} v{r}, v{t}")
            for r, t in zip(regs, tmp): I(f"{op} v{r}, v{r}, v{t}")
    def allreduce(op, regs, tmp):
        dppreduce(op, regs, R16); crossrow(op, regs, tmp)
    def rbf(dst, src, tmp):
        I(f"v_cvt_pk_bf16_f32 v{tmp}, v{src}, v{src}"); I(f"v_lshlrev_b32 v{dst}, 16, v{tmp}")
    def rbf2(d0, d1, s0, s1, tmp):
        I(f"v_cvt_pk_bf16_f32 v{tmp}, v{s0}, v{s1}"); I(f"v_lshlrev_b32 v{d0}, 16, v{tmp}"); I(f"v_and_b32 v{d1}, 0xffff0000, v{tmp}")
    def setexec(mask):
        lo, hi = mask & 0xffffffff, mask >> 32
        if mask == (1 << 64) - 1: I("s_mov_b64 exec, -1")
        elif hi == 0 and lo <= 64: I(f"s_mov_b64 exec, {lo}")
        else: I(f"s_mov_b32 exec_lo, {hex(lo)}"); I(f"s_mov_b32 exec_hi, {hex(hi)}")
    def masks(t0, sp):
        I(f"v_and_b32 v{t0}, 7, v0"); I(f"v_lshrrev_b32 v{t0+1}, 1, v{t0}"); I(f"v_and_b32 v{t0}, 1, v{t0}")
        I(f"v_mov_b32 v{t0+2}, 0xffff"); I(f"v_mov_b32 v{t0+3}, 0xffff0000")
        I(f"v_cmp_eq_u32 vcc, 1, v{t0}")
        for r in range(4): I(f"v_cmp_eq_u32 s[{sp+2*r}:{sp+2*r+1}], {r}, v{t0+1}")
        I(f"v_cndmask_b32 v{t0+2}, v{t0+2}, v{t0+3}, vcc")
        for r in range(4): I(f"v_cndmask_b32_e64 v{4+r}, 0, v{t0+2}, s[{sp+2*r}:{sp+2*r+1}]")
    MASK = [4, 5, 6, 7]
    def poll(loads, check, cnt="s51"):
        l0, l1 = lab("poll"), lab("pdone")
        I(f"s_mov_b32 {cnt}, 0")
        a.label(l0)
        for s in loads: I(s)
        I(f"s_add_u32 {cnt}, {cnt}, 1")
        I("s_waitcnt vmcnt(0)")
        check()
        I("s_and_b64 exec, exec, vcc")
        I(f"s_cbranch_scc0 {l1}")
        I(f"s_cmp_lt_u32 {cnt}, {LIMIT}")
        I(f"s_cbranch_scc1 {l0}")
        a.label(l1)
        I("s_mov_b64 exec, -1")
    def ppoll(nset, loads, check, done, sl, cnt="s51", after_first=None):
        n = len(loads(0))
        lp = lab("pp"); ld = [lab("ppd") for _ in range(nset)]; lj = lab("ppj")
        I(f"s_mov_b32 {cnt}, 0")
        for k in range(nset):
            for s in loads(k): I(s)
            if k == 0 and after_first: after_first()
            if k < nset - 1 and sl: I(f"s_sleep {sl}")
        a.label(lp)
        for k in range(nset):
            I(f"s_waitcnt vmcnt({n*(nset-1)})")
            check(k)
            I(f"s_cbranch_vccz {ld[k]}")
            for s in loads(k): I(s)
        I(f"s_add_u32 {cnt}, {cnt}, 1"); I(f"s_cmp_lt_u32 {cnt}, {LIMIT}"); I(f"s_cbranch_scc1 {lp}")
        for k in range(nset):
            a.label(ld[k]); done(k)
            if k < nset - 1: I(f"s_branch {lj}")
        a.label(lj)
    def chk24(granules, vTb, t0):
        def f():
            for b in granules:
                for c in range(4): I(f"v_xor_b32 v{b+c}, v{vTb}, v{b+c}")
            first = True
            for b in granules:
                if first: I(f"v_or3_b32 v{t0}, v{b}, v{b+1}, v{b+2}"); I(f"v_or_b32 v{t0}, v{t0}, v{b+3}"); first = False
                else: I(f"v_or3_b32 v{t0}, v{t0}, v{b}, v{b+1}"); I(f"v_or3_b32 v{t0}, v{t0}, v{b+2}, v{b+3}")
            I(f"v_and_b32 v{t0}, 0xff, v{t0}"); I(f"v_cmp_ne_u32 vcc, 0, v{t0}")
        return f
    slow = []
    def store_mode(texts):
        if not fast:
            for t in texts: I(t + " sc1")
            return
        l0, l1 = lab("sl"), lab("sd")
        I(f"s_cmp_eq_u32 {sMODE}, 1"); I(f"s_cbranch_scc0 {l0}")
        for t in texts: I(t)
        a.label(l1)
        slow.append((l0, l1, texts))
    def dbgstore(regs, slot):
        if not dbg: return
        I("s_mul_i32 s50, s2, 0x4000"); I(f"s_add_u32 s50, s50, {DBG + slot*0x400}")
        I("v_lshlrev_b32 v166, 2, v0")
        for n, r in enumerate(regs): I(f"buffer_store_dword v{r}, v166, {SRD_WS}, s50 offen offset:{n*256}")
        I("s_waitcnt vmcnt(0)")
    def epoch():
        I("s_waitcnt lgkmcnt(0)")
        I(f"s_add_u32 {sT32}, {sT32}, 1"); I(f"s_and_b32 {sT8}, {sT32}, 0xff")

    NW = 10
    a.raw(open("header.txt").read().rstrip("\n"))
    a.raw(f"; @launch grid=(256,1,1) block=({64*NW},1,1) lds={LDS_BYTES}")
    a.raw('.amdgcn_target "amdgcn-amd-amdhsa--gfx950"')
    a.raw(".text"); a.raw(f".globl {NAME}_kernel")
    if align4k: a.raw(".p2align 12")
    a.raw(".p2align 8"); a.raw(f".type {NAME}_kernel,@function"); a.raw(f"{NAME}_kernel:")
    if stamps: I("s_memrealtime s[48:49]")
    I("s_cmp_ge_u32 s2, 256"); I("s_cbranch_scc1 L_END")
    I("s_load_dwordx16 s[52:67], s[0:1], 0")
    I("s_load_dwordx8 s[68:75], s[0:1], 64")
    I("s_load_dwordx4 s[76:79], s[0:1], 96")
    I("s_load_dwordx2 s[80:81], s[0:1], 112")
    I("v_lshrrev_b32 v1, 6, v0")
    I("v_and_b32 v0, 63, v0")
    I(f"v_readfirstlane_b32 {sW}, v1")
    I(f"s_and_b32 {sG}, s2, 7"); I(f"s_lshr_b32 {sI}, s2, 3")
    if prefetch:
        I(f"s_and_b32 s46, {sI}, {0 if pfall else 7}"); I(f"s_or_b32 s46, s46, {sW}"); I("s_cmp_eq_u32 s46, 0"); I("s_cbranch_scc0 L_nopf")
        I("s_getpc_b64 s[46:47]")
        a.label("L_PC")
        I("v_lshlrev_b32 v161, 7, v0")
        for pf in range(2):
            I(f"v_add_u32 v{162+pf}, {8192*pf}, v161"); I(f"v_min_u32 v{162+pf}, L_END-L_PC, v{162+pf}")
            I(f"global_load_dword v{164+pf}, v{162+pf}, s[46:47]")
        a.label("L_nopf")
    I(f"s_and_b32 s11, {sI}, 3"); I(f"s_lshl_b32 {sHEAD}, {sG}, 2"); I(f"s_add_u32 {sHEAD}, {sHEAD}, s11")
    I(f"s_lshr_b32 {sJ}, {sI}, 2")
    I("v_and_b32 v2, 15, v0"); I("v_lshrrev_b32 v3, 4, v0")
    I(f"s_mov_b32 {sFF}, 0xff")
    if stamps: I(f"v_mov_b32 {vST}, 0")
    I("s_mov_b32 s30, 0x100000" if (amp or not (dbg or stamps)) else "s_mov_b32 s30, 0x10000000"); I("s_mov_b32 s31, 0x20000")
    I("s_mov_b32 s15, 0x20000"); I("s_mov_b32 s19, 0x20000"); I("s_mov_b32 s23, 0x20000")
    I("s_waitcnt lgkmcnt(0)")
    if stamps: I(f"v_writelane_b32 {vST}, s48, 0")
    I(f"s_load_dword {sT32}, s[{P_WS}:{P_WS+1}], 0")
    I(f"s_mov_b32 s28, s{P_WS}"); I(f"s_and_b32 s29, s{P_WS+1}, 0xffff")
    I(f"s_cmp_lt_u32 {sW}, 8"); I("s_cbranch_scc1 L_KV")
    I(f"s_cmp_eq_u32 {sW}, 8"); I("s_cbranch_scc1 L_QW")

    role[0] = "m"
    vM_ = 12
    CR, C0, vTG, cA0, cA1, cD0, cD1 = 156, 132, 147, 148, 152, 156, 160
    rows = 640 // mgroups
    nld = rows // 8
    I(f"s_cmp_lt_u32 {sG}, {mgroups}"); I("s_cselect_b32 s40, 20, 0"); I(f"s_cmp_lt_u32 {sI}, s40"); I("s_cselect_b32 s48, 1, 0")
    I("s_cbranch_scc1 L_mgo")
    I(f"s_sub_u32 s40, {sI}, 20"); I("s_cmp_lt_u32 s40, 10"); I("s_cbranch_scc0 L_FINISH")
    a.label("L_mgo")
    I("v_mul_u32_u24 v8, 20, v0")
    I(f"global_load_dwordx4 v[{CR}:{CR+3}], v8, s[{P_C}:{P_C+1}]"); I(f"global_load_dword v{CR+4}, v8, s[{P_C}:{P_C+1}] offset:16")
    I(f"s_mul_i32 s42, {sG}, {rows*7680}"); I(f"s_lshl_b32 s43, {sI}, 7"); I("s_add_u32 s42, s42, s43")
    I("v_bfe_u32 v10, v0, 3, 1"); I("v_lshl_add_u32 v10, v10, 2, v3"); I("s_movk_i32 s43, 7680"); I("v_mul_lo_u32 v10, v10, s43")
    I("v_and_b32 v11, 7, v0"); I("v_lshl_add_u32 v10, v11, 4, v10")
    I("s_cmp_eq_u32 s48, 1"); I("s_cselect_b32 s42, s42, 0")
    I(f"s_cselect_b32 s22, {0 if 'M' in skip else (rows-1)*7680+128}, 0"); I(f"s_cselect_b32 s49, {0 if 'M' in skip else 8*7680}, 0")
    I(f"s_add_u32 s20, s{P_WM}, s42"); I(f"s_addc_u32 s21, s{P_WM+1}, 0"); I("s_and_b32 s21, s21, 0xffff")
    I("s_mov_b32 s44, 0")
    for n in range(nld):
        I(f"buffer_load_dwordx4 v[{vM_+4*n}:{vM_+4*n+3}], v10, {SRD_A}, s44 offen {ntw}")
        if n < nld - 1: I(f"s_add_u32 s44, s44, s49")
    if b0: I("s_barrier")
    if b0 == 'mq': I("s_barrier")
    I("s_branch L_M2")
    a.label("L_QW")
    role[0] = "q"
    NRB = mgroups
    vQ = 52
    XR, vTG, cA0, cA1, cD0, XQ = 142, 147, 148, 152, 156, 164
    I("v_mul_u32_u24 v8, 20, v0")
    I(f"global_load_dwordx4 v[{XR}:{XR+3}], v8, s[{P_X}:{P_X+1}]"); I(f"global_load_dword v{XR+4}, v8, s[{P_X}:{P_X+1}] offset:16")
    I(f"s_mul_i32 s42, {sJ}, 160"); I("v_min_u32 v9, 19, v0"); I("v_lshlrev_b32 v9, 3, v9"); I("v_add_u32 v9, s42, v9")
    I(f"global_load_dwordx2 v[{XQ}:{XQ+1}], v9, s[{P_X}:{P_X+1}]")
    I(f"s_mul_i32 s42, {sJ}, {80*8192}"); I(f"s_lshl_b32 s43, {sHEAD}, 8"); I("s_add_u32 s42, s42, s43")
    I(f"s_add_u32 s20, s{P_WQ}, s42"); I(f"s_addc_u32 s21, s{P_WQ+1}, 0"); I("s_and_b32 s21, s21, 0xffff"); I(f"s_mov_b32 s22, {0 if 'Q' in skip else 79*8192+256}")
    I("v_lshlrev_b32 v11, 13, v3"); I("v_lshl_add_u32 v11, v2, 4, v11")
    I("s_mov_b32 s44, 0")
    I(f"s_mov_b32 s49, {0 if 'Q' in skip else 4*8192}")
    if b0 in ('m', 'mq'): I("s_barrier")
    for m in range(20):
        I(f"buffer_load_dwordx4 v[{vQ+4*m}:{vQ+4*m+3}], v11, {SRD_A}, s44 offen {nt}")
        if m < 19: I(f"s_add_u32 s44, s44, s49")
    if b0 in ('mq', 'both'): I("s_barrier")
    I("s_branch L_Q2")
    def m2():
        role[0] = 'm'
        vTG, cA0, cA1, cD0, cD1 = 147, 148, 152, 156, 160
        a.label('L_M2')
        stamp(11)
        masks(148, 32)
        I(f"s_waitcnt vmcnt({nld})")
        stamp(6)
        for n in range(5):
            I(f"v_lshlrev_b32 v{C0+2*n}, 16, v{CR+n}"); I(f"v_and_b32 v{C0+2*n+1}, 0xffff0000, v{CR+n}")
        for half in range(0, 10, 2):
            cs = (half, half+1)
            t = {c: 148 + 4*(c % 2) for c in cs}
            for c in cs: I(f"v_mul_f32 v{t[c]}, {hex(LOG2E ^ 0x80000000)}, v{C0+c}")
            for c in cs: I(f"v_exp_f32 v{t[c]}, v{t[c]}")
            for c in cs: I(f"v_add_f32 v{t[c]}, 1.0, v{t[c]}")
            for c in cs: I(f"v_rcp_f32 v{t[c]+1}, v{t[c]}")
            for c in cs: I(f"v_mul_f32 v{t[c]+2}, v{C0+c}, v{t[c]+1}")
            for c in cs: I(f"v_fma_f32 v{t[c]+3}, -v{t[c]+2}, v{t[c]}, v{C0+c}")
            for c in cs: I(f"v_fma_f32 v{t[c]+2}, v{t[c]+3}, v{t[c]+1}, v{t[c]+2}")
            for c in cs: I(f"v_cvt_pk_bf16_f32 v{C0+c}, v{t[c]+2}, v{t[c]+2}")
        I("v_lshlrev_b32 v8, 1, v8")
        for n in range(5): I(f"ds_write_b64 v8, v[{C0+2*n}:{C0+2*n+1}] offset:{L_SC + 8*n}")
        I(f"s_mul_i32 s42, {sG}, {rows*4}"); I("v_bfe_u32 v8, v0, 3, 1"); I("v_lshl_add_u32 v8, v8, 2, v3"); I("v_lshlrev_b32 v8, 2, v8"); I("v_add_u32 v8, s42, v8")
        I("s_waitcnt lgkmcnt(0)")
        stamp(7)
        I("s_cmp_eq_u32 s48, 1"); I("s_cbranch_scc0 L_FINISH")
        AV = 112
        for n in range(0, nld, 2): I(f"ds_read2_b32 v[{AV+n}:{AV+n+1}], v8 offset0:{8*n} offset1:{8*n+8}")
        epoch()
        I(f"v_mov_b32 v{vTG}, {sT32}")
        I("v_lshrrev_b32 v9, 3, v2"); I("v_lshrrev_b32 v10, 1, v3"); I("v_cmp_eq_u32 s[42:43], v9, v10")
        I("v_and_b32 v9, 7, v2"); I("v_and_b32 v10, 1, v3"); I("v_lshl_add_u32 v9, v9, 1, v10"); I("v_lshlrev_b32 v8, 4, v9"); I("v_lshlrev_b32 v9, 3, v9")
        I(f"s_mul_i32 s44, {sG}, 7680"); I(f"s_add_u32 s44, s44, {H1}"); I(f"s_lshl_b32 s45, {sI}, 7"); I("s_add_u32 s45, s45, s44"); I("s_add_u32 s45, s45, 5120")
        I(f"s_lshl_b32 s40, {sI}, 8"); I("s_add_u32 s44, s44, s40")
        for n in range(nld):
            A_ = cA0 if n % 2 == 0 else cA1
            for r in range(4): I(f"v_and_b32 v{A_+r}, v{AV+n}, v{MASK[r]}")
            I(f"s_waitcnt vmcnt({nld - 1 - n})")
            c = "0" if n == 0 else f"v[{cD0}:{cD0+3}]"
            I(f"v_mfma_f32_16x16x32_bf16 v[{cD0}:{cD0+3}], v[{A_}:{A_+3}], v[{vM_+4*n}:{vM_+4*n+3}], {c}")
        stamp(8)
        I(f"v_mov_b32 v137, v{vTG}")
        for c in range(4): I(f"v_cndmask_b32_e64 v{132+c}, 0, v{cD0+c}, s[42:43]")
        dppreduce("v_add_f32", [132, 133, 134, 135], ["row_ror:8"])
        crossrow("v_add_f32", [132, 133, 134, 135], [138, 139, 140, 141], which=("v_permlane32_swap_b32",))
        I(f"v_mov_b32 v136, v135"); I(f"v_mov_b32 v135, v{vTG}")
        setexec(0x00ff00ff)
        I(f"buffer_store_dwordx4 v[132:135], v8, {SRD_WS}, s44 offen sc1")
        I(f"buffer_store_dwordx2 v[136:137], v9, {SRD_WS}, s45 offen sc1")
        I("s_mov_b64 exec, -1")
        stamp(1)
        I("s_branch L_FINISH")

    def q2():
        role[0] = 'q'
        vTG, cA0, cA1, cD0 = 147, 148, 152, 156
        a.label('L_Q2')
        stamp(11)
        masks(148, 32)
        I("s_getreg_b32 s45, hwreg(HW_REG_XCC_ID, 0, 4)")
        epoch()
        I(f"s_lshl_b32 s46, {sT32}, 4"); I("s_or_b32 s47, s46, s45")
        I("v_mov_b32 v163, s47"); I(f"s_lshl_b32 s48, {sG}, 12"); I(f"s_lshl_b32 s49, {sI}, 7"); I("s_add_u32 s48, s48, s49"); I(f"s_add_u32 s48, s48, {XT}"); I("v_mov_b32 v9, 0")
        setexec(1)
        I(f"buffer_store_dword v163, v9, {SRD_WS}, s48 offen sc1")
        I("s_mov_b64 exec, -1")
        I(f"v_mov_b32 v{vTG}, {sT32}")
        I("s_waitcnt vmcnt(21)")
        stamp(6)
        X0 = 132
        for n in range(5):
            I(f"v_lshlrev_b32 v{X0+2*n}, 16, v{XR+n}"); I(f"v_and_b32 v{X0+2*n+1}, 0xffff0000, v{XR+n}")
        I(f"v_add_f32 v148, v{X0}, v{X0+1}")
        for c in range(2, 10): I(f"v_add_f32 v148, v148, v{X0+c}")
        allreduce("v_add_f32", [148], [149])
        I(f"v_mul_f32 v148, {hex(INV640)}, v148")
        I(f"v_sub_f32 v149, v{X0}, v148"); I("v_mul_f32 v150, v149, v149")
        for c in range(1, 10): I(f"v_sub_f32 v149, v{X0+c}, v148"); I("v_fmac_f32 v150, v149, v149")
        allreduce("v_add_f32", [150], [149])
        I(f"v_mul_f32 v150, {hex(INV640)}, v150")
        rbf2(148, 150, 148, 150, 149)
        I(f"v_add_f32 v150, {hex(EPS)}, v150"); rbf(150, 150, 149)
        I("v_sqrt_f32 v150, v150"); rbf(150, 150, 149)
        I("v_rcp_f32 v151, v150")
        vZ = 48
        for h in range(2):
            I(f"v_lshlrev_b32 v{vZ+2*h}, 16, v{XQ+h}"); I(f"v_and_b32 v{vZ+2*h+1}, 0xffff0000, v{XQ+h}")
        for c in range(4): I(f"v_sub_f32 v{vZ+c}, v{vZ+c}, v148")
        rbf2(vZ, vZ+1, vZ, vZ+1, 149); rbf2(vZ+2, vZ+3, vZ+2, vZ+3, 149)
        for c in range(4):
            I(f"v_mul_f32 v152, v{vZ+c}, v151"); I(f"v_fma_f32 v153, -v152, v150, v{vZ+c}"); I(f"v_fma_f32 v{vZ+c}, v153, v151, v152")
        rbf2(vZ, vZ+1, vZ, vZ+1, 149); rbf2(vZ+2, vZ+3, vZ+2, vZ+3, 149)
        stamp(7)
        I("v_min_u32 v8, 39, v0"); I(f"s_mul_i32 s42, {sJ}, 20"); I("v_add_u32 v9, s42, v8")
        I("v_cmp_lt_u32 vcc, 19, v8"); I("v_add_u32 v10, 140, v9"); I("v_cndmask_b32 v9, v9, v10, vcc"); I("v_lshlrev_b32 v10, 3, v9"); I("v_add_u32 v10, 5120, v10"); I("v_lshlrev_b32 v9, 4, v9")
        I("v_and_b32 v8, 31, v0"); I("v_lshlrev_b32 v8, 7, v8"); I(f"s_lshl_b32 s42, {sG}, 12"); I(f"s_add_u32 s42, s42, {XT}")
        for rb in range(NRB): I(f"s_mov_b32 s{32+rb}, {H1 + 7680*rb}")
        I(f"s_and_b32 s43, {sT32}, 0x0fffffff")
        SETSZ = 6*NRB
        assert 12 + SETSZ*nset1 <= 48 or (nset1 == 1 and NRB == 8 and False)
        G1 = lambda k: 12 + SETSZ*k
        XR1 = lambda k: 160 + k
        def ld1(k):
            out = [f"buffer_load_dword v{XR1(k)}, v8, {SRD_WS}, s42 offen sc1"]
            for rb in range(NRB):
                b = G1(k) + 6*rb
                out.append(f"buffer_load_dwordx4 v[{b}:{b+3}], v9, {SRD_WS}, s{32+rb} offen sc1")
                out.append(f"buffer_load_dwordx2 v[{b+4}:{b+5}], v10, {SRD_WS}, s{32+rb} offen sc1")
            return out
        def ck1(k):
            I(f"v_lshrrev_b32 v132, 4, v{XR1(k)}"); I("v_xor_b32 v132, s43, v132")
            for rb in range(NRB):
                b = G1(k) + 6*rb
                I(f"v_bitop3_b32 v133, v{b+3}, v{b+5}, v{vTG} bitop3:0x7e"); I("v_or_b32 v132, v132, v133")
            I("v_cmp_ne_u32 vcc, 0, v132")
        def dn1(k):
            for c in range(4):
                src = (lambda rb: G1(k) + 6*rb + (c if c < 3 else 4))
                I(f"v_add_f32 v{136+c}, v{src(0)}, v{src(1)}")
                for rb in range(2, NRB): I(f"v_add_f32 v{136+c}, v{136+c}, v{src(rb)}")
            I(f"v_mov_b32 v140, v{XR1(k)}")
        if ackw1 == 'q': I("s_waitcnt vmcnt(1)")
        elif ackw1 == 'rt':
            I("s_waitcnt vmcnt(1)"); I("v_mov_b32 v147, 0"); setexec(1)
            I(f"buffer_store_dword v163, v147, {SRD_WS}, s48 offen sc1")
            I("s_mov_b64 exec, -1"); I(f"v_mov_b32 v{vTG}, {sT32}"); I("s_waitcnt vmcnt(0)")
        elif ackw1: I("s_waitcnt vmcnt(0)")
        if sl0: I(f"s_sleep {sl0}")
        stamp(8)
        setexec((1 << 40) - 1)
        ppoll(nset1, ld1, ck1, dn1, sl1, after_first=(lambda: I("s_barrier")) if kgate else None)
        I("s_mov_b64 exec, -1")
        if stamps and not amp: I(f"v_writelane_b32 {vST}, s51, 12")
        stamp(2)
        setexec((1 << 32) - 1)
        I("v_cmp_ne_u32 vcc, s47, v140")
        I("s_mov_b64 exec, -1")
        I("s_cmp_eq_u64 vcc, 0"); I(f"s_cselect_b32 {sMODE}, 1, 0")
        if not fast: I(f"s_mov_b32 {sMODE}, 0")
        rbf2(136, 137, 136, 137, 132); rbf2(138, 139, 138, 139, 132)
        I("v_add_u32 v8, 20, v0"); I("v_lshlrev_b32 v8, 2, v8")
        for c in range(4): I(f"ds_bpermute_b32 v{140+c}, v8, v{136+c}")
        I(f"v_mov_b32 v144, {sMODE}"); I(f"v_mov_b32 v8, 0"); I("v_mov_b32 v145, 0"); I("v_mov_b32 v146, 0")
        setexec(1); I(f"ds_write_b32 v8, v144 offset:{L_MODE}"); I(f"ds_write_b64 v8, v[145:146] offset:{L_ZERO}") if False else None
        I("s_mov_b64 exec, -1")
        I("s_waitcnt lgkmcnt(1)")
        for c in range(4): I(f"v_add_f32 v{140+c}, 1.0, v{140+c}")
        rbf2(140, 141, 140, 141, 132); rbf2(142, 143, 142, 143, 132)
        for c in range(4): I(f"v_mul_f32 v{140+c}, v{vZ+c}, v{140+c}")
        rbf2(140, 141, 140, 141, 132); rbf2(142, 143, 142, 143, 132)
        for c in range(4): I(f"v_add_f32 v{140+c}, v{140+c}, v{136+c}")
        for c in range(4): I(f"v_cvt_pk_bf16_f32 v{140+c}, v{140+c}, v{140+c}")
        dbgstore([140, 141, 142, 143], 3)
        I("v_lshlrev_b32 v8, 4, v0")
        setexec((1 << 20) - 1)
        I(f"ds_write_b128 v8, v[140:143] offset:{L_H16}")
        I("s_mov_b64 exec, -1")
        I(f"v_lshlrev_b32 v8, 2, v3"); I(f"v_add_u32 v8, {L_H16}, v8")
        I("s_waitcnt lgkmcnt(0)")
        HP = [(132, 133), (134, 135), (136, 137), (138, 139), (140, 141), (142, 143), (144, 145), (48, 49), (50, 51), (164, 165)]
        for n in range(10): I(f"ds_read2_b32 v[{HP[n][0]}:{HP[n][1]}], v8 offset0:{8*n} offset1:{8*n+4}")
        I("v_lshl_add_u32 v8, v2, 1, v3"); I("v_lshlrev_b32 v11, 3, v8"); I("v_lshlrev_b32 v8, 4, v8")
        I(f"s_lshl_b32 s42, {sHEAD}, 3"); I(f"s_add_u32 s43, s42, {sJ}"); I("s_mul_i32 s43, s43, 768"); I(f"s_add_u32 s43, s43, {H2}")
        I("s_waitcnt lgkmcnt(0)")
        for m in range(20):
            A_ = cA0 if m % 2 == 0 else cA1
            for r in range(4): I(f"v_and_b32 v{A_+r}, v{HP[m//2][m%2]}, v{MASK[r]}")
            c = "0" if m == 0 else f"v[{cD0}:{cD0+3}]"
            I(f"v_mfma_f32_16x16x32_bf16 v[{cD0}:{cD0+3}], v[{A_}:{A_+3}], v[{vQ+4*m}:{vQ+4*m+3}], {c}")
        I(f"v_mov_b32 v135, v{vTG}"); I(f"v_mov_b32 v137, v{vTG}")
        I("v_and_b32 v146, 31, v0"); I("v_lshrrev_b32 v138, 5, v0"); I("s_movk_i32 s44, 3072")
        I("v_lshlrev_b32 v9, 4, v146"); I("v_mad_u32_u24 v9, v138, s44, v9"); I("v_lshlrev_b32 v10, 3, v146"); I("v_mad_u32_u24 v10, v138, s44, v10")
        I(f"s_mul_i32 s42, s42, 768"); I(f"s_add_u32 s42, s42, {H2}")
        for c in range(3): I(f"v_mov_b32 v{132+c}, v{cD0+c}")
        I(f"v_mov_b32 v136, v{cD0+3}")
        setexec((1 << 32) - 1)
        store_mode([f"buffer_store_dwordx4 v[132:135], v8, {SRD_WS}, s43 offen", f"buffer_store_dwordx2 v[136:137], v11, {SRD_WS}, s43 offen offset:512"])
        I("s_mov_b64 exec, -1")
        stamp(3)
        G2 = lambda k: vQ + 24*k
        def ld2(k):
            out = []
            for n in range(4):
                b = G2(k) + 6*n
                out.append(f"buffer_load_dwordx4 v[{b}:{b+3}], v9, {SRD_WS}, s42 offen offset:{768*n} sc1")
                out.append(f"buffer_load_dwordx2 v[{b+4}:{b+5}], v10, {SRD_WS}, s42 offen offset:{768*n+512} sc1")
            return out
        def ck2(k):
            for n in range(4): I(f"v_bitop3_b32 v{138+n}, v{G2(k)+6*n+3}, v{G2(k)+6*n+5}, v{vTG} bitop3:0x7e")
            I("v_or3_b32 v138, v138, v139, v140"); I("v_or_b32 v138, v138, v141"); I("v_cmp_ne_u32 vcc, 0, v138")
        def dn2(k):
            for c in range(4):
                src = (lambda n: G2(k) + 6*n + (c if c < 3 else 4))
                I(f"v_add_f32 v{138+c}, v{src(0)}, v{src(1)}"); I(f"v_add_f32 v{142+c}, v{src(2)}, v{src(3)}")
        if ackw2 is True: I("s_waitcnt vmcnt(0)")
        elif ackw2: I(f"s_sleep {ackw2}")
        stamp(9)
        ppoll(nset2, ld2, ck2, dn2, sl2)
        if stamps and not amp: I(f"v_writelane_b32 {vST}, s51, 13")
        stamp(4)
        for c in range(4): I(f"v_add_f32 v{138+c}, v{138+c}, v{142+c}")
        crossrow("v_add_f32", [138, 139, 140, 141], [142, 143, 144, 145], which=("v_permlane32_swap_b32",))
        I("v_cvt_pk_bf16_f32 v142, v138, v139"); I("v_cvt_pk_bf16_f32 v143, v140, v141")
        dbgstore([142, 143], 4)
        I("v_lshlrev_b32 v146, 3, v146")
        I("v_mov_b32 v144, 0"); I("v_mov_b32 v145, 0"); I("v_mov_b32 v8, 0")
        setexec((1 << 32) - 1)
        I(f"ds_write_b64 v146, v[142:143] offset:{L_Q16}")
        setexec(1)
        I(f"ds_write_b64 v8, v[144:145] offset:{L_ZERO}"); I(f"ds_write_b64 v8, v[144:145] offset:{L_ZERO+8}")
        I("s_mov_b64 exec, -1")
        I("s_waitcnt lgkmcnt(0)")
        I("s_barrier")
        stamp(5)
        I("s_branch L_FINISH")

    a.label("L_KV")
    role[0] = "kv"
    vK, vV, vT, vBQ = 8, 40, 72, 92
    vD0, vD1, vA0, vA1, vDO = 112, 116, 120, 124, 128
    vP0, vP1 = 132, 133
    vW1, vB1, vW2, vB2 = 144, 146, 148, 150
    aOW, aOR, aH3, aG3, aML, aAVw, aAVr, aREDw, aREDr, aBC, aH3B, aG3B = 151, 152, 153, 154, 155, 156, 157, 158, 159, 160, 108, 109
    aBQ = [140, 141, 142, 143]
    I(f"s_lshl_b32 s40, {sHEAD}, 21"); I(f"s_lshl_b32 s41, {sJ}, 16"); I("s_add_u32 s40, s40, s41"); I(f"s_add_u32 s40, s40, {6144*256}")
    I(f"s_add_u32 s12, s{P_K}, s40"); I(f"s_addc_u32 s13, s{P_K+1}, 0"); I("s_and_b32 s13, s13, 0xffff"); I("s_mov_b32 s14, 65536")
    I("v_and_b32 v134, 3, v0"); I("v_lshlrev_b32 v134, 4, v134")
    I("v_bfe_u32 v135, v0, 2, 2"); I("v_lshl_or_b32 v134, v135, 8, v134"); I("v_lshl_or_b32 v134, v3, 6, v134")
    vKO, vVO = 134, 161
    I(f"s_mul_i32 s41, s2, {rotmul}"); I(f"s_lshl_b32 s42, {sW}, {10 if inter else 13}")
    issued = []
    def paced(text):
        bigs = [k for k, x in enumerate(issued) if x == "big"]
        depth = D if len(bigs) < Dswitch else D2
        if len(bigs) >= depth: I(f"s_waitcnt vmcnt({len(issued) - 1 - bigs[len(bigs) - depth]})")
        issued.append("big"); I(text)
    def offs(m):
        if m: I(f"s_add_u32 s41, s41, 1")
        I("s_and_b32 s43, s41, 7"); I(f"s_lshl_b32 s43, s43, {13 if inter else 10}"); I(f"s_add_u32 {sOFF[m]}, s43, s42")
    nfirst = min(D, 8) if not kgate else 0
    if not kgate:
        if b0: I("s_barrier")
        if b0 == 'mq': I("s_barrier")
    for m in range(nfirst):
        offs(m); paced(f"buffer_load_dwordx4 v[{vK+4*m}:{vK+4*m+3}], v{vKO}, {SRD_K}, {sOFF[m]} offen {nt}")
    if not kgate: stamp(12)
    for m in range(nfirst, 8): offs(m)
    I(f"s_add_u32 s16, s{P_V}, s40"); I(f"s_addc_u32 s17, s{P_V+1}, 0"); I("s_and_b32 s17, s17, 0xffff"); I("s_mov_b32 s18, 65536")
    I("v_lshlrev_b32 v161, 4, v0")
    I(f"s_cmp_ge_u32 {sI}, 10"); I("s_cselect_b32 s41, 1, 0"); I("s_mul_i32 s42, s41, 10"); I(f"s_sub_u32 s42, {sI}, s42")
    I(f"s_lshl_b32 s40, {sG}, 1"); I("s_add_u32 s40, s40, s41"); I("s_add_u32 s99, s40, 0")
    I(f"s_mul_i32 s40, s40, {256*1280}"); I("s_lshl_b32 s42, s42, 7"); I("s_add_u32 s40, s40, s42")
    I(f"s_and_b32 s41, {sG}, 3"); I("s_mul_i32 s41, s41, 10"); I(f"s_add_u32 s41, s41, {sI}"); I("s_sub_u32 s41, s41, 20"); I("s_add_u32 s100, s41, 0")
    I("s_lshl_b32 s41, s41, 7"); I(f"s_lshr_b32 s42, {sG}, 2"); I(f"s_mul_i32 s42, s42, {320*7680}"); I("s_add_u32 s42, s42, s41"); I("s_add_u32 s42, s42, 2560")
    I(f"s_cmp_lt_u32 {sI}, 20")
    I(f"s_cselect_b32 s40, s40, s42"); I(f"s_cselect_b32 s20, s{P_WO}, s{P_WM}"); I(f"s_cselect_b32 s21, s{P_WO+1}, s{P_WM+1}")
    I(f"s_mov_b32 s22, {319*7680+128}"); I(f"s_cmov_b32 s22, {255*1280+128}"); I("s_movk_i32 s43, 7680"); I("s_cmov_b32 s43, 1280"); I("s_movk_i32 s44, 40"); I("s_cmov_b32 s44, 32")
    I(f"s_cmp_lt_u32 {sI}, 30"); I("s_cselect_b32 s40, s40, 0")
    I("s_add_u32 s20, s20, s40"); I("s_addc_u32 s21, s21, 0"); I("s_and_b32 s21, s21, 0xffff")
    I("v_bfe_u32 v110, v0, 3, 1"); I("v_lshl_add_u32 v110, v110, 2, v3"); I("v_mul_lo_u32 v110, v110, s43")
    I("v_and_b32 v137, 7, v0"); I("v_lshl_add_u32 v110, v137, 4, v110")
    vTO = 110
    I(f"s_mul_i32 s45, {sW}, s44"); I("s_mul_i32 s45, s45, s43")
    I("s_lshl_b32 s46, s43, 3")
    I(f"s_cmp_lt_u32 {sI}, {0 if 'T' in skip else 30}"); I("s_cselect_b32 s45, s45, 0"); I("s_cselect_b32 s46, s46, 0"); I("s_cselect_b32 s22, s22, 0")
    I("s_cmp_eq_u32 s44, 40"); I("s_cselect_b32 s47, 0, 0x7ff00000"); I(f"v_add_u32 v111, s47, v110")
    if kgate:
        if b0: I("s_barrier")
        if b0 == 'mq': I("s_barrier")
        for n in range(kgate):
            if n == 4:
                I("s_cmp_eq_u32 s44, 40"); I("s_cselect_b32 s47, s45, 0")
                I(f"buffer_load_dwordx4 v[{vT+4*n}:{vT+4*n+3}], v111, {SRD_A}, s47 offen {ntt}")
            else:
                I(f"buffer_load_dwordx4 v[{vT+4*n}:{vT+4*n+3}], v{vTO}, {SRD_A}, s45 offen {ntt}")
                I("s_add_u32 s45, s45, s46")
    I(f"s_mul_i32 s47, {sW}, 432"); I("v_lshlrev_b32 v137, 3, v0"); I("v_add_u32 v137, s47, v137")
    for r in range(6): I(f"v_mov_b32 v{vW1+r}, 0")
    I("v_mov_b32 v138, 0")
    masks(136 + 0 if False else 120, 82)
    I("v_lshrrev_b32 v138, 2, v2")
    I("v_and_b32 v139, 3, v2")
    for m in range(1, 4): I(f"v_cmp_eq_u32 {sQ[m]}, {m}, v139")
    I("v_lshrrev_b32 v120, 3, v2"); I("v_lshrrev_b32 v121, 1, v3"); I(f"v_cmp_eq_u32 {sRV}, v120, v121")
    I("v_and_b32 v121, 7, v2"); I("v_and_b32 v122, 1, v3"); I("v_lshl_add_u32 v121, v121, 1, v122"); I("v_lshl_add_u32 v120, v120, 4, v121"); I("v_lshlrev_b32 v120, 4, v120")
    I(f"s_mul_i32 s40, {sW}, 544"); I(f"v_add_u32 v{aREDw}, s40, v120")
    I("v_and_b32 v120, 3, v0"); I("v_mul_u32_u24 v120, 1088, v120"); I("v_lshrrev_b32 v121, 2, v0"); I(f"v_lshl_add_u32 v{aREDr}, v121, 4, v120")
    I("v_and_b32 v120, 7, v0"); I("v_mul_u32_u24 v120, 544, v120"); I("v_lshrrev_b32 v121, 3, v0"); I(f"v_lshl_add_u32 v{aOR}, v121, 4, v120")
    I(f"s_lshl_b32 s41, {sW}, 6"); I(f"v_add_u32 v{aOR}, s41, v{aOR}")
    I(f"v_lshlrev_b32 v{aH3}, 4, v121"); I(f"v_add_u32 v{aH3}, s41, v{aH3}")
    I(f"v_lshrrev_b32 v{aH3B}, 1, v{aH3}")
    I(f"v_lshl_add_u32 v{aOW}, v2, 1, v3"); I(f"v_lshlrev_b32 v{aOW}, 4, v{aOW}"); I(f"v_add_u32 v{aOW}, s40, v{aOW}")
    I("v_and_b32 v120, 31, v0"); I("v_lshrrev_b32 v121, 5, v0")
    I("s_movk_i32 s41, 3072"); I(f"v_lshlrev_b32 v{aG3}, 4, v120"); I(f"v_mad_u32_u24 v{aG3}, v121, s41, v{aG3}")
    I(f"v_lshlrev_b32 v{aG3B}, 3, v120"); I(f"v_mad_u32_u24 v{aG3B}, v121, s41, v{aG3B}")
    I(f"v_lshlrev_b32 v{aML}, 2, v121"); I(f"v_add_u32 v{aML}, v{aML}, v0"); I(f"v_and_b32 v{aML}, 7, v{aML}"); I(f"v_lshlrev_b32 v{aML}, 4, v{aML}")
    I(f"v_lshlrev_b32 v{aAVw}, 4, v120"); I(f"s_lshl_b32 s41, {sW}, 9"); I(f"v_add_u32 v{aAVw}, s41, v{aAVw}")
    I(f"s_lshl_b32 s40, {sW}, 7"); I(f"s_add_u32 s40, s40, {L_AV}")
    I(f"s_mul_i32 s41, {sW}, 160"); I(f"s_lshr_b32 s42, {sG}, 2"); I("s_mul_i32 s42, s42, 1280"); I("s_add_u32 s41, s41, s42"); I(f"s_add_u32 s41, s41, {L_SC}")
    I("s_cmp_eq_u32 s44, 40"); I("s_cselect_b32 s40, s41, s40")
    I("v_bfe_u32 v120, v0, 3, 1"); I("v_lshl_add_u32 v120, v120, 2, v3"); I(f"v_lshlrev_b32 v{aAVr}, 2, v120"); I(f"v_add_u32 v{aAVr}, s40, v{aAVr}")
    I("v_min_u32 v120, 2, v3"); I(f"s_mul_i32 s40, {sI}, 3"); I("v_add_u32 v120, s40, v120"); I("v_min_u32 v120, 79, v120"); I(f"v_lshlrev_b32 v{aBC}, 4, v120")
    I("v_lshl_add_u32 v139, v3, 2, v139"); I(f"v_lshlrev_b32 v139, 4, v139"); I(f"v_add_u32 v139, {L_Q16}, v139"); I(f"v_mov_b32 v120, {L_ZERO}")
    for m in range(4): I(f"v_cmp_eq_u32 s[{82+2*m}:{83+2*m}], {m}, v138")
    for m in range(4): I(f"v_cndmask_b32_e64 v{aBQ[m]}, v120, v139, s[{82+2*m}:{83+2*m}]")
    I("v_mov_b32 v138, 0")
    def tail_load(n, pace):
        f = paced if pace else I
        if n == 4:
            I("s_cmp_eq_u32 s44, 40"); I("s_cselect_b32 s47, s45, 0")
            f(f"buffer_load_dwordx4 v[{vT+4*n}:{vT+4*n+3}], v111, {SRD_A}, s47 offen {ntt}")
        else:
            f(f"buffer_load_dwordx4 v[{vT+4*n}:{vT+4*n+3}], v{vTO}, {SRD_A}, s45 offen {ntt}")
            I("s_add_u32 s45, s45, s46")
    def tail_loads():
        for n in range(5): tail_load(n, False)
    nearly = {'kv': 0, 'ktv': 5, 'kt4v': 4, 'kt3v': 3}[torder]
    if kgate:
        nearly = kgate
        I("s_barrier")
        stamp(12)
    for m in range(nfirst, 8): paced(f"buffer_load_dwordx4 v[{vK+4*m}:{vK+4*m+3}], v{vKO}, {SRD_K}, {sOFF[m]} offen {nt}")
    if not kgate:
        for n in range(nearly): tail_load(n, True)
    for m in range(nvpre): paced(f"buffer_load_dwordx4 v[{vV+4*m}:{vV+4*m+3}], v{vVO}, {SRD_V}, {sOFF[m]} offen {nt}")
    def late_v():
        for m in range(nvpre, 8): I(f"buffer_load_dwordx4 v[{vV+4*m}:{vV+4*m+3}], v{vVO}, {SRD_V}, {sOFF[m]} offen {nt}")
    setexec((1 << 54) - 1)
    I(f"global_load_dwordx2 v[{vW1}:{vW1+1}], v137, s[{P_W1}:{P_W1+1}]")
    I(f"global_load_dwordx2 v[{vB1}:{vB1+1}], v137, s[{P_B1}:{P_B1+1}]")
    I(f"global_load_dwordx2 v[{vW2}:{vW2+1}], v137, s[{P_W2}:{P_W2+1}]")
    I("s_mov_b64 exec, -1")
    I(f"global_load_ushort v{vB2}, v138, s[{P_B2}:{P_B2+1}]")
    def tail_loads():
        for n in range(nearly, 5): tail_load(n, False)
    NLATE = 5 - nearly
    NAFTER_V = 4 + NLATE
    if 'W' in skip:
        I("s_waitcnt vmcnt(4)"); stamp(13)
    stamp(1)
    epoch()
    I("s_barrier")
    stamp(2)
    for m in range(4): I(f"ds_read_b128 v[{vBQ+4*m}:{vBQ+4*m+3}], v{aBQ[m]}")
    I(f"ds_read_b32 v138, v138 offset:{L_MODE}")
    late_v()
    if tpos == 'b1': tail_loads()
    I(f"s_waitcnt vmcnt({8 + (NAFTER_V if tpos == 'b1' else 4)})")
    I("s_waitcnt lgkmcnt(4)")
    for m in range(8):
        t = m // 4; D_ = vD0 if t == 0 else vD1
        if m in (1, 2, 3): I(f"s_waitcnt lgkmcnt({4-m})")
        c = "0" if m % 4 == 0 else f"v[{D_}:{D_+3}]"
        I(f"v_mfma_f32_16x16x32_bf16 v[{D_}:{D_+3}], v[{vK+4*m}:{vK+4*m+3}], v[{vBQ+4*(m%4)}:{vBQ+4*(m%4)+3}], {c}")
    I("s_waitcnt lgkmcnt(0)")
    I(f"v_readfirstlane_b32 {sMODE}, v138")
    I(f"s_lshl_b32 s40, {sW}, 2"); I("v_mov_b32 v138, s40")
    for k in (1, 2, 3):
        for t, D_ in ((0, vD0), (1, vD1)):
            s = 134 + t
            I(f"v_cndmask_b32_e64 v{s}, v{D_ if k == 1 else s}, v{D_+k}, {sQ[k]}")
    dppreduce("v_add_f32", [134, 135], Q2)
    rbf2(134, 135, 134, 135, 136)
    I(f"v_mul_f32 v134, {hex(SCALE)}, v134"); I(f"v_mul_f32 v135, {hex(SCALE)}, v135")
    rbf2(134, 135, 134, 135, 136)
    dbgstore([134, 135], 0)
    I("v_max_f32 v136, v134, v135")
    dppreduce("v_max_f32", [136], ["row_ror:4", "row_ror:8"]); crossrow("v_max_f32", [136], [137])
    setexec(1)
    I(f"ds_write_b32 v138, v136 offset:{L_MW}")
    I("s_mov_b64 exec, -1")
    I("v_mov_b32 v137, 0")
    I("s_waitcnt lgkmcnt(0)")
    I("s_barrier")
    I(f"ds_read_b128 v[120:123], v137 offset:{L_MW}"); I(f"ds_read_b128 v[140:143], v137 offset:{L_MW+16}")
    I("s_waitcnt lgkmcnt(0)")
    I("v_max3_f32 v136, v120, v121, v122"); I("v_max3_f32 v137, v123, v140, v141"); I("v_max3_f32 v136, v136, v142, v143"); I("v_max_f32 v136, v136, v137")
    vM = 136
    I("v_sub_f32 v134, v134, v136"); I("v_sub_f32 v135, v135, v136")
    I(f"v_mul_f32 v134, {hex(LOG2E)}, v134"); I(f"v_mul_f32 v135, {hex(LOG2E)}, v135")
    I("v_exp_f32 v134, v134"); I("v_exp_f32 v135, v135")
    I(f"v_cvt_pk_bf16_f32 v{vP0}, v134, v134"); I(f"v_cvt_pk_bf16_f32 v{vP1}, v135, v135")
    I("v_add_f32 v137, v134, v135")
    if tpos == 'p0': tail_loads()
    for m in range(8):
        P_ = vP0 if m < 4 else vP1
        for r in range(4): I(f"v_and_b32_dpp v{vK+4*m+r}, v{P_}, v{MASK[r]} row_newbcast:{4*(m%4)} {DPPM}")
    dppreduce("v_add_f32", [137], ["row_ror:4", "row_ror:8"]); crossrow("v_add_f32", [137], [139])
    setexec(1)
    I(f"ds_write_b32 v138, v137 offset:{L_LW}")
    I("s_mov_b64 exec, -1")
    vTB, vTG32, vC0 = 92, 93, 94
    uW1, uB1, uW2 = 96, 100, 104
    I(f"v_mov_b32 v{vTB}, {sT8}"); I(f"v_mov_b32 v{vTG32}, {sT32}")
    I(f"v_mov_b32 v{vC0}, {f2h(GC0)}"); I(f"v_mov_b32 v{vC0+1}, {f2h(GC0)}")
    I(f"s_lshl_b32 s40, {sHEAD}, 3"); I(f"s_add_u32 s40, s40, {sJ}"); I("s_mul_i32 s40, s40, 768"); I(f"s_add_u32 s40, s40, {H3}")
    I(f"s_lshl_b32 s41, {sHEAD}, 7"); I(f"s_lshl_b32 s42, {sJ}, 4"); I("s_add_u32 s41, s41, s42"); I(f"s_add_u32 s41, s41, {H3ML}")
    I("v_mov_b32 v140, 0")
    stamp(4)
    if tpos == 'p': tail_loads()
    for m in range(8):
        I(f"s_waitcnt vmcnt({(7-m) + (NAFTER_V if m < nvpre else NLATE)})")
        c = "0" if m == 0 else f"v[{vDO}:{vDO+3}]"
        I(f"v_mfma_f32_16x16x32_bf16 v[{vDO}:{vDO+3}], v[{vK+4*m}:{vK+4*m+3}], v[{vV+4*m}:{vV+4*m+3}], {c}")
    stamp(5)
    setexec((1 << 32) - 1)
    I(f"ds_write_b128 v{aOW}, v[{vDO}:{vDO+3}] offset:{L_OW}")
    I("s_mov_b64 exec, -1")
    I("s_waitcnt lgkmcnt(0)")
    I("s_barrier")
    I(f"ds_read_b128 v[24:27], v{aOR} offset:{L_OW}")
    I(f"ds_read_b128 v[40:43], v140 offset:{L_LW}"); I(f"ds_read_b128 v[44:47], v140 offset:{L_LW+16}")
    I(f"v_mov_b32 v31, v{vTG32}")
    I("s_waitcnt lgkmcnt(2)")
    dppreduce("v_add_f32", [24, 25, 26, 27], R8)
    I("v_mov_b32 v30, v27")
    I(f"v_mov_b32 v27, v{vTG32}")
    I("s_mov_b32 exec_lo, 0x01010101"); I("s_mov_b32 exec_hi, 0")
    store_mode([f"buffer_store_dwordx4 v[24:27], v{aH3}, {SRD_WS}, s40 offen", f"buffer_store_dwordx2 v[30:31], v{aH3B}, {SRD_WS}, s40 offen offset:512"])
    I("s_mov_b64 exec, -1")
    I(f"s_cmp_eq_u32 {sW}, 7"); I("s_cbranch_scc0 L_noml")
    I("s_waitcnt lgkmcnt(0)")
    I("v_add_f32 v40, v40, v41"); I("v_add_f32 v42, v42, v43"); I("v_add_f32 v44, v44, v45"); I("v_add_f32 v46, v46, v47")
    I("v_add_f32 v40, v40, v42"); I("v_add_f32 v44, v44, v46"); I("v_add_f32 v41, v40, v44")
    I(f"v_mov_b32 v40, v{vM}"); I("v_mov_b32 v42, 0"); I(f"v_mov_b32 v43, v{vTG32}")
    setexec(1)
    store_mode([f"buffer_store_dwordx4 v[40:43], v140, {SRD_WS}, s41 offen"])
    I("s_mov_b64 exec, -1")
    a.label("L_noml")
    stamp(6)
    I(f"s_cmp_lt_u32 {sI}, 20"); I("s_cbranch_scc0 L_NOTWO")

    I(f"s_cmp_lt_u32 {sW}, 2"); I("s_cbranch_scc0 L_wo_b4")
    I(f"s_lshl_b32 s40, s99, 1"); I(f"s_add_u32 s40, s40, {sW}"); I("s_lshl_b32 s41, s40, 7"); I(f"s_add_u32 s41, s41, {H3ML}")
    I(f"s_mul_i32 s40, s40, {8*768}"); I(f"s_add_u32 s40, s40, {H3}")
    lds_ = [f"buffer_load_dwordx4 v[40:43], v{aML}, {SRD_WS}, s41 offen sc1"]
    for n in range(4):
        lds_.append(f"buffer_load_dwordx4 v[{24+4*n}:{27+4*n}], v{aG3}, {SRD_WS}, s40 offen offset:{768*n} sc1")
        lds_.append(f"buffer_load_dwordx2 v[{44+2*n}:{45+2*n}], v{aG3B}, {SRD_WS}, s40 offen offset:{768*n+512} sc1")
    def chk3():
        I(f"v_bitop3_b32 v52, v27, v45, v{vTG32} bitop3:0x7e"); I(f"v_bitop3_b32 v53, v31, v47, v{vTG32} bitop3:0x7e")
        I(f"v_bitop3_b32 v54, v35, v49, v{vTG32} bitop3:0x7e"); I(f"v_bitop3_b32 v55, v39, v51, v{vTG32} bitop3:0x7e")
        I(f"v_xor_b32 v56, v43, v{vTG32}"); I("v_or3_b32 v52, v52, v53, v54"); I("v_or3_b32 v52, v52, v55, v56")
        I("v_cmp_ne_u32 vcc, 0, v52")
    poll(lds_, chk3)
    stamp(7)
    I("v_mov_b32 v42, v40")
    dppreduce("v_max_f32", [42], R8)
    I("v_sub_f32 v40, v40, v42"); I(f"v_mul_f32 v40, {hex(LOG2E)}, v40"); I("v_exp_f32 v40, v40")
    I("v_mul_f32 v41, v41, v40")
    dppreduce("v_add_f32", [41], R8)
    I("v_rcp_f32 v41, v41")
    I("v_mul_f32 v40, v40, v41")
    val = lambda n, c: (24 + 4*n + c) if c < 3 else (44 + 2*n)
    for c in range(4): I(f"v_mul_f32_dpp v{56+c}, v40, v{val(0, c)} row_newbcast:0 {DPPM}")
    for n in range(1, 4):
        for c in range(4): I(f"v_fmac_f32_dpp v{56+c}, v40, v{val(n, c)} row_newbcast:{n} {DPPM}")
    crossrow("v_add_f32", [56, 57, 58, 59], [60, 61, 62, 63], which=("v_permlane32_swap_b32",))
    for c in range(4): I(f"v_cvt_pk_bf16_f32 v{56+c}, v{56+c}, v{56+c}")
    dbgstore([56, 57, 58, 59], 1)
    setexec((1 << 32) - 1)
    I(f"ds_write_b128 v{aAVw}, v[56:59] offset:{L_AV}")
    I("s_mov_b64 exec, -1")
    I("s_waitcnt lgkmcnt(0)")
    a.label("L_wo_b4")
    I("s_barrier")
    a.label("L_GEMV")
    I(f"ds_read2_b32 v[24:25], v{aAVr} offset0:0 offset1:8"); I(f"ds_read2_b32 v[26:27], v{aAVr} offset0:16 offset1:24"); I(f"ds_read_b32 v28, v{aAVr} offset:128")
    I(f"s_lshr_b32 s40, {sG}, 2"); I("s_mul_i32 s40, s40, 10240"); I("s_lshl_b32 s41, s100, 8"); I("s_add_u32 s40, s40, s41"); I(f"s_add_u32 s40, s40, {RR}")
    I(f"s_mul_i32 s41, s99, 2560"); I(f"s_cmp_ge_u32 {sI}, 10"); I("s_cselect_b32 s42, 10, 0"); I(f"s_sub_u32 s42, {sI}, s42"); I("s_lshl_b32 s42, s42, 8"); I("s_add_u32 s41, s41, s42"); I(f"s_add_u32 s41, s41, {H4}")
    I("s_cmp_eq_u32 s44, 40"); I("s_cselect_b32 s40, s40, s41")
    I("v_lshrrev_b32 v20, 2, v0"); I("v_lshlrev_b32 v20, 4, v20")
    I("s_waitcnt vmcnt(0) lgkmcnt(0)")
    stamp(8)
    def gemv_step(n, first):
        A_ = vA0 if n % 2 == 0 else vA1
        for r in range(4): I(f"v_and_b32 v{A_+r}, v{24+n}, v{MASK[r]}")
        c = "0" if first else f"v[{vD0}:{vD0+3}]"
        I(f"v_mfma_f32_16x16x32_bf16 v[{vD0}:{vD0+3}], v[{A_}:{A_+3}], v[{vT+4*n}:{vT+4*n+3}], {c}")
    for n in range(4): gemv_step(n, n == 0)
    I("s_cmp_eq_u32 s44, 40"); I("s_cbranch_scc0 L_gemv4")
    gemv_step(4, False)
    a.label("L_gemv4")
    a.nop(8)
    I(f"s_mov_b64 exec, {sRV}")
    I(f"ds_write_b128 v{aREDw}, v[{vD0}:{vD0+3}] offset:{L_RED}")
    I("s_mov_b64 exec, -1")
    I("s_waitcnt lgkmcnt(0)")
    I("s_barrier")
    I(f"s_cmp_eq_u32 {sW}, 0"); I("s_cbranch_scc0 L_nopub4")
    for s_, off in enumerate((0, 256, 544, 544 + 256)): I(f"ds_read_b128 v[{24+4*s_}:{27+4*s_}], v{aREDr} offset:{L_RED + off}")
    I("s_waitcnt lgkmcnt(2)")
    for c in range(4): I(f"v_add_f32 v{24+c}, v{24+c}, v{28+c}")
    I("s_waitcnt lgkmcnt(0)")
    for c in range(4): I(f"v_add_f32 v{32+c}, v{32+c}, v{36+c}")
    for c in range(4): I(f"v_add_f32 v{24+c}, v{24+c}, v{32+c}")
    dppreduce("v_add_f32", [24, 25, 26, 27], Q2)
    for c in range(4): I(f"v_bfi_b32 v{24+c}, {sFF}, v{vTB}, v{24+c}")
    I("s_mov_b32 exec_lo, 0x11111111"); I("s_mov_b32 exec_hi, 0x11111111")
    I(f"buffer_store_dwordx4 v[24:27], v20, {SRD_WS}, s40 offen sc1")
    I("s_mov_b64 exec, -1")
    stamp(9)
    a.label("L_nopub4")
    I(f"s_cmp_lt_u32 {sI}, 27"); I("s_cbranch_scc0 L_FINISH")

    for base, raw in ((uW1, vW1), (uB1, vB1), (uW2, vW2)):
        for h in range(2):
            I(f"v_lshlrev_b32 v{base+2*h}, 16, v{raw+h}"); I(f"v_and_b32 v{base+2*h+1}, 0xffff0000, v{raw+h}")
    I(f"v_lshlrev_b32 v{vB2}, 16, v{vB2}")
    I(f"s_lshl_b32 s40, {sG}, 11"); I(f"s_add_u32 s40, s40, {BC}")
    I(f"s_mov_b32 s46, {f2h(GC1)}"); I(f"s_mov_b32 s47, {f2h(GC1)}")
    I("v_lshlrev_b32 v22, 7, v2"); I(f"s_lshl_b32 s41, {sW}, 4"); I("v_lshl_add_u32 v22, v3, 2, v22"); I("v_add_u32 v22, s41, v22")
    I("v_lshlrev_b32 v23, 7, v3"); I("v_lshl_add_u32 v23, v2, 2, v23"); I(f"v_add_u32 v23, {L_FIN}, v23")
    I("v_cmp_eq_u32 s[42:43], 1, v2"); I("v_cmp_eq_u32 s[44:45], 2, v2")
    I(f"s_mul_i32 s41, {sI}, 3"); I("v_add_u32 v21, s41, v3"); I("v_cmp_gt_u32 vcc, 80, v21")
    I(f"s_mul_i32 s41, {sG}, 80"); I("v_add_u32 v21, s41, v21"); I("v_lshlrev_b32 v21, 1, v21")
    I("s_and_b32 s48, vcc_lo, 0x00010001"); I("s_and_b32 s49, vcc_hi, 0x00000001")
    def chkbc(): I(f"v_cmp_ne_u32 vcc, v27, v{vTG32}")
    poll([f"buffer_load_dwordx4 v[24:27], v{aBC}, {SRD_WS}, s40 offen sc1"], chkbc)
    stamp(10)
    for d in range(3): I(f"v_readlane_b32 s{32+2*d}, v24, {16*d}")
    U = lambda d, h: 28 + 4*d + 2*h
    E = lambda d, h: 40 + 4*d + 2*h
    pr = lambda r: f"v[{r}:{r+1}]"
    DH = [(d, h) for d in range(3) for h in range(2)]
    for d, h in DH: I(f"v_pk_fma_f32 {pr(U(d,h))}, s[{32+2*d}:{33+2*d}], {pr(uW1+2*h)}, {pr(uB1+2*h)} op_sel_hi:[0,1,1]")
    for d, h in DH: I(f"v_pk_mul_f32 {pr(E(d,h))}, {pr(U(d,h))}, {pr(U(d,h))}")
    for d, h in DH: I(f"v_pk_fma_f32 {pr(E(d,h))}, {pr(E(d,h))}, s[46:47], {pr(vC0)}")
    for d, h in DH: I(f"v_pk_mul_f32 {pr(E(d,h))}, {pr(U(d,h))}, {pr(E(d,h))}")
    for d, h in DH:
        I(f"v_exp_f32 v{E(d,h)}, v{E(d,h)}"); I(f"v_exp_f32 v{E(d,h)+1}, v{E(d,h)+1}")
        I(f"v_pk_mul_f32 {pr(U(d,h))}, {pr(U(d,h))}, {pr(uW2+2*h)}")
    for d, h in DH: I(f"v_pk_add_f32 {pr(E(d,h))}, {pr(E(d,h))}, 1.0 op_sel_hi:[1,0]")
    for d, h in DH: I(f"v_rcp_f32 v{E(d,h)}, v{E(d,h)}"); I(f"v_rcp_f32 v{E(d,h)+1}, v{E(d,h)+1}")
    for d in range(3): I(f"v_pk_mul_f32 {pr(U(d,0))}, {pr(U(d,0))}, {pr(E(d,0))}")
    for d in range(3): I(f"v_pk_fma_f32 {pr(U(d,0))}, {pr(U(d,1))}, {pr(E(d,1))}, {pr(U(d,0))}")
    for d in range(3): I(f"v_add_f32 v{52+d}, v{U(d,0)}, v{U(d,0)+1}")
    dppreduce("v_add_f32", [52, 53, 54], R16)
    I("v_cndmask_b32_e64 v52, v52, v53, s[42:43]"); I("v_cndmask_b32_e64 v52, v52, v54, s[44:45]")
    I("s_mov_b32 exec_lo, 0x00070007"); I("s_mov_b32 exec_hi, 0x00070007")
    I(f"ds_write_b32 v22, v52 offset:{L_FIN}")
    I("s_mov_b64 exec, -1")
    I("s_waitcnt lgkmcnt(0)")
    I("s_barrier")
    I(f"s_cmp_eq_u32 {sW}, 0"); I("s_cbranch_scc0 L_FINISH")
    for _ in range(diagnop): I("s_nop 15")
    I("ds_read2_b32 v[32:33], v23 offset0:0 offset1:16")
    I("s_waitcnt lgkmcnt(0)")
    I("v_add_f32 v32, v32, v33")
    dppreduce("v_add_f32", [32], R16)
    rbf(32, 32, 33)
    I(f"v_add_f32 v32, v32, v{vB2}"); rbf(32, 32, 33)
    I("v_mul_f32 v32, v26, v32"); rbf(32, 32, 33)
    I("v_add_f32 v32, v25, v32"); I("v_cvt_pk_bf16_f32 v32, v32, v32")
    dbgstore([24, 25, 26, 32], 2)
    I("s_mov_b64 exec, s[48:49]")
    I(f"global_store_short v21, v32, s[{P_OUT}:{P_OUT+1}]")
    I("s_mov_b64 exec, -1")
    stamp(11)
    I("s_branch L_FINISH")

    a.label("L_NOTWO")
    I(f"s_cmp_lt_u32 {sI}, 30"); I("s_cbranch_scc1 L_GEMV")
    I(f"s_cmp_eq_u32 {sI}, 30"); I("s_cbranch_scc0 L_FINISH")
    I("v_mul_u32_u24 v58, 20, v0")
    I(f"global_load_dwordx4 v[60:63], v58, s[{P_X}:{P_X+1}]"); I(f"global_load_dword v64, v58, s[{P_X}:{P_X+1}] offset:16")
    I(f"s_cmp_lt_u32 {sW}, 5"); I("s_cbranch_scc0 L_imp_gate")
    I("v_and_b32 v20, 31, v0"); I(f"s_lshl_b32 s41, {sW}, 5"); I("v_add_u32 v20, s41, v20"); I("v_lshlrev_b32 v20, 4, v20")
    I("v_lshrrev_b32 v21, 5, v0"); I("s_movk_i32 s41, 20480"); I("v_mad_u32_u24 v21, v21, s41, v20")
    for n in range(4): I(f"s_mov_b32 s{32+n}, {H4 + 5120*n}")
    poll([f"buffer_load_dwordx4 v[{24+4*n}:{27+4*n}], v21, {SRD_WS}, s{32+n//2} offen offset:{2560*(n%2)} sc1" for n in range(8)],
         chk24([24+4*n for n in range(8)], vTB, 56))
    stamp(7)
    for st in (4, 2, 1):
        for n in range(st):
            for c in range(4): I(f"v_add_f32 v{24+4*n+c}, v{24+4*n+c}, v{24+4*(n+st)+c}")
    crossrow("v_add_f32", [24, 25, 26, 27], [28, 29, 30, 31], which=("v_permlane32_swap_b32",))
    setexec((1 << 32) - 1)
    I(f"ds_write_b128 v20, v[24:27] offset:{L_IA}")
    I("s_mov_b64 exec, -1")
    I("s_branch L_imp_b4")
    a.label("L_imp_gate")
    I(f"s_sub_u32 s41, {sW}, 5"); I("s_lshl_b32 s41, s41, 8"); I("v_add_u32 v20, s41, v0")
    for n in range(4):
        I(f"v_add_u32 v{66+n}, {64*n}, v20"); I(f"v_min_u32 v{66+n}, 639, v{66+n}"); I(f"v_lshlrev_b32 v{66+n}, 4, v{66+n}")
    I(f"s_mov_b32 s40, {RR}"); I(f"s_mov_b32 s41, {RR + 10240}")
    poll([f"buffer_load_dwordx4 v[{24+4*n}:{27+4*n}], v{66+n%4}, {SRD_WS}, s{40+n//4} offen sc1" for n in range(8)], chk24([24+4*n for n in range(8)], vTB, 56))
    for n in range(4):
        for c in range(4): I(f"v_add_f32 v{24+4*n+c}, v{24+4*n+c}, v{40+4*n+c}")
    for n in range(4):
        rbf2(24+4*n, 25+4*n, 24+4*n, 25+4*n, 56); rbf2(26+4*n, 27+4*n, 26+4*n, 27+4*n, 57)
    for n in range(4): I(f"ds_write_b128 v{66+n}, v[{24+4*n}:{27+4*n}] offset:{L_MODS}")
    a.label("L_imp_b4")
    I("s_waitcnt vmcnt(0) lgkmcnt(0)")
    I("s_barrier")
    I(f"s_cmp_eq_u32 {sW}, 0"); I("s_cbranch_scc0 L_FINISH")
    stamp(8)
    I("v_lshlrev_b32 v58, 1, v58")
    for n in range(5): I(f"ds_read_b64 v[{24+2*n}:{25+2*n}], v58 offset:{L_IA + 8*n}")
    for n in range(5): I(f"ds_read_b64 v[{34+2*n}:{35+2*n}], v58 offset:{L_MODS + 8*n}")
    for n in range(5): I(f"ds_read_b64 v[{66+2*n}:{67+2*n}], v58 offset:{L_MODS + 5120 + 8*n}")
    for n in range(5): I(f"ds_read_b64 v[{44+2*n}:{45+2*n}], v58 offset:{L_MODS + 2560 + 8*n}")
    REC = 96
    for n in range(5):
        I(f"v_lshlrev_b32 v{76+2*n}, 16, v{60+n}"); I(f"v_and_b32 v{77+2*n}, 0xffff0000, v{60+n}")
    I("s_waitcnt lgkmcnt(10)")
    for n in range(5): I(f"v_pk_fma_f32 v[{24+2*n}:{25+2*n}], v[{34+2*n}:{35+2*n}], v[{24+2*n}:{25+2*n}], v[{76+2*n}:{77+2*n}]")
    for c in range(10): I(f"ds_read_b32 v{REC+4*c+2}, v58 offset:{L_MODS + 7680 + 4*c}")
    def stats(X, fill):
        I(f"v_pk_add_f32 v[54:55], v[{X}:{X+1}], v[{X+2}:{X+3}]"); I(f"v_pk_mul_f32 v[56:57], v[{X}:{X+1}], v[{X}:{X+1}]")
        for n in range(1, 5):
            if n > 1: I(f"v_pk_add_f32 v[54:55], v[54:55], v[{X+2*n}:{X+2*n+1}]")
            I(f"v_pk_fma_f32 v[56:57], v[{X+2*n}:{X+2*n+1}], v[{X+2*n}:{X+2*n+1}], v[56:57]")
        I("v_add_f32 v54, v54, v55"); I("v_add_f32 v56, v56, v57")
        steps = []
        for mod in R16: steps.append([f"v_add_f32_dpp v54, v54, v54 {mod} {DPPM}", f"v_add_f32_dpp v56, v56, v56 {mod} {DPPM}"])
        for sw in ("v_permlane16_swap_b32", "v_permlane32_swap_b32"):
            steps.append(["v_mov_b32 v55, v54", "v_mov_b32 v57, v56"])
            steps.append([f"{sw} v54, v55", f"{sw} v56, v57"])
            steps.append(["v_add_f32 v54, v54, v55", "v_add_f32 v56, v56, v57"])
        fill = list(fill)
        for st in steps:
            for s in st: I(s)
            if fill: I(fill.pop(0))
        for s in fill: I(s)
        I(f"v_mul_f32 v54, {hex(INV640)}, v54")
        I(f"v_mul_f32 v56, {hex(INV640)}, v56"); I("v_fma_f32 v56, -v54, v54, v56"); I("v_max_f32 v56, 0, v56")
        I(f"v_add_f32 v56, {hex(EPS)}, v56"); I("v_rsq_f32 v55, v56")
        I("v_mul_f32 v56, v54, v55"); I("v_mov_b32 v54, v55")
    fill1 = [f"v_mov_b32 v{REC+4*c+1}, v{24+c}" for c in range(10)]
    stats(24, fill1)
    I("s_waitcnt lgkmcnt(0)")
    for n in range(5): I(f"v_pk_fma_f32 v[{24+2*n}:{25+2*n}], v[{24+2*n}:{25+2*n}], v[54:55], v[56:57] op_sel_hi:[1,0,0] neg_lo:[0,0,1] neg_hi:[0,0,1]")
    for n in range(5): I(f"v_pk_add_f32 v[{44+2*n}:{45+2*n}], v[{44+2*n}:{45+2*n}], v[{24+2*n}:{25+2*n}]")
    for n in range(5): I(f"v_pk_fma_f32 v[{24+2*n}:{25+2*n}], v[{24+2*n}:{25+2*n}], v[{66+2*n}:{67+2*n}], v[{44+2*n}:{45+2*n}]")
    fill2 = [f"v_mov_b32 v{REC+4*c+3}, v{vTG32}" for c in range(10)]
    stats(24, fill2)
    I(f"s_lshl_b32 s41, {sG}, 3"); I("v_subrev_u32 v58, s41, v0"); I("v_mul_u32_u24 v58, 160, v58")
    I(f"s_lshl_b32 s40, {sG}, 11"); I(f"s_add_u32 s40, s40, {BC}")
    I("s_mov_b64 s[42:43], 0xff")
    for c in range(10): I(f"v_fma_f32 v{REC+4*c}, v{24+c}, v54, -v56")
    I("s_lshl_b64 exec, s[42:43], s41")
    store_mode([f"buffer_store_dwordx4 v[{REC+4*c}:{REC+4*c+3}], v58, {SRD_WS}, s40 offen offset:{16*c}" for c in range(10)])
    I("s_mov_b64 exec, -1")
    stamp(9)
    I(f"s_cmp_eq_u32 {sG}, 0"); I("s_cbranch_scc0 L_FINISH")
    I(f"v_mov_b32 v58, 0"); setexec(1)
    I(f"buffer_store_dword v{vTG32}, v58, {SRD_WS}, 0 offen sc1")
    I("s_mov_b64 exec, -1")

    I("s_branch L_FINISH")
    q2()
    m2()
    a.label("L_FINISH")
    if amp:
        I(f"v_readlane_b32 s40, {vST}, {amp[1]}"); I(f"v_readlane_b32 s41, {vST}, 0"); I("s_nop 3")
        I("s_cmp_eq_u32 s40, 0"); I("s_cbranch_scc1 L_ampdone")
        I("s_sub_u32 s40, s40, s41"); I(f"s_mul_i32 s40, s40, {ampk}")
        I("s_memrealtime s[42:43]"); I("s_waitcnt lgkmcnt(0)"); I("s_add_u32 s40, s40, s42")
        a.label("L_ampspin")
        I("s_sleep 2"); I("s_memrealtime s[42:43]"); I("s_waitcnt lgkmcnt(0)"); I("s_sub_u32 s43, s40, s42"); I("s_cmp_gt_i32 s43, 0"); I("s_cbranch_scc1 L_ampspin")
        a.label("L_ampdone")
    elif stamps and dbgmax is not None:
        I("s_memrealtime s[50:51]"); I("s_waitcnt lgkmcnt(0)"); I(f"v_writelane_b32 {vST}, s50, 15")
        I(f"v_readlane_b32 s50, {vST}, 0"); I("s_nop 3"); I("s_not_b32 s50, s50"); I(f"v_writelane_b32 {vST}, s50, 0")
        I(f"s_min_u32 s50, {sW}, 8") ; I(f"s_cmp_eq_u32 {sW}, 9"); I("s_cselect_b32 s50, 9, s50"); I(f"s_cmp_lt_u32 {sW}, 8"); I("s_cselect_b32 s50, 0, s50")
        I(f"s_cmp_eq_u32 s50, {dict(kv=0, q=8, m=9)[dbgmax]}"); I("s_cbranch_scc1 L_dm1")
        I(f"v_readlane_b32 s48, {vST}, 0"); I(f"v_readlane_b32 s49, {vST}, 15"); I(f"v_mov_b32 {vST}, 0"); I("s_nop 3"); I(f"v_writelane_b32 {vST}, s48, 0"); I(f"v_writelane_b32 {vST}, s49, 15")
        a.label("L_dm1")
        I("v_lshlrev_b32 v166, 2, v0"); setexec(0xffff)
        I(f"global_atomic_umax v166, {vST}, s[{P_DBG}:{P_DBG+1}]")
        I("s_mov_b64 exec, -1")
    elif stamps:
        I("s_memrealtime s[50:51]"); I("s_waitcnt lgkmcnt(0)"); I(f"v_writelane_b32 {vST}, s50, 15")
        I("s_getreg_b32 s50, hwreg(HW_REG_XCC_ID, 0, 4)"); I(f"v_writelane_b32 {vST}, s50, 16")
        I("s_lshl_b32 s50, s2, 4"); I(f"s_add_u32 s50, s50, {sW}"); I("s_lshl_b32 s50, s50, 8"); I(f"s_add_u32 s50, s50, {STP}")
        I("v_lshlrev_b32 v166, 2, v0")
        I(f"buffer_store_dword {vST}, v166, {SRD_WS}, s50 offen")
    I("s_endpgm")
    for l0, l1, texts in slow:
        a.label(l0)
        for t in texts: I(t + " sc1")
        I(f"s_branch {l1}")
    a.label("L_END")
    I("s_endpgm")
    a.raw('.section .rodata,"a"'); a.raw(".p2align 6"); a.raw(f".amdhsa_kernel {NAME}_kernel")
    a.raw("  .amdhsa_next_free_vgpr 168"); a.raw("  .amdhsa_next_free_sgpr 102"); a.raw("  .amdhsa_accum_offset 168")
    a.raw("  .amdhsa_group_segment_fixed_size 0"); a.raw("  .amdhsa_kernarg_size 120"); a.raw("  .amdhsa_user_sgpr_count 2")
    a.raw("  .amdhsa_user_sgpr_kernarg_segment_ptr 1"); a.raw("  .amdhsa_system_sgpr_workgroup_id_x 1"); a.raw(".end_amdhsa_kernel")
    return a

if __name__ == "__main__":
    kw = eval("dict(" + (sys.argv[2] if len(sys.argv) > 2 else "") + ")")
    a = gen(**kw)
    open(sys.argv[1], "w").write(a.text())
    print("instructions", a.ninstr, "nops", a.nops)
```

```python
import sys, struct
from asmdsl import Asm
NAME = "adaLN_cond__sliding_block_cached__mixer_token_mlp__decode"

XT   = 0x1000
H1   = 0xA000
H2   = 0x14000
H3   = 0x54000
H3ML = 0x94000
H4   = 0x95000
RR   = 0xA0000
BC   = 0xA6000
DBG = 0x200000
STP = 0x800000
L_SC = 0
L_H16 = 2560
L_Q16 = 2880
L_MW = 3136
L_LW = 3168
L_MODE = 3200
L_ZERO = 3216
L_OW = 3328
L_AV = 7680
L_RED = 9728
L_IA = 14080
L_MODS = 16640
L_FIN = 26880
LDS_BYTES = 27648

LOG2E = 0x3fb8aa3b
SCALE = 0x3db504f3
INV640 = 0x3acccccd
EPS = 0x3727c5ac
def f2h(x): return "0x%08x" % struct.unpack("<I", struct.pack("<f", x))[0]
GC0 = -2*0.7978845608028654*1.4426950408889634
GC1 = GC0*0.044715

DOC = """
One persistent launch: 256 workgroups (one per CU) x 10 waves.  b = workgroup id, g = b & 7 (group), i = b >> 3,
head = 4g + (i & 3), j = i >> 2 (256-key slice of the head's 2048-key window).
  waves 0..7 (KV)  stream the K and V slice into registers, scores / softmax / P*V, then the role of the workgroup:
                   i < 20       wo block (64 columns x 256 rows: two heads of the group), then the token MLP for 3 columns
                   20 <= i < 30 gate block of w_mod (64 columns x 320 rows), i < 27 also the token MLP
                   i == 30      importer: sums the wo / gate partial sums, both layernorms, broadcasts (t, x1, gb)
  wave 8 (Q)       wq rows 80j..80j+79 of the head; layernorm(x), h, partial q, exchange of q inside the head
  wave 9 (M)       silu(c); shift / scale block of w_mod (64 columns x 160 rows; groups 0..3, i < 20)
GEMVs run on v_mfma_f32_16x16x32_bf16 with the weights as they lie in memory: the vector operand is spread over the
16 rows with one non-zero element per row (masks v4..v7), so no transposition is needed.
Hand-offs between workgroups go through d_ws as self-validating 16-byte granules: every launch reads the epoch word
ws[0], uses epoch+1 as its tag, and one wave stores the tag back once all workgroups have read it.  Consumers poll the
data itself (sc1 loads) until the tags match.  Stores are write-through (sc1) across groups; inside a group they are
plain stores when a table of XCC ids shows at run time that all 32 workgroups share one XCD, write-through otherwise.
  ws layout: 0x01000 xcc ids | 0x0a000 shift/scale partials | 0x14000 partial q | 0x54000 partial o | 0x94000 (max, sum)
             0x95000 wo partials | 0xa0000 gate partials | 0xa6000 broadcast records
Every poll loop is bounded.  Rounding to bf16 follows the reference on the path c, x -> h -> q -> scores.
"""

def gen(D=3, nt="nt", ntw="nt", ntt="nt", inter=True, stamps=False, dbg=False, fast=True, prefetch=True, LIMIT=400000,
        rotmul=5, D2=4, Dswitch=8, skip='', tpos='p', dbgmax=None, nset1=1, nset2=1, sl1=12, sl2=8, mgroups=4, pfall=True, align4k=True, warm=True, tsplit=(1, 1), rot=(5, 0, 0), impsets=1, impsl=3, wofirst=True, outflag='', bq=False, tq=0, hmap=0, ampg=True, rtskip=0, bcgap=1, impgap=0, h3gap=0, bcline=True, fix='', b0='mq', torder='kv', nvpre=6, ackw1='rt', ackw2=10, sl0=0, kgate=0, diagnop=0, amp=None, ampk=8):
    if amp: stamps = [amp[1] + {'kv': 0, 'q': 100, 'm': 200}[amp[0]]]
    if D2 is None: D2 = D
    a = Asm(); I = a
    uid = [0]
    def lab(p):
        uid[0] += 1
        return f"L_{p}{uid[0]}"
    sB, sW, sG, sI, sHEAD, sJ, sT32, sT8, sMODE = "s2", "s3", "s4", "s5", "s6", "s7", "s8", "s9", "s10"
    SRD_K, SRD_V, SRD_A, SRD_WS = "s[12:15]", "s[16:19]", "s[20:23]", "s[28:31]"
    sOFF = [f"s{32+m}" for m in range(8)]
    P_X, P_K, P_V, P_WQ, P_WO, P_W1, P_B1, P_W2, P_B2, P_C, P_WM, P_OUT, P_DBG, P_WS = 52, 54, 56, 58, 60, 64, 66, 68, 70, 72, 74, 76, 78, 80
    sQ = [None, "s[90:91]", "s[92:93]", "s[94:95]"]
    sRV = "s[96:97]"
    sFF = "s98"
    vST = "v167"
    role = ["kv"]
    def stamp(k):
        if not stamps: return
        key = k + {"kv": 0, "q": 100, "m": 200}[role[0]]
        if stamps is not True and key not in stamps: return
        I("s_memrealtime s[50:51]"); I("s_waitcnt lgkmcnt(0)"); I(f"v_writelane_b32 {vST}, s50, {k}")
    DPPM = "row_mask:0xf bank_mask:0xf"
    def dppreduce(op, regs, mods):
        for mod in mods:
            for r in regs: I(f"{op}_dpp v{r}, v{r}, v{r} {mod} {DPPM}")
    Q2 = ["quad_perm:[1,0,3,2]", "quad_perm:[2,3,0,1]"]
    R8 = Q2 + ["row_half_mirror"]
    R16 = Q2 + ["row_ror:4", "row_ror:8"]
    def crossrow(op, regs, tmp, which=("v_permlane16_swap_b32", "v_permlane32_swap_b32")):
        for sw in which:
            for r, t in zip(regs, tmp): I(f"v_mov_b32 v{t}, v{r}")
            for r, t in zip(regs, tmp): I(f"{sw} v{r}, v{t}")
            for r, t in zip(regs, tmp): I(f"{op} v{r}, v{r}, v{t}")
    def allreduce(op, regs, tmp):
        dppreduce(op, regs, R16); crossrow(op, regs, tmp)
    def rbf(dst, src, tmp):
        I(f"v_cvt_pk_bf16_f32 v{tmp}, v{src}, v{src}"); I(f"v_lshlrev_b32 v{dst}, 16, v{tmp}")
    def rbf2(d0, d1, s0, s1, tmp):
        I(f"v_cvt_pk_bf16_f32 v{tmp}, v{s0}, v{s1}"); I(f"v_lshlrev_b32 v{d0}, 16, v{tmp}"); I(f"v_and_b32 v{d1}, 0xffff0000, v{tmp}")
    def setexec(mask):
        lo, hi = mask & 0xffffffff, mask >> 32
        if mask == (1 << 64) - 1: I("s_mov_b64 exec, -1")
        elif hi == 0 and lo <= 64: I(f"s_mov_b64 exec, {lo}")
        else: I(f"s_mov_b32 exec_lo, {hex(lo)}"); I(f"s_mov_b32 exec_hi, {hex(hi)}")
    def masks(t0, sp):
        I(f"v_and_b32 v{t0}, 7, v0"); I(f"v_lshrrev_b32 v{t0+1}, 1, v{t0}"); I(f"v_and_b32 v{t0}, 1, v{t0}")
        I(f"v_mov_b32 v{t0+2}, 0xffff"); I(f"v_mov_b32 v{t0+3}, 0xffff0000")
        I(f"v_cmp_eq_u32 vcc, 1, v{t0}")
        for r in range(4): I(f"v_cmp_eq_u32 s[{sp+2*r}:{sp+2*r+1}], {r}, v{t0+1}")
        I(f"v_cndmask_b32 v{t0+2}, v{t0+2}, v{t0+3}, vcc")
        for r in range(4): I(f"v_cndmask_b32_e64 v{4+r}, 0, v{t0+2}, s[{sp+2*r}:{sp+2*r+1}]")
    MASK = [4, 5, 6, 7]
    def poll(loads, check, cnt="s51", gap=0):
        l0, l1 = lab("poll"), lab("pdone")
        I(f"s_mov_b32 {cnt}, 0")
        a.label(l0)
        for s in loads: I(s)
        I(f"s_add_u32 {cnt}, {cnt}, 1")
        I("s_waitcnt vmcnt(0)")
        check()
        I("s_and_b64 exec, exec, vcc")
        I(f"s_cbranch_scc0 {l1}")
        if gap:
            a.c("poll back-off: keeps the pollers from crowding the lines that are about to be written")
            I(f"s_sleep {gap}")
        I(f"s_cmp_lt_u32 {cnt}, {LIMIT}")
        I(f"s_cbranch_scc1 {l0}")
        a.label(l1)
        I("s_mov_b64 exec, -1")
    def ppoll(nset, loads, check, done, sl, cnt="s51", after_first=None):
        n = len(loads(0))
        lp = lab("pp"); ld = [lab("ppd") for _ in range(nset)]; lj = lab("ppj")
        I(f"s_mov_b32 {cnt}, 0")
        for k in range(nset):
            for s in loads(k): I(s)
            if k == 0 and after_first: after_first()
            if k < nset - 1 and sl: I(f"s_sleep {sl}")
        a.label(lp)
        for k in range(nset):
            I(f"s_waitcnt vmcnt({n*(nset-1)})")
            check(k)
            I(f"s_cbranch_vccz {ld[k]}")
            for s in loads(k): I(s)
        I(f"s_add_u32 {cnt}, {cnt}, 1"); I(f"s_cmp_lt_u32 {cnt}, {LIMIT}"); I(f"s_cbranch_scc1 {lp}")
        for k in range(nset):
            a.label(ld[k]); done(k)
            if k < nset - 1: I(f"s_branch {lj}")
        a.label(lj)
    def mpoll(nset, loads, check, done, sl, cnt="s51", mregs=("s[84:85]", "s[86:87]", "s[88:89]")):
        n = len(loads(0))
        lp = lab("mp"); ld = [lab("mpd") for _ in range(nset)]; lj = lab("mpj")
        I(f"s_mov_b32 {cnt}, 0")
        for k in range(nset):
            I(f"s_mov_b64 {mregs[k]}, exec")
            for t in loads(k): I(t)
            if k < nset - 1 and sl: I(f"s_sleep {sl}")
        a.label(lp)
        for k in range(nset):
            I(f"s_mov_b64 exec, {mregs[k]}")
            I(f"s_waitcnt vmcnt({n*(nset-1)})")
            check(k)
            I(f"s_and_b64 {mregs[k]}, exec, vcc")
            I(f"s_cbranch_scc0 {ld[k]}")
            if impgap: I(f"s_sleep {impgap}")
            I(f"s_mov_b64 exec, {mregs[k]}")
            for t in loads(k): I(t)
        I(f"s_add_u32 {cnt}, {cnt}, 1"); I(f"s_cmp_lt_u32 {cnt}, {LIMIT}"); I(f"s_cbranch_scc1 {lp}")
        for k in range(nset):
            a.label(ld[k]); I("s_mov_b64 exec, -1")
            done(k)
            if k < nset - 1: I(f"s_branch {lj}")
        a.label(lj)
    def chk24(granules, vTb, t0):
        def f():
            for b in granules:
                for c in range(4): I(f"v_xor_b32 v{b+c}, v{vTb}, v{b+c}")
            first = True
            for b in granules:
                if first: I(f"v_or3_b32 v{t0}, v{b}, v{b+1}, v{b+2}"); I(f"v_or_b32 v{t0}, v{t0}, v{b+3}"); first = False
                else: I(f"v_or3_b32 v{t0}, v{t0}, v{b}, v{b+1}"); I(f"v_or3_b32 v{t0}, v{t0}, v{b+2}, v{b+3}")
            I(f"v_and_b32 v{t0}, 0xff, v{t0}"); I(f"v_cmp_ne_u32 vcc, 0, v{t0}")
        return f
    slow = []
    def store_mode(texts):
        if not fast:
            for t in texts: I(t + " sc1")
            return
        l0, l1 = lab("sl"), lab("sd")
        I(f"s_cmp_eq_u32 {sMODE}, 1"); I(f"s_cbranch_scc0 {l0}")
        for t in texts: I(t)
        a.label(l1)
        slow.append((l0, l1, texts))
    def dbgstore(regs, slot):
        if not dbg: return
        I("s_mul_i32 s50, s2, 0x4000"); I(f"s_add_u32 s50, s50, {DBG + slot*0x400}")
        I("v_lshlrev_b32 v166, 2, v0")
        for n, r in enumerate(regs): I(f"buffer_store_dword v{r}, v166, {SRD_WS}, s50 offen offset:{n*256}")
        I("s_waitcnt vmcnt(0)")
    def epoch():
        I("s_waitcnt lgkmcnt(0)")
        I(f"s_add_u32 {sT32}, {sT32}, 1"); I(f"s_and_b32 {sT8}, {sT32}, 0xff")

    NW = 10
    a.raw(open("header.txt").read().rstrip("\n"))
    a.raw(f"; @launch grid=(256,1,1) block=({64*NW},1,1) lds={LDS_BYTES}")
    for line in DOC.strip("\n").split("\n"): a.raw(("; " + line).rstrip())
    a.raw('.amdgcn_target "amdgcn-amd-amdhsa--gfx950"')
    a.raw(".text"); a.raw(f".globl {NAME}_kernel")
    if align4k: a.raw(".p2align 12")
    a.raw(".p2align 8"); a.raw(f".type {NAME}_kernel,@function"); a.raw(f"{NAME}_kernel:")
    if stamps: I("s_memrealtime s[96:97]")
    I("s_cmp_ge_u32 s2, 256"); I("s_cbranch_scc1 L_END")
    I("s_load_dwordx16 s[52:67], s[0:1], 0")
    I("s_load_dwordx8 s[68:75], s[0:1], 64")
    I("s_load_dwordx4 s[76:79], s[0:1], 96")
    I("s_load_dwordx2 s[80:81], s[0:1], 112")
    I("v_lshrrev_b32 v1, 6, v0")
    I("v_and_b32 v0, 63, v0")
    I(f"v_readfirstlane_b32 {sW}, v1")
    I(f"s_and_b32 {sG}, s2, 7"); I(f"s_lshr_b32 {sI}, s2, 3")
    if prefetch:
        I(f"s_and_b32 s46, {sI}, {0 if pfall else 7}"); I(f"s_or_b32 s46, s46, {sW}"); I("s_cmp_eq_u32 s46, 0"); I("s_cbranch_scc0 L_nopf")
        I("s_getpc_b64 s[46:47]")
        a.label("L_PC")
        I("v_lshlrev_b32 v161, 7, v0")
        for pf in range(2):
            I(f"v_add_u32 v{162+pf}, {8192*pf}, v161"); I(f"v_min_u32 v{162+pf}, L_END-L_PC, v{162+pf}")
            I(f"global_load_dword v{164+pf}, v{162+pf}, s[46:47]")
        a.label("L_nopf")
    if hmap == 0:
        I(f"s_and_b32 s11, {sI}, 3"); I(f"s_lshl_b32 {sHEAD}, {sG}, 2"); I(f"s_add_u32 {sHEAD}, {sHEAD}, s11")
        I(f"s_lshr_b32 {sJ}, {sI}, 2")
    else:
        I(f"s_lshr_b32 s11, {sI}, 3"); I(f"s_lshl_b32 {sHEAD}, {sG}, 2"); I(f"s_add_u32 {sHEAD}, {sHEAD}, s11")
        I(f"s_and_b32 {sJ}, {sI}, 7")
    I("v_and_b32 v2, 15, v0"); I("v_lshrrev_b32 v3, 4, v0")
    if stamps: I(f"v_mov_b32 {vST}, 0")
    I("s_mov_b32 s30, 0x100000" if (amp or not (dbg or stamps)) else "s_mov_b32 s30, 0x10000000"); I("s_mov_b32 s31, 0x20000")
    I("s_mov_b32 s23, 0x20000")
    def args_ready():
        I("s_waitcnt lgkmcnt(0)")
        if stamps: I(f"v_writelane_b32 {vST}, s96, 0")
        I(f"s_load_dword {sT32}, s[{P_WS}:{P_WS+1}], 0")
        I(f"s_mov_b32 s28, s{P_WS}"); I(f"s_and_b32 s29, s{P_WS+1}, 0xffff")
    I("s_mov_b32 s101, 0")
    I(f"s_cmp_eq_u32 {sW}, 8"); I("s_cbranch_scc1 L_QW")
    I(f"s_cmp_eq_u32 {sW}, 9"); I("s_cbranch_scc1 L_MW")
    if warm:
        I("s_mov_b32 s101, 1")
        for k in range(6):
            I(f"s_cmp_eq_u32 {sW}, {k}"); I(f"s_cbranch_scc1 L_stub{k}")
    I("s_branch L_KV")
    stub = [0]
    def maybe_stub(n):
        if warm and n % 5 == 0 and stub[0] < 8:
            a.label(f"L_stub{stub[0]}"); I("s_cmp_eq_u32 s101, 1"); I("s_cbranch_scc1 L_KV"); stub[0] += 1

    role[0] = "m"
    vM_ = 12
    CR, C0, vTG, cA0, cA1, cD0, cD1 = 156, 132, 147, 148, 152, 156, 160
    rows = 640 // mgroups
    nld = rows // 8
    a.c("================= M wave: issue part =================")
    a.label("L_MW")
    I(f"s_cmp_lt_u32 {sG}, {mgroups}"); I("s_cselect_b32 s40, 20, 0"); I(f"s_cmp_lt_u32 {sI}, s40"); I("s_cselect_b32 s47, 1, 0")
    I("s_cbranch_scc1 L_mgo")
    I(f"s_sub_u32 s40, {sI}, 20"); I("s_cmp_lt_u32 s40, 10"); I("s_cbranch_scc1 L_MGATE")
    if stamps: args_ready()
    I("s_branch L_FINISH")
    a.label("L_mgo")
    I(f"s_mul_i32 s42, {sG}, {rows*7680}"); I(f"s_lshl_b32 s43, {sI}, 7"); I("s_add_u32 s42, s42, s43")
    I("v_bfe_u32 v10, v0, 3, 1"); I("v_lshl_add_u32 v10, v10, 2, v3"); I("s_movk_i32 s43, 7680"); I("v_mul_lo_u32 v10, v10, s43")
    I("v_and_b32 v11, 7, v0"); I("v_lshl_add_u32 v10, v11, 4, v10")
    I(f"v_min_u32 v8, {rows//4 - 1}, v0"); I("v_lshlrev_b32 v8, 3, v8"); I(f"s_mul_i32 s43, {sG}, {rows*2}"); I("v_add_u32 v8, s43, v8")
    I(f"s_mov_b32 s22, {0 if 'M' in skip else (rows-1)*7680+128}"); I(f"s_mov_b32 s49, {0 if 'M' in skip else 8*7680}"); I("s_mov_b32 s44, 0")
    args_ready()
    I(f"global_load_dwordx2 v[{CR}:{CR+1}], v8, s[{P_C}:{P_C+1}]")
    I(f"s_add_u32 s20, s{P_WM}, s42"); I(f"s_addc_u32 s21, s{P_WM+1}, 0"); I("s_and_b32 s21, s21, 0xffff")
    for n in range(nld):
        I(f"buffer_load_dwordx4 v[{vM_+4*n}:{vM_+4*n+3}], v10, {SRD_A}, s44 offen {ntw}")
        if n < nld - 1:
            I(f"s_add_u32 s44, s44, s49")
            maybe_stub(n + 1)
    if b0: I("s_barrier")
    if b0 == 'mq': I("s_barrier")
    I("s_branch L_M2")
    a.c("================= Q wave: issue part =================")
    a.label("L_QW")
    role[0] = "q"
    NRB = mgroups
    vQ = 52
    XR, vTG, cA0, cA1, cD0, XQ = 142, 147, 148, 152, 156, 164
    I("v_mul_u32_u24 v8, 20, v0")
    I(f"s_mul_i32 s42, {sJ}, 160"); I("v_min_u32 v9, 19, v0"); I("v_lshlrev_b32 v9, 3, v9"); I("v_add_u32 v9, s42, v9")
    I(f"s_mul_i32 s42, {sJ}, {80*8192}"); I(f"s_lshl_b32 s43, {sHEAD}, 8"); I("s_add_u32 s42, s42, s43")
    I(f"s_mov_b32 s22, {0 if 'Q' in skip else 79*8192+256}")
    I("v_lshlrev_b32 v11, 13, v3"); I("v_lshl_add_u32 v11, v2, 4, v11")
    I("s_mov_b32 s44, 0")
    I(f"s_mov_b32 s49, {0 if 'Q' in skip else 4*8192}")
    args_ready()
    I(f"global_load_dwordx4 v[{XR}:{XR+3}], v8, s[{P_X}:{P_X+1}]"); I(f"global_load_dword v{XR+4}, v8, s[{P_X}:{P_X+1}] offset:16")
    I(f"global_load_dwordx2 v[{XQ}:{XQ+1}], v9, s[{P_X}:{P_X+1}]")
    I(f"s_add_u32 s20, s{P_WQ}, s42"); I(f"s_addc_u32 s21, s{P_WQ+1}, 0"); I("s_and_b32 s21, s21, 0xffff")
    if b0 in ('m', 'mq'): I("s_barrier")
    for m in range(20):
        I(f"buffer_load_dwordx4 v[{vQ+4*m}:{vQ+4*m+3}], v11, {SRD_A}, s44 offen {nt}")
        if m < 19:
            I(f"s_add_u32 s44, s44, s49")
            maybe_stub(m + 1)
    if b0 in ('mq', 'both'): I("s_barrier")
    I("s_branch L_Q2")
    def m2():
        role[0] = 'm'
        vTG, cA0, cA1, cD0, cD1 = 147, 148, 152, 156, 160
        a.label('L_M2')
        stamp(11)
        masks(148, 32)
        def silu(vals, raw_t):
            for k in range(0, len(vals), 2):
                cs = vals[k:k+2]
                t = {c: raw_t + 4*n for n, c in enumerate(cs)}
                for c in cs: I(f"v_mul_f32 v{t[c]}, {hex(LOG2E ^ 0x80000000)}, v{c}")
                for c in cs: I(f"v_exp_f32 v{t[c]}, v{t[c]}")
                for c in cs: I(f"v_add_f32 v{t[c]}, 1.0, v{t[c]}")
                for c in cs: I(f"v_rcp_f32 v{t[c]+1}, v{t[c]}")
                for c in cs: I(f"v_mul_f32 v{t[c]+2}, v{c}, v{t[c]+1}")
                for c in cs: I(f"v_fma_f32 v{t[c]+3}, -v{t[c]+2}, v{t[c]}, v{c}")
                for c in cs: I(f"v_fma_f32 v{t[c]+2}, v{t[c]+3}, v{t[c]+1}, v{t[c]+2}")
                for c in cs: I(f"v_cvt_pk_bf16_f32 v{c}, v{t[c]+2}, v{t[c]+2}")
        I(f"v_lshlrev_b32 v9, 4, v0"); I(f"s_mul_i32 s42, {sG}, {rows*4}"); I("v_add_u32 v9, s42, v9")
        I("v_bfe_u32 v8, v0, 3, 1"); I("v_lshl_add_u32 v8, v8, 2, v3"); I("v_lshlrev_b32 v8, 2, v8"); I("v_add_u32 v8, s42, v8")
        I(f"s_waitcnt vmcnt({nld})")
        stamp(6)
        for n in range(2):
            I(f"v_lshlrev_b32 v{C0+2*n}, 16, v{CR+n}"); I(f"v_and_b32 v{C0+2*n+1}, 0xffff0000, v{CR+n}")
        silu([C0, C0+1, C0+2, C0+3], 148)
        setexec((1 << (rows//4)) - 1)
        I(f"ds_write_b128 v9, v[{C0}:{C0+3}] offset:{L_SC}")
        I("s_mov_b64 exec, -1")
        I("s_waitcnt lgkmcnt(0)")
        stamp(7)
        AV = 112
        for n in range(0, nld, 2): I(f"ds_read2_b32 v[{AV+n}:{AV+n+1}], v8 offset0:{8*n} offset1:{8*n+8}")
        epoch()
        I(f"v_mov_b32 v{vTG}, {sT32}")
        I("v_lshrrev_b32 v9, 3, v2"); I("v_lshrrev_b32 v10, 1, v3"); I("v_cmp_eq_u32 s[42:43], v9, v10")
        I("v_and_b32 v9, 7, v2"); I("v_and_b32 v10, 1, v3"); I("v_lshl_add_u32 v9, v9, 1, v10"); I("v_lshlrev_b32 v8, 4, v9"); I("v_lshlrev_b32 v9, 3, v9")
        I(f"s_mul_i32 s44, {sG}, 7680"); I(f"s_add_u32 s44, s44, {H1}"); I(f"s_lshl_b32 s45, {sI}, 7"); I("s_add_u32 s45, s45, s44"); I("s_add_u32 s45, s45, 5120")
        I(f"s_lshl_b32 s40, {sI}, 8"); I("s_add_u32 s44, s44, s40")
        for n in range(nld):
            A_ = cA0 if n % 2 == 0 else cA1
            for r in range(4): I(f"v_and_b32 v{A_+r}, v{AV+n}, v{MASK[r]}")
            I(f"s_waitcnt vmcnt({nld - 1 - n})")
            c = "0" if n == 0 else f"v[{cD0}:{cD0+3}]"
            I(f"v_mfma_f32_16x16x32_bf16 v[{cD0}:{cD0+3}], v[{A_}:{A_+3}], v[{vM_+4*n}:{vM_+4*n+3}], {c}")
        stamp(8)
        I(f"v_mov_b32 v137, v{vTG}")
        for c in range(4): I(f"v_cndmask_b32_e64 v{132+c}, 0, v{cD0+c}, s[42:43]")
        dppreduce("v_add_f32", [132, 133, 134, 135], ["row_ror:8"])
        crossrow("v_add_f32", [132, 133, 134, 135], [138, 139, 140, 141], which=("v_permlane32_swap_b32",))
        I(f"v_mov_b32 v136, v135"); I(f"v_mov_b32 v135, v{vTG}")
        setexec(0x00ff00ff)
        I(f"buffer_store_dwordx4 v[132:135], v8, {SRD_WS}, s44 offen sc1")
        I(f"buffer_store_dwordx2 v[136:137], v9, {SRD_WS}, s45 offen sc1")
        I("s_mov_b64 exec, -1")
        stamp(1)
        I("s_branch L_FINISH")
        a.label("L_MGATE")
        I("v_mul_u32_u24 v8, 20, v0")
        args_ready()
        I(f"global_load_dwordx4 v[{CR}:{CR+3}], v8, s[{P_C}:{P_C+1}]"); I(f"global_load_dword v{CR+4}, v8, s[{P_C}:{P_C+1}] offset:16")
        if b0: I("s_barrier")
        if b0 == 'mq': I("s_barrier")
        I("s_waitcnt vmcnt(0)")
        for n in range(5):
            I(f"v_lshlrev_b32 v{C0+2*n}, 16, v{CR+n}"); I(f"v_and_b32 v{C0+2*n+1}, 0xffff0000, v{CR+n}")
        silu([C0+c for c in range(10)], 148)
        I("v_lshlrev_b32 v8, 1, v8")
        for n in range(5): I(f"ds_write_b64 v8, v[{C0+2*n}:{C0+2*n+1}] offset:{L_SC + 8*n}")
        I("s_waitcnt lgkmcnt(0)")
        I("s_branch L_FINISH")

    def q2():
        role[0] = 'q'
        vTG, cA0, cA1, cD0 = 147, 148, 152, 156
        a.label('L_Q2')
        stamp(11)
        masks(148, 32)
        if amp and ampg:
            I("s_cmp_eq_u32 s2, 0"); I("s_cbranch_scc0 L_noref")
            I("v_mov_b32 v166, 0"); setexec(1); I(f"global_store_dword v166, {vST}, s[{P_DBG}:{P_DBG+1}] sc1"); I("s_mov_b64 exec, -1"); I("s_waitcnt vmcnt(21)") if False else None
            a.label("L_noref")
        I("s_getreg_b32 s45, hwreg(HW_REG_XCC_ID, 0, 4)")
        epoch()
        I(f"s_lshl_b32 s46, {sT32}, 4"); I("s_or_b32 s47, s46, s45")
        I("v_mov_b32 v163, s47"); I(f"s_lshl_b32 s48, {sG}, 12"); I(f"s_lshl_b32 s49, {sI}, 7"); I("s_add_u32 s48, s48, s49"); I(f"s_add_u32 s48, s48, {XT}"); I("v_mov_b32 v9, 0")
        setexec(1)
        I(f"buffer_store_dword v163, v9, {SRD_WS}, s48 offen sc1")
        I("s_mov_b64 exec, -1")
        I(f"v_mov_b32 v{vTG}, {sT32}")
        I("s_waitcnt vmcnt(20)")
        stamp(6)
        X0 = 132
        for n in range(5):
            I(f"v_lshlrev_b32 v{X0+2*n}, 16, v{XR+n}"); I(f"v_and_b32 v{X0+2*n+1}, 0xffff0000, v{XR+n}")
        I(f"v_add_f32 v148, v{X0}, v{X0+1}")
        for c in range(2, 10): I(f"v_add_f32 v148, v148, v{X0+c}")
        allreduce("v_add_f32", [148], [149])
        I(f"v_mul_f32 v148, {hex(INV640)}, v148")
        I(f"v_sub_f32 v149, v{X0}, v148"); I("v_mul_f32 v150, v149, v149")
        for c in range(1, 10): I(f"v_sub_f32 v149, v{X0+c}, v148"); I("v_fmac_f32 v150, v149, v149")
        allreduce("v_add_f32", [150], [149])
        I(f"v_mul_f32 v150, {hex(INV640)}, v150")
        rbf2(148, 150, 148, 150, 149)
        I(f"v_add_f32 v150, {hex(EPS)}, v150"); rbf(150, 150, 149)
        I("v_sqrt_f32 v150, v150"); rbf(150, 150, 149)
        I("v_rcp_f32 v151, v150")
        vZ = 48
        for h in range(2):
            I(f"v_lshlrev_b32 v{vZ+2*h}, 16, v{XQ+h}"); I(f"v_and_b32 v{vZ+2*h+1}, 0xffff0000, v{XQ+h}")
        for c in range(4): I(f"v_sub_f32 v{vZ+c}, v{vZ+c}, v148")
        rbf2(vZ, vZ+1, vZ, vZ+1, 149); rbf2(vZ+2, vZ+3, vZ+2, vZ+3, 149)
        for c in range(4):
            I(f"v_mul_f32 v152, v{vZ+c}, v151"); I(f"v_fma_f32 v153, -v152, v150, v{vZ+c}"); I(f"v_fma_f32 v{vZ+c}, v153, v151, v152")
        rbf2(vZ, vZ+1, vZ, vZ+1, 149); rbf2(vZ+2, vZ+3, vZ+2, vZ+3, 149)
        stamp(7)
        I("v_min_u32 v8, 39, v0"); I(f"s_mul_i32 s42, {sJ}, 20"); I("v_add_u32 v9, s42, v8")
        I("v_cmp_lt_u32 vcc, 19, v8"); I("v_add_u32 v10, 140, v9"); I("v_cndmask_b32 v9, v9, v10, vcc"); I("v_lshlrev_b32 v10, 3, v9"); I("v_add_u32 v10, 5120, v10"); I("v_lshlrev_b32 v9, 4, v9")
        I("v_and_b32 v8, 31, v0"); I("v_lshlrev_b32 v8, 7, v8"); I(f"s_lshl_b32 s42, {sG}, 12"); I(f"s_add_u32 s42, s42, {XT}")
        for rb in range(NRB): I(f"s_mov_b32 s{32+rb}, {H1 + 7680*rb}")
        I(f"s_and_b32 s43, {sT32}, 0x0fffffff")
        SETSZ = 6*NRB
        assert 12 + SETSZ*nset1 <= 48 or (nset1 == 1 and NRB == 8 and False)
        G1 = lambda k: 12 + SETSZ*k
        XR1 = lambda k: 160 + k
        def ld1(k):
            out = [f"buffer_load_dword v{XR1(k)}, v8, {SRD_WS}, s42 offen sc1"]
            for rb in range(NRB):
                b = G1(k) + 6*rb
                out.append(f"buffer_load_dwordx4 v[{b}:{b+3}], v9, {SRD_WS}, s{32+rb} offen sc1")
                out.append(f"buffer_load_dwordx2 v[{b+4}:{b+5}], v10, {SRD_WS}, s{32+rb} offen sc1")
            return out
        def ck1(k):
            I(f"v_lshrrev_b32 v132, 4, v{XR1(k)}"); I("v_xor_b32 v132, s43, v132")
            for rb in range(NRB):
                b = G1(k) + 6*rb
                I(f"v_bitop3_b32 v133, v{b+3}, v{b+5}, v{vTG} bitop3:0x7e"); I("v_or_b32 v132, v132, v133")
            I("v_cmp_ne_u32 vcc, 0, v132")
        def dn1(k):
            for c in range(4):
                src = (lambda rb: G1(k) + 6*rb + (c if c < 3 else 4))
                I(f"v_add_f32 v{136+c}, v{src(0)}, v{src(1)}")
                for rb in range(2, NRB): I(f"v_add_f32 v{136+c}, v{136+c}, v{src(rb)}")
            I(f"v_mov_b32 v140, v{XR1(k)}")
        if ackw1 == 'q': I("s_waitcnt vmcnt(1)")
        elif ackw1 == 'rt':
            I("s_waitcnt vmcnt(1)")
            if rtskip: I(f"s_cmp_ge_u32 {sG}, {rtskip}"); I("s_cbranch_scc1 L_nort")
            I("v_mov_b32 v147, 0"); setexec(1)
            I(f"buffer_store_dword v163, v147, {SRD_WS}, s48 offen sc1")
            I("s_mov_b64 exec, -1"); I(f"v_mov_b32 v{vTG}, {sT32}"); I("s_waitcnt vmcnt(0)")
            if rtskip: a.label("L_nort")
        elif ackw1: I("s_waitcnt vmcnt(0)")
        if sl0: I(f"s_sleep {sl0}")
        stamp(8)
        setexec((1 << 40) - 1)
        ppoll(nset1, ld1, ck1, dn1, sl1, after_first=(lambda: I("s_barrier")) if kgate else None)
        I("s_mov_b64 exec, -1")
        if stamps and not amp: I(f"v_writelane_b32 {vST}, s51, 12")
        stamp(2)
        setexec((1 << 32) - 1)
        I("v_cmp_ne_u32 vcc, s47, v140")
        I("s_mov_b64 exec, -1")
        I("s_cmp_eq_u64 vcc, 0"); I(f"s_cselect_b32 {sMODE}, 1, 0")
        if not fast: I(f"s_mov_b32 {sMODE}, 0")
        rbf2(136, 137, 136, 137, 132); rbf2(138, 139, 138, 139, 132)
        I("v_add_u32 v8, 20, v0"); I("v_lshlrev_b32 v8, 2, v8")
        for c in range(4): I(f"ds_bpermute_b32 v{140+c}, v8, v{136+c}")
        I(f"v_mov_b32 v144, {sMODE}"); I(f"v_mov_b32 v145, 0")
        setexec(1); I(f"ds_write_b32 v145, v144 offset:{L_MODE}")
        I("s_mov_b64 exec, -1")
        I("v_lshlrev_b32 v146, 4, v0"); I(f"v_lshlrev_b32 v36, 2, v3"); I(f"v_add_u32 v36, {L_H16}, v36")
        I("s_waitcnt lgkmcnt(0)")
        for c in range(4): I(f"v_add_f32 v{140+c}, 1.0, v{140+c}")
        rbf2(140, 141, 140, 141, 132); rbf2(142, 143, 142, 143, 132)
        for c in range(4): I(f"v_mul_f32 v{140+c}, v{vZ+c}, v{140+c}")
        rbf2(140, 141, 140, 141, 132); rbf2(142, 143, 142, 143, 132)
        for c in range(4): I(f"v_add_f32 v{140+c}, v{140+c}, v{136+c}")
        for c in range(4): I(f"v_cvt_pk_bf16_f32 v{140+c}, v{140+c}, v{140+c}")
        dbgstore([140, 141, 142, 143], 3)
        setexec((1 << 20) - 1)
        I(f"ds_write_b128 v146, v[140:143] offset:{L_H16}")
        I("s_mov_b64 exec, -1")
        I("s_waitcnt lgkmcnt(0)")
        HP = [(132, 133), (134, 135), (136, 137), (138, 139), (140, 141), (142, 143), (144, 145), (48, 49), (50, 51), (164, 165)]
        for n in range(10): I(f"ds_read2_b32 v[{HP[n][0]}:{HP[n][1]}], v36 offset0:{8*n} offset1:{8*n+4}")
        I("v_lshl_add_u32 v8, v2, 1, v3"); I("v_lshlrev_b32 v11, 3, v8"); I("v_lshlrev_b32 v8, 4, v8")
        I(f"s_lshl_b32 s42, {sHEAD}, 3"); I(f"s_add_u32 s43, s42, {sJ}"); I("s_mul_i32 s43, s43, 768"); I(f"s_add_u32 s43, s43, {H2}")
        I("s_waitcnt lgkmcnt(0)")
        for m in range(20):
            A_ = cA0 if m % 2 == 0 else cA1
            for r in range(4): I(f"v_and_b32 v{A_+r}, v{HP[m//2][m%2]}, v{MASK[r]}")
            c = "0" if m == 0 else f"v[{cD0}:{cD0+3}]"
            I(f"v_mfma_f32_16x16x32_bf16 v[{cD0}:{cD0+3}], v[{A_}:{A_+3}], v[{vQ+4*m}:{vQ+4*m+3}], {c}")
        I(f"v_mov_b32 v135, v{vTG}"); I(f"v_mov_b32 v137, v{vTG}")
        I("v_and_b32 v146, 31, v0"); I("v_lshrrev_b32 v138, 5, v0"); I("s_movk_i32 s44, 3072")
        I("v_lshlrev_b32 v9, 4, v146"); I("v_mad_u32_u24 v9, v138, s44, v9"); I("v_lshlrev_b32 v10, 3, v146"); I("v_mad_u32_u24 v10, v138, s44, v10")
        I(f"s_mul_i32 s42, s42, 768"); I(f"s_add_u32 s42, s42, {H2}")
        for c in range(3): I(f"v_mov_b32 v{132+c}, v{cD0+c}")
        I(f"v_mov_b32 v136, v{cD0+3}")
        setexec((1 << 32) - 1)
        store_mode([f"buffer_store_dwordx4 v[132:135], v8, {SRD_WS}, s43 offen", f"buffer_store_dwordx2 v[136:137], v11, {SRD_WS}, s43 offen offset:512"])
        I("s_mov_b64 exec, -1")
        stamp(3)
        G2 = lambda k: vQ + 24*k
        def ld2(k):
            out = []
            for n in range(4):
                b = G2(k) + 6*n
                out.append(f"buffer_load_dwordx4 v[{b}:{b+3}], v9, {SRD_WS}, s42 offen offset:{768*n} sc1")
                out.append(f"buffer_load_dwordx2 v[{b+4}:{b+5}], v10, {SRD_WS}, s42 offen offset:{768*n+512} sc1")
            return out
        def ck2(k):
            for n in range(4): I(f"v_bitop3_b32 v{138+n}, v{G2(k)+6*n+3}, v{G2(k)+6*n+5}, v{vTG} bitop3:0x7e")
            I("v_or3_b32 v138, v138, v139, v140"); I("v_or_b32 v138, v138, v141"); I("v_cmp_ne_u32 vcc, 0, v138")
        def dn2(k):
            for c in range(4):
                src = (lambda n: G2(k) + 6*n + (c if c < 3 else 4))
                I(f"v_add_f32 v{138+c}, v{src(0)}, v{src(1)}"); I(f"v_add_f32 v{142+c}, v{src(2)}, v{src(3)}")
        if ackw2 is True: I("s_waitcnt vmcnt(0)")
        elif ackw2:
            a.c("poll back-off: the other seven partial sums of the head are stored at about the same moment; a poll that comes too early costs a full queue latency")
            I(f"s_sleep {ackw2}")
        stamp(9)
        ppoll(nset2, ld2, ck2, dn2, sl2, after_first=(lambda: I("s_barrier")) if bq else None)
        if stamps and not amp: I(f"v_writelane_b32 {vST}, s51, 13")
        stamp(4)
        for c in range(4): I(f"v_add_f32 v{138+c}, v{138+c}, v{142+c}")
        crossrow("v_add_f32", [138, 139, 140, 141], [142, 143, 144, 145], which=("v_permlane32_swap_b32",))
        I("v_cvt_pk_bf16_f32 v142, v138, v139"); I("v_cvt_pk_bf16_f32 v143, v140, v141")
        dbgstore([142, 143], 4)
        I("v_lshlrev_b32 v146, 3, v146")
        I("v_mov_b32 v144, 0"); I("v_mov_b32 v145, 0"); I("v_mov_b32 v8, 0")
        setexec((1 << 32) - 1)
        I(f"ds_write_b64 v146, v[142:143] offset:{L_Q16}")
        setexec(1)
        I(f"ds_write_b64 v8, v[144:145] offset:{L_ZERO}"); I(f"ds_write_b64 v8, v[144:145] offset:{L_ZERO+8}")
        I("s_mov_b64 exec, -1")
        I("s_waitcnt lgkmcnt(0)")
        I("s_barrier")
        stamp(5)
        I("s_branch L_FINISH")

    a.c("================= KV waves =================")
    a.label("L_KV")
    role[0] = "kv"
    vK, vV, vT, vBQ = 8, 40, 72, 92
    vD0, vD1, vA0, vA1, vDO = 112, 116, 120, 124, 128
    vP0, vP1 = 132, 133
    vW1, vB1, vW2, vB2 = 144, 146, 148, 150
    aOW, aOR, aH3, aG3, aML, aAVw, aAVr, aREDw, aREDr, aBC, aH3B, aG3B = 151, 152, 153, 154, 155, 156, 157, 158, 159, 160, 108, 109
    aBQ = [140, 141, 142, 143]
    I(f"s_lshl_b32 s40, {sHEAD}, 21"); I(f"s_lshl_b32 s41, {sJ}, 16"); I("s_add_u32 s40, s40, s41"); I(f"s_add_u32 s40, s40, {6144*256}")
    I("s_mov_b32 s14, 65536"); I("s_mov_b32 s15, 0x20000"); I("s_mov_b32 s19, 0x20000"); I(f"s_mov_b32 {sFF}, 0xff")
    I("v_and_b32 v134, 3, v0"); I("v_lshlrev_b32 v134, 4, v134")
    I("v_bfe_u32 v135, v0, 2, 2"); I("v_lshl_or_b32 v134, v135, 8, v134"); I("v_lshl_or_b32 v134, v3, 6, v134")
    vKO, vVO = 134, 161
    rg, ri, rw = rot
    I(f"s_mul_i32 s41, {sG}, {rg}"); I(f"s_mul_i32 s43, {sI}, {ri}"); I("s_add_u32 s41, s41, s43"); I(f"s_mul_i32 s43, {sW}, {rw}"); I("s_add_u32 s41, s41, s43")
    I(f"s_lshl_b32 s42, {sW}, {10 if inter else 13}")
    args_ready()
    I(f"s_add_u32 s12, s{P_K}, s40"); I(f"s_addc_u32 s13, s{P_K+1}, 0"); I("s_and_b32 s13, s13, 0xffff")
    issued = []
    def paced(text):
        bigs = [k for k, x in enumerate(issued) if x == "big"]
        depth = D if len(bigs) < Dswitch else D2
        if len(bigs) >= depth: I(f"s_waitcnt vmcnt({len(issued) - 1 - bigs[len(bigs) - depth]})")
        issued.append("big"); I(text)
    def offs(m):
        if m: I(f"s_add_u32 s41, s41, 1")
        I("s_and_b32 s43, s41, 7"); I(f"s_lshl_b32 s43, s43, {13 if inter else 10}"); I(f"s_add_u32 {sOFF[m]}, s43, s42")
    nfirst = min(D, 8) if not kgate else 0
    if not kgate:
        if b0: I("s_barrier")
        if b0 == 'mq': I("s_barrier")
    for m in range(nfirst):
        offs(m); paced(f"buffer_load_dwordx4 v[{vK+4*m}:{vK+4*m+3}], v{vKO}, {SRD_K}, {sOFF[m]} offen {nt}")
    if not kgate: stamp(12)
    for m in range(nfirst, 8): offs(m)
    I(f"s_add_u32 s16, s{P_V}, s40"); I(f"s_addc_u32 s17, s{P_V+1}, 0"); I("s_and_b32 s17, s17, 0xffff"); I("s_mov_b32 s18, 65536")
    I("v_lshlrev_b32 v161, 4, v0")
    I(f"s_cmp_ge_u32 {sI}, 10"); I("s_cselect_b32 s41, 1, 0"); I("s_mul_i32 s42, s41, 10"); I(f"s_sub_u32 s42, {sI}, s42")
    I(f"s_lshl_b32 s40, {sG}, 1"); I("s_add_u32 s40, s40, s41"); I("s_add_u32 s99, s40, 0")
    I(f"s_mul_i32 s40, s40, {256*1280}"); I("s_lshl_b32 s42, s42, 7"); I("s_add_u32 s40, s40, s42")
    I(f"s_and_b32 s41, {sG}, 3"); I("s_mul_i32 s41, s41, 10"); I(f"s_add_u32 s41, s41, {sI}"); I("s_sub_u32 s41, s41, 20"); I("s_add_u32 s100, s41, 0")
    I("s_lshl_b32 s41, s41, 7"); I(f"s_lshr_b32 s42, {sG}, 2"); I(f"s_mul_i32 s42, s42, {320*7680}"); I("s_add_u32 s42, s42, s41"); I("s_add_u32 s42, s42, 2560")
    I(f"s_cmp_lt_u32 {sI}, 20")
    I(f"s_cselect_b32 s40, s40, s42"); I(f"s_cselect_b32 s20, s{P_WO}, s{P_WM}"); I(f"s_cselect_b32 s21, s{P_WO+1}, s{P_WM+1}")
    I(f"s_mov_b32 s22, {319*7680+128}"); I(f"s_cmov_b32 s22, {255*1280+128}"); I("s_movk_i32 s43, 7680"); I("s_cmov_b32 s43, 1280"); I("s_movk_i32 s44, 40"); I("s_cmov_b32 s44, 32")
    I(f"s_cmp_lt_u32 {sI}, 30"); I("s_cselect_b32 s40, s40, 0")
    I("s_add_u32 s20, s20, s40"); I("s_addc_u32 s21, s21, 0"); I("s_and_b32 s21, s21, 0xffff")
    I("v_bfe_u32 v110, v0, 3, 1"); I("v_lshl_add_u32 v110, v110, 2, v3"); I("v_mul_lo_u32 v110, v110, s43")
    I("v_and_b32 v137, 7, v0"); I("v_lshl_add_u32 v110, v137, 4, v110")
    vTO = 110
    I(f"s_mul_i32 s45, {sW}, s44"); I("s_mul_i32 s45, s45, s43")
    I("s_lshl_b32 s46, s43, 3")
    I(f"s_cmp_lt_u32 {sI}, {0 if 'T' in skip else 30}"); I("s_cselect_b32 s45, s45, 0"); I("s_cselect_b32 s46, s46, 0"); I("s_cselect_b32 s22, s22, 0")
    I("s_cmp_eq_u32 s44, 40"); I("s_cselect_b32 s47, 0, 0x7ff00000"); I(f"v_add_u32 v111, s47, v110")
    if kgate:
        if b0: I("s_barrier")
        if b0 == 'mq': I("s_barrier")
        for n in range(kgate):
            if n == 4:
                I("s_cmp_eq_u32 s44, 40"); I("s_cselect_b32 s47, s45, 0")
                I(f"buffer_load_dwordx4 v[{vT+4*n}:{vT+4*n+3}], v111, {SRD_A}, s47 offen {ntt}")
            else:
                I(f"buffer_load_dwordx4 v[{vT+4*n}:{vT+4*n+3}], v{vTO}, {SRD_A}, s45 offen {ntt}")
                I("s_add_u32 s45, s45, s46")
    I(f"s_mul_i32 s47, {sW}, 432"); I("v_lshlrev_b32 v137, 3, v0"); I("v_add_u32 v137, s47, v137")
    for r in range(6): I(f"v_mov_b32 v{vW1+r}, 0")
    I("v_mov_b32 v138, 0")
    masks(136 + 0 if False else 120, 82)
    I("v_lshrrev_b32 v138, 2, v2")
    I("v_and_b32 v139, 3, v2")
    for m in range(1, 4): I(f"v_cmp_eq_u32 {sQ[m]}, {m}, v139")
    I("v_lshrrev_b32 v120, 3, v2"); I("v_lshrrev_b32 v121, 1, v3"); I(f"v_cmp_eq_u32 {sRV}, v120, v121")
    I("v_and_b32 v121, 7, v2"); I("v_and_b32 v122, 1, v3"); I("v_lshl_add_u32 v121, v121, 1, v122"); I("v_lshl_add_u32 v120, v120, 4, v121"); I("v_lshlrev_b32 v120, 4, v120")
    I(f"s_mul_i32 s40, {sW}, 544"); I(f"v_add_u32 v{aREDw}, s40, v120")
    I("v_and_b32 v120, 3, v0"); I("v_mul_u32_u24 v120, 1088, v120"); I("v_lshrrev_b32 v121, 2, v0"); I(f"v_lshl_add_u32 v{aREDr}, v121, 4, v120")
    I("v_and_b32 v120, 7, v0"); I("v_mul_u32_u24 v120, 544, v120"); I("v_lshrrev_b32 v121, 3, v0"); I(f"v_lshl_add_u32 v{aOR}, v121, 4, v120")
    I(f"s_lshl_b32 s41, {sW}, 6"); I(f"v_add_u32 v{aOR}, s41, v{aOR}")
    I(f"v_lshlrev_b32 v{aH3}, 4, v121"); I(f"v_add_u32 v{aH3}, s41, v{aH3}")
    I(f"v_lshrrev_b32 v{aH3B}, 1, v{aH3}")
    I(f"v_lshl_add_u32 v{aOW}, v2, 1, v3"); I(f"v_lshlrev_b32 v{aOW}, 4, v{aOW}"); I(f"v_add_u32 v{aOW}, s40, v{aOW}")
    I("v_and_b32 v120, 31, v0"); I("v_lshrrev_b32 v121, 5, v0")
    I("s_movk_i32 s41, 3072"); I(f"v_lshlrev_b32 v{aG3}, 4, v120"); I(f"v_mad_u32_u24 v{aG3}, v121, s41, v{aG3}")
    I(f"v_lshlrev_b32 v{aG3B}, 3, v120"); I(f"v_mad_u32_u24 v{aG3B}, v121, s41, v{aG3B}")
    I(f"v_lshlrev_b32 v{aML}, 2, v121"); I(f"v_add_u32 v{aML}, v{aML}, v0"); I(f"v_and_b32 v{aML}, 7, v{aML}"); I(f"v_lshlrev_b32 v{aML}, 4, v{aML}")
    I(f"v_lshlrev_b32 v{aAVw}, 4, v120"); I(f"s_lshl_b32 s41, {sW}, 9"); I(f"v_add_u32 v{aAVw}, s41, v{aAVw}")
    I(f"s_lshl_b32 s40, {sW}, 7"); I(f"s_add_u32 s40, s40, {L_AV}")
    I(f"s_mul_i32 s41, {sW}, 160"); I(f"s_lshr_b32 s42, {sG}, 2"); I("s_mul_i32 s42, s42, 1280"); I("s_add_u32 s41, s41, s42"); I(f"s_add_u32 s41, s41, {L_SC}")
    I("s_cmp_eq_u32 s44, 40"); I("s_cselect_b32 s40, s41, s40")
    I("v_bfe_u32 v120, v0, 3, 1"); I("v_lshl_add_u32 v120, v120, 2, v3"); I(f"v_lshlrev_b32 v{aAVr}, 2, v120"); I(f"v_add_u32 v{aAVr}, s40, v{aAVr}")
    I("v_min_u32 v120, 2, v3"); I(f"s_mul_i32 s40, {sI}, 3"); I("v_add_u32 v120, s40, v120"); I("v_min_u32 v120, 79, v120")
    if bcline:
        I("v_mul_u32_u24 v121, 205, v120"); I("v_lshrrev_b32 v121, 11, v121"); I("v_mul_u32_u24 v122, 10, v121"); I("v_sub_u32 v120, v120, v122")
        I("v_lshl_add_u32 v120, v120, 3, v121")
    I(f"v_lshlrev_b32 v{aBC}, 4, v120")
    I("v_lshl_add_u32 v139, v3, 2, v139"); I(f"v_lshlrev_b32 v139, 4, v139"); I(f"v_add_u32 v139, {L_Q16}, v139"); I(f"v_mov_b32 v120, {L_ZERO}")
    for m in range(4): I(f"v_cmp_eq_u32 s[{82+2*m}:{83+2*m}], {m}, v138")
    for m in range(4): I(f"v_cndmask_b32_e64 v{aBQ[m]}, v120, v139, s[{82+2*m}:{83+2*m}]")
    I("v_mov_b32 v138, 0")
    def tail_load(n, pace):
        f = paced if pace else I
        if n == 4:
            I("s_cmp_eq_u32 s44, 40"); I("s_cselect_b32 s47, s45, 0")
            f(f"buffer_load_dwordx4 v[{vT+4*n}:{vT+4*n+3}], v111, {SRD_A}, s47 offen {ntt}")
        else:
            f(f"buffer_load_dwordx4 v[{vT+4*n}:{vT+4*n+3}], v{vTO}, {SRD_A}, s45 offen {ntt}")
            I("s_add_u32 s45, s45, s46")
    def tail_loads():
        for n in range(5): tail_load(n, False)
    nearly = {'kv': 0, 'ktv': 5, 'kt4v': 4, 'kt3v': 3}[torder]
    if kgate:
        nearly = kgate
        I("s_barrier")
        stamp(12)
    for m in range(nfirst, 8): paced(f"buffer_load_dwordx4 v[{vK+4*m}:{vK+4*m+3}], v{vKO}, {SRD_K}, {sOFF[m]} offen {nt}")
    if not kgate:
        for n in range(nearly): tail_load(n, True)
    for m in range(nvpre): paced(f"buffer_load_dwordx4 v[{vV+4*m}:{vV+4*m+3}], v{vVO}, {SRD_V}, {sOFF[m]} offen {nt}")
    def late_v():
        for m in range(nvpre, 8): I(f"buffer_load_dwordx4 v[{vV+4*m}:{vV+4*m+3}], v{vVO}, {SRD_V}, {sOFF[m]} offen {nt}")
    setexec((1 << 54) - 1)
    I(f"global_load_dwordx2 v[{vW1}:{vW1+1}], v137, s[{P_W1}:{P_W1+1}]")
    I(f"global_load_dwordx2 v[{vB1}:{vB1+1}], v137, s[{P_B1}:{P_B1+1}]")
    I(f"global_load_dwordx2 v[{vW2}:{vW2+1}], v137, s[{P_W2}:{P_W2+1}]")
    I("s_mov_b64 exec, -1")
    I(f"global_load_ushort v{vB2}, v138, s[{P_B2}:{P_B2+1}]")
    tnext = [nearly]
    early = [0]
    def tail_loads(k=99):
        if k == 99 and wofirst and early[0]:
            lg, lj = lab("tg"), lab("tj")
            I("s_cmp_eq_u32 s44, 40"); I(f"s_cbranch_scc0 {lg}")
            for n in range(nearly, nearly + early[0]): tail_load(n, False)
            a.label(lg)
        while k > 0 and tnext[0] < 5:
            if k != 99 and wofirst:
                lg = lab("tw")
                I("s_cmp_eq_u32 s44, 40"); I(f"s_cbranch_scc1 {lg}")
                tail_load(tnext[0], False); a.label(lg); early[0] += 1
            else: tail_load(tnext[0], False)
            tnext[0] += 1
            if k != 99: k -= 1
    NLATE = 5 - nearly
    NAFTER_V = 4 + NLATE
    if 'W' in skip:
        I("s_waitcnt vmcnt(4)"); stamp(13)
    stamp(1)
    if bq:
        I("s_barrier")
        late_v()
        tail_loads(tq)
    epoch()
    a.c("B1: q, placement mode and silu(c) are in LDS")
    I("s_barrier")
    stamp(2)
    for m in range(4): I(f"ds_read_b128 v[{vBQ+4*m}:{vBQ+4*m+3}], v{aBQ[m]}")
    I(f"ds_read_b32 v138, v138 offset:{L_MODE}")
    if not bq: late_v()
    if tpos == 'b1': tail_loads()
    I(f"s_waitcnt vmcnt({8 + (NAFTER_V if tpos == 'b1' else 4)})")
    I("s_waitcnt lgkmcnt(4)")
    for m in range(8):
        t = m // 4; D_ = vD0 if t == 0 else vD1
        if m in (1, 2, 3): I(f"s_waitcnt lgkmcnt({4-m})")
        c = "0" if m % 4 == 0 else f"v[{D_}:{D_+3}]"
        I(f"v_mfma_f32_16x16x32_bf16 v[{D_}:{D_+3}], v[{vK+4*m}:{vK+4*m+3}], v[{vBQ+4*(m%4)}:{vBQ+4*(m%4)+3}], {c}")
    tail_loads(tsplit[0])
    I("s_waitcnt lgkmcnt(0)")
    I(f"v_readfirstlane_b32 {sMODE}, v138")
    I(f"s_lshl_b32 s40, {sW}, 2"); I("v_mov_b32 v138, s40")
    for k in (1, 2, 3):
        for t, D_ in ((0, vD0), (1, vD1)):
            s = 134 + t
            I(f"v_cndmask_b32_e64 v{s}, v{D_ if k == 1 else s}, v{D_+k}, {sQ[k]}")
    dppreduce("v_add_f32", [134, 135], Q2)
    rbf2(134, 135, 134, 135, 136)
    I(f"v_mul_f32 v134, {hex(SCALE)}, v134"); I(f"v_mul_f32 v135, {hex(SCALE)}, v135")
    rbf2(134, 135, 134, 135, 136)
    dbgstore([134, 135], 0)
    I("v_max_f32 v136, v134, v135")
    dppreduce("v_max_f32", [136], ["row_ror:4", "row_ror:8"]); crossrow("v_max_f32", [136], [137])
    setexec(1)
    I(f"ds_write_b32 v138, v136 offset:{L_MW}")
    I("s_mov_b64 exec, -1")
    I("v_mov_b32 v137, 0")
    I("s_waitcnt lgkmcnt(0)")
    a.c("B2: per-wave score maxima")
    I("s_barrier")
    I(f"ds_read_b128 v[120:123], v137 offset:{L_MW}"); I(f"ds_read_b128 v[140:143], v137 offset:{L_MW+16}")
    tail_loads(tsplit[1])
    I("s_waitcnt lgkmcnt(0)")
    I("v_max3_f32 v136, v120, v121, v122"); I("v_max3_f32 v137, v123, v140, v141"); I("v_max3_f32 v136, v136, v142, v143"); I("v_max_f32 v136, v136, v137")
    vM = 136
    I("v_sub_f32 v134, v134, v136"); I("v_sub_f32 v135, v135, v136")
    I(f"v_mul_f32 v134, {hex(LOG2E)}, v134"); I(f"v_mul_f32 v135, {hex(LOG2E)}, v135")
    I("v_exp_f32 v134, v134"); I("v_exp_f32 v135, v135")
    I(f"v_cvt_pk_bf16_f32 v{vP0}, v134, v134"); I(f"v_cvt_pk_bf16_f32 v{vP1}, v135, v135")
    I("v_add_f32 v137, v134, v135")
    if tpos == 'p0': tail_loads()
    for m in range(8):
        P_ = vP0 if m < 4 else vP1
        for r in range(4): I(f"v_and_b32_dpp v{vK+4*m+r}, v{P_}, v{MASK[r]} row_newbcast:{4*(m%4)} {DPPM}")
    dppreduce("v_add_f32", [137], ["row_ror:4", "row_ror:8"]); crossrow("v_add_f32", [137], [139])
    setexec(1)
    I(f"ds_write_b32 v138, v137 offset:{L_LW}")
    I("s_mov_b64 exec, -1")
    I(f"s_lshr_b32 s40, {sG}, 2"); I("s_mul_i32 s40, s40, 10240"); I("s_lshl_b32 s41, s100, 8"); I("s_add_u32 s40, s40, s41"); I(f"s_add_u32 s40, s40, {RR}")
    I(f"s_mul_i32 s41, s99, 2560"); I(f"s_cmp_ge_u32 {sI}, 10"); I("s_cselect_b32 s42, 10, 0"); I(f"s_sub_u32 s42, {sI}, s42"); I("s_lshl_b32 s42, s42, 8"); I("s_add_u32 s41, s41, s42"); I(f"s_add_u32 s41, s41, {H4}")
    I("s_cmp_eq_u32 s44, 40"); I("s_cselect_b32 s100, s40, s41")
    vTB, vTG32, vC0 = 92, 93, 94
    uW1, uB1, uW2 = 96, 100, 104
    I(f"v_mov_b32 v{vTB}, {sT8}"); I(f"v_mov_b32 v{vTG32}, {sT32}")
    I(f"v_mov_b32 v{vC0}, {f2h(GC0)}"); I(f"v_mov_b32 v{vC0+1}, {f2h(GC0)}")
    I(f"s_lshl_b32 s40, {sHEAD}, 3"); I(f"s_add_u32 s40, s40, {sJ}"); I("s_mul_i32 s40, s40, 768"); I(f"s_add_u32 s40, s40, {H3}")
    I(f"s_lshl_b32 s41, {sHEAD}, 7"); I(f"s_lshl_b32 s42, {sJ}, 4"); I("s_add_u32 s41, s41, s42"); I(f"s_add_u32 s41, s41, {H3ML}")
    I("v_mov_b32 v140, 0")
    stamp(4)
    if tpos == 'p': tail_loads()
    for m in range(8):
        I(f"s_waitcnt vmcnt({(7-m) + (NAFTER_V if m < nvpre else NLATE)})")
        c = "0" if m == 0 else f"v[{vDO}:{vDO+3}]"
        I(f"v_mfma_f32_16x16x32_bf16 v[{vDO}:{vDO+3}], v[{vK+4*m}:{vK+4*m+3}], v[{vV+4*m}:{vV+4*m+3}], {c}")
    stamp(5)
    setexec((1 << 32) - 1)
    I(f"ds_write_b128 v{aOW}, v[{vDO}:{vDO+3}] offset:{L_OW}")
    I("s_mov_b64 exec, -1")
    I("s_waitcnt lgkmcnt(0)")
    a.c("B3: per-wave P*V results; wave w merges quads 4w..4w+3 and publishes them")
    I("s_barrier")
    I(f"ds_read_b128 v[24:27], v{aOR} offset:{L_OW}")
    I(f"ds_read_b128 v[40:43], v140 offset:{L_LW}"); I(f"ds_read_b128 v[44:47], v140 offset:{L_LW+16}")
    I(f"v_mov_b32 v31, v{vTG32}")
    I("s_waitcnt lgkmcnt(2)")
    dppreduce("v_add_f32", [24, 25, 26, 27], R8)
    I("v_mov_b32 v30, v27")
    I(f"v_mov_b32 v27, v{vTG32}")
    I("s_mov_b32 exec_lo, 0x01010101"); I("s_mov_b32 exec_hi, 0")
    store_mode([f"buffer_store_dwordx4 v[24:27], v{aH3}, {SRD_WS}, s40 offen", f"buffer_store_dwordx2 v[30:31], v{aH3B}, {SRD_WS}, s40 offen offset:512"])
    I("s_mov_b64 exec, -1")
    I(f"s_cmp_eq_u32 {sW}, 7"); I("s_cbranch_scc0 L_noml")
    I("s_waitcnt lgkmcnt(0)")
    I("v_add_f32 v40, v40, v41"); I("v_add_f32 v42, v42, v43"); I("v_add_f32 v44, v44, v45"); I("v_add_f32 v46, v46, v47")
    I("v_add_f32 v40, v40, v42"); I("v_add_f32 v44, v44, v46"); I("v_add_f32 v41, v40, v44")
    I(f"v_mov_b32 v40, v{vM}"); I("v_mov_b32 v42, 0"); I(f"v_mov_b32 v43, v{vTG32}")
    setexec(1)
    store_mode([f"buffer_store_dwordx4 v[40:43], v140, {SRD_WS}, s41 offen"])
    I("s_mov_b64 exec, -1")
    a.label("L_noml")
    I("s_waitcnt lgkmcnt(0)")
    stamp(6)
    a.c("----- roles -----")
    I(f"s_cmp_lt_u32 {sI}, 20"); I("s_cbranch_scc0 L_NOTWO")

    I(f"s_cmp_lt_u32 {sW}, 2"); I("s_cbranch_scc0 L_wo_b4")
    I(f"s_lshl_b32 s40, s99, 1"); I(f"s_add_u32 s40, s40, {sW}"); I("s_lshl_b32 s41, s40, 7"); I(f"s_add_u32 s41, s41, {H3ML}")
    I(f"s_mul_i32 s40, s40, {8*768}"); I(f"s_add_u32 s40, s40, {H3}")
    lds_ = [f"buffer_load_dwordx4 v[40:43], v{aML}, {SRD_WS}, s41 offen sc1"]
    for n in range(4):
        lds_.append(f"buffer_load_dwordx4 v[{24+4*n}:{27+4*n}], v{aG3}, {SRD_WS}, s40 offen offset:{768*n} sc1")
        lds_.append(f"buffer_load_dwordx2 v[{44+2*n}:{45+2*n}], v{aG3B}, {SRD_WS}, s40 offen offset:{768*n+512} sc1")
    def chk3():
        I(f"v_bitop3_b32 v52, v27, v45, v{vTG32} bitop3:0x7e"); I(f"v_bitop3_b32 v53, v31, v47, v{vTG32} bitop3:0x7e")
        I(f"v_bitop3_b32 v54, v35, v49, v{vTG32} bitop3:0x7e"); I(f"v_bitop3_b32 v55, v39, v51, v{vTG32} bitop3:0x7e")
        I(f"v_xor_b32 v56, v43, v{vTG32}"); I("v_or3_b32 v52, v52, v53, v54"); I("v_or3_b32 v52, v52, v55, v56")
        I("v_cmp_ne_u32 vcc, 0, v52")
    poll(lds_, chk3, gap=h3gap)
    stamp(7)
    I("v_mov_b32 v42, v40")
    dppreduce("v_max_f32", [42], R8)
    I("v_sub_f32 v40, v40, v42"); I(f"v_mul_f32 v40, {hex(LOG2E)}, v40"); I("v_exp_f32 v40, v40")
    I("v_mul_f32 v41, v41, v40")
    val = lambda n, c: (24 + 4*n + c) if c < 3 else (44 + 2*n)
    den = [f"v_add_f32_dpp v41, v41, v41 {m} {DPPM}" for m in R8] + ["v_rcp_f32 v41, v41"]
    for n in range(4):
        for c in range(4): I(f"v_mul_f32_dpp v{56+c}, v40, v{val(0, c)} row_newbcast:0 {DPPM}" if n == 0 else f"v_fmac_f32_dpp v{56+c}, v40, v{val(n, c)} row_newbcast:{n} {DPPM}")
        I(den[n])
    crossrow("v_add_f32", [56, 57, 58, 59], [60, 61, 62, 63], which=("v_permlane32_swap_b32",))
    for c in range(4): I(f"v_mul_f32 v{56+c}, v{56+c}, v41")
    for c in range(4): I(f"v_cvt_pk_bf16_f32 v{56+c}, v{56+c}, v{56+c}")
    dbgstore([56, 57, 58, 59], 1)
    setexec((1 << 32) - 1)
    I(f"ds_write_b128 v{aAVw}, v[56:59] offset:{L_AV}")
    I("s_mov_b64 exec, -1")
    I("s_waitcnt lgkmcnt(0)")
    a.label("L_wo_b4")
    I("s_barrier")
    a.c("tail GEMV (wo block or gate block)")
    a.label("L_GEMV")
    I(f"ds_read2_b32 v[24:25], v{aAVr} offset0:0 offset1:8"); I(f"ds_read2_b32 v[26:27], v{aAVr} offset0:16 offset1:24"); I(f"ds_read_b32 v28, v{aAVr} offset:128")
    I("v_lshrrev_b32 v20, 2, v0"); I("v_lshlrev_b32 v20, 4, v20")
    I("s_waitcnt vmcnt(0) lgkmcnt(0)")
    stamp(8)
    def ands(n):
        A_ = vA0 if n % 2 == 0 else vA1
        for r in range(4): I(f"v_and_b32 v{A_+r}, v{24+n}, v{MASK[r]}")
    def mm(n):
        A_ = vA0 if n % 2 == 0 else vA1
        c = "0" if n == 0 else f"v[{vD0}:{vD0+3}]"
        I(f"v_mfma_f32_16x16x32_bf16 v[{vD0}:{vD0+3}], v[{A_}:{A_+3}], v[{vT+4*n}:{vT+4*n+3}], {c}")
    ands(0); ands(1); mm(0); ands(2); mm(1); ands(3); mm(2); ands(4); mm(3)
    I("s_cmp_eq_u32 s44, 40"); I("s_cbranch_scc0 L_gemv4")
    mm(4)
    a.label("L_gemv4")
    a.nop(8)
    I(f"s_mov_b64 exec, {sRV}")
    I(f"ds_write_b128 v{aREDw}, v[{vD0}:{vD0+3}] offset:{L_RED}")
    I("s_mov_b64 exec, -1")
    I("s_waitcnt lgkmcnt(0)")
    I("s_barrier")
    I(f"s_cmp_eq_u32 {sW}, 0"); I("s_cbranch_scc0 L_nopub4")
    for s_, off in enumerate((0, 256, 544, 544 + 256)): I(f"ds_read_b128 v[{24+4*s_}:{27+4*s_}], v{aREDr} offset:{L_RED + off}")
    I("s_waitcnt lgkmcnt(2)")
    for c in range(4): I(f"v_add_f32 v{24+c}, v{24+c}, v{28+c}")
    I("s_waitcnt lgkmcnt(0)")
    for c in range(4): I(f"v_add_f32 v{32+c}, v{32+c}, v{36+c}")
    for c in range(4): I(f"v_add_f32 v{24+c}, v{24+c}, v{32+c}")
    dppreduce("v_add_f32", [24, 25, 26, 27], Q2)
    for c in range(4): I(f"v_bfi_b32 v{24+c}, {sFF}, v{vTB}, v{24+c}")
    I("s_mov_b32 exec_lo, 0x11111111"); I("s_mov_b32 exec_hi, 0x11111111")
    I(f"buffer_store_dwordx4 v[24:27], v20, {SRD_WS}, s100 offen sc1")
    I("s_mov_b64 exec, -1")
    stamp(9)
    a.label("L_nopub4")
    I(f"s_cmp_lt_u32 {sI}, 27"); I("s_cbranch_scc0 L_FINISH")

    a.c("----- token MLP: y[d] = sum_f gelu(t[d]*w1[f] + b1[f]) * w2[f] for 3 columns d -----")
    for base, raw in ((uW1, vW1), (uB1, vB1), (uW2, vW2)):
        for h in range(2):
            I(f"v_lshlrev_b32 v{base+2*h}, 16, v{raw+h}"); I(f"v_and_b32 v{base+2*h+1}, 0xffff0000, v{raw+h}")
    I(f"v_lshlrev_b32 v{vB2}, 16, v{vB2}")
    I(f"s_lshl_b32 s40, {sG}, 11"); I(f"s_add_u32 s40, s40, {BC}")
    I(f"s_mov_b32 s46, {f2h(GC1)}"); I(f"s_mov_b32 s47, {f2h(GC1)}")
    I("v_lshlrev_b32 v22, 7, v2"); I(f"s_lshl_b32 s41, {sW}, 4"); I("v_lshl_add_u32 v22, v3, 2, v22"); I("v_add_u32 v22, s41, v22")
    I("v_lshlrev_b32 v23, 7, v3"); I("v_lshl_add_u32 v23, v2, 2, v23"); I(f"v_add_u32 v23, {L_FIN}, v23")
    I("v_cmp_eq_u32 s[42:43], 1, v2"); I("v_cmp_eq_u32 s[44:45], 2, v2")
    I(f"s_mul_i32 s41, {sI}, 3"); I("v_add_u32 v21, s41, v3"); I("v_cmp_gt_u32 vcc, 80, v21")
    I(f"s_mul_i32 s41, {sG}, 80"); I("v_add_u32 v21, s41, v21"); I("v_lshlrev_b32 v21, 1, v21")
    I("s_and_b32 s48, vcc_lo, 0x00010001"); I("s_and_b32 s49, vcc_hi, 0x00000001")
    def chkbc(): I(f"v_cmp_ne_u32 vcc, v27, v{vTG32}")
    poll([f"buffer_load_dwordx4 v[24:27], v{aBC}, {SRD_WS}, s40 offen sc1"], chkbc, gap=bcgap)
    stamp(10)
    for d in range(3): I(f"v_readlane_b32 s{32+2*d}, v24, {16*d}")
    U = lambda d, h: 28 + 4*d + 2*h
    E = lambda d, h: 40 + 4*d + 2*h
    pr = lambda r: f"v[{r}:{r+1}]"
    DH = [(d, h) for d in range(3) for h in range(2)]
    for d, h in DH: I(f"v_pk_fma_f32 {pr(U(d,h))}, s[{32+2*d}:{33+2*d}], {pr(uW1+2*h)}, {pr(uB1+2*h)} op_sel_hi:[0,1,1]")
    for d, h in DH: I(f"v_pk_mul_f32 {pr(E(d,h))}, {pr(U(d,h))}, {pr(U(d,h))}")
    for d, h in DH: I(f"v_pk_fma_f32 {pr(E(d,h))}, {pr(E(d,h))}, s[46:47], {pr(vC0)}")
    for d, h in DH: I(f"v_pk_mul_f32 {pr(E(d,h))}, {pr(U(d,h))}, {pr(E(d,h))}")
    for d, h in DH:
        I(f"v_exp_f32 v{E(d,h)}, v{E(d,h)}"); I(f"v_exp_f32 v{E(d,h)+1}, v{E(d,h)+1}")
        I(f"v_pk_mul_f32 {pr(U(d,h))}, {pr(U(d,h))}, {pr(uW2+2*h)}")
    for d, h in DH: I(f"v_pk_add_f32 {pr(E(d,h))}, {pr(E(d,h))}, 1.0 op_sel_hi:[1,0]")
    for d, h in DH: I(f"v_rcp_f32 v{E(d,h)}, v{E(d,h)}"); I(f"v_rcp_f32 v{E(d,h)+1}, v{E(d,h)+1}")
    for d in range(3): I(f"v_pk_mul_f32 {pr(U(d,0))}, {pr(U(d,0))}, {pr(E(d,0))}")
    for d in range(3): I(f"v_pk_fma_f32 {pr(U(d,0))}, {pr(U(d,1))}, {pr(E(d,1))}, {pr(U(d,0))}")
    for d in range(3): I(f"v_add_f32 v{52+d}, v{U(d,0)}, v{U(d,0)+1}")
    dppreduce("v_add_f32", [52, 53, 54], R16)
    I("v_cndmask_b32_e64 v52, v52, v53, s[42:43]"); I("v_cndmask_b32_e64 v52, v52, v54, s[44:45]")
    I("s_mov_b32 exec_lo, 0x00070007"); I("s_mov_b32 exec_hi, 0x00070007")
    I(f"ds_write_b32 v22, v52 offset:{L_FIN}")
    I("s_mov_b64 exec, -1")
    I("s_waitcnt lgkmcnt(0)")
    I("s_barrier")
    I(f"s_cmp_eq_u32 {sW}, 0"); I("s_cbranch_scc0 L_FINISH")
    for _ in range(diagnop): I("s_nop 15")
    I("ds_read2_b32 v[32:33], v23 offset0:0 offset1:16")
    I("s_waitcnt lgkmcnt(0)")
    I("v_add_f32 v32, v32, v33")
    dppreduce("v_add_f32", [32], R16)
    I(f"v_add_f32 v32, v32, v{vB2}")
    I("v_fma_f32 v32, v26, v32, v25"); I("v_cvt_pk_bf16_f32 v32, v32, v32")
    dbgstore([24, 25, 26, 32], 2)
    I("s_mov_b64 exec, s[48:49]")
    I(f"global_store_short v21, v32, s[{P_OUT}:{P_OUT+1}] {outflag}")
    I("s_mov_b64 exec, -1")
    stamp(11)
    I("s_branch L_FINISH")

    a.c("----- gate role jumps to the GEMV; importer -----")
    a.label("L_NOTWO")
    I(f"s_cmp_lt_u32 {sI}, 30"); I("s_cbranch_scc1 L_GEMV")
    I(f"s_cmp_eq_u32 {sI}, 30"); I("s_cbranch_scc0 L_FINISH")
    I(f"s_cmp_eq_u32 {sW}, 0"); I("s_cbranch_scc0 L_imp_gather")
    I("v_mul_u32_u24 v58, 20, v0")
    I(f"global_load_dwordx4 v[60:63], v58, s[{P_X}:{P_X+1}]"); I(f"global_load_dword v64, v58, s[{P_X}:{P_X+1}] offset:16")
    for c in range(10): I(f"v_mov_b32 v{96+4*c+3}, v{vTG32}")
    I("v_lshlrev_b32 v58, 1, v58")
    I(f"s_lshl_b32 s41, {sG}, 3"); I("v_subrev_u32 v59, s41, v0"); I("v_lshlrev_b32 v59, 4, v59" if bcline else "v_mul_u32_u24 v59, 160, v59")
    I(f"s_lshl_b32 s46, {sG}, 11"); I(f"s_add_u32 s46, s46, {BC}")
    I("s_mov_b64 s[42:43], 0xff"); I("s_lshl_b64 s[42:43], s[42:43], s41")
    I("s_waitcnt vmcnt(0)")
    for n in range(5):
        I(f"v_lshlrev_b32 v{76+2*n}, 16, v{60+n}"); I(f"v_and_b32 v{77+2*n}, 0xffff0000, v{60+n}")
    I("s_branch L_imp_b4")
    a.label("L_imp_gather")
    I(f"s_cmp_lt_u32 {sW}, 6"); I("s_cbranch_scc0 L_imp_gate")
    I("v_and_b32 v20, 31, v0"); I(f"s_sub_u32 s41, {sW}, 1"); I("s_lshl_b32 s41, s41, 5"); I("v_add_u32 v20, s41, v20"); I("v_lshlrev_b32 v20, 4, v20")
    I("v_lshrrev_b32 v21, 5, v0"); I("s_movk_i32 s41, 20480"); I("v_mad_u32_u24 v21, v21, s41, v20")
    for n in range(4): I(f"s_mov_b32 s{32+n}, {H4 + 5120*n}")
    GB = lambda k: [(24, 96)[k] + 4*n for n in range(10)]
    pr_ = lambda r: f"v[{r}:{r+1}]"
    def sum8(k):
        b = GB(k)
        for st in (4, 2):
            for n in range(st):
                for h in range(2): I(f"v_pk_add_f32 {pr_(136+4*n+2*h)}, {pr_(b[n]+2*h if st == 4 else 136+4*n+2*h)}, {pr_(b[n+st]+2*h if st == 4 else 136+4*(n+st)+2*h)}")
        for h in range(2): I(f"v_pk_add_f32 {pr_(136+2*h)}, {pr_(136+2*h)}, {pr_(140+2*h)}")
    mpoll(impsets, lambda k: [f"buffer_load_dwordx4 v[{GB(k)[n]}:{GB(k)[n]+3}], v21, {SRD_WS}, s{32+n//2} offen offset:{2560*(n%2)} sc1" for n in range(8)],
          lambda k: chk24(GB(k)[:8], vTB, 66)(), sum8, impsl)
    stamp(7)
    crossrow("v_add_f32", [136, 137, 138, 139], [140, 141, 142, 143], which=("v_permlane32_swap_b32",))
    setexec((1 << 32) - 1)
    I(f"ds_write_b128 v20, v[136:139] offset:{L_IA}")
    I("s_mov_b64 exec, -1")
    I("s_branch L_imp_b4")
    a.label("L_imp_gate")
    I(f"s_sub_u32 s41, {sW}, 6"); I("s_mul_i32 s41, s41, 320"); I("v_add_u32 v20, s41, v0"); I("s_movk_i32 s40, 160")
    for n in range(5):
        I(f"v_add_u32 v{68+n}, {64*n}, v20"); I(f"v_subrev_u32 v{74+2*n}, 320, v{68+n}"); I(f"v_lshlrev_b32 v{68+n}, 4, v{68+n}")
        I(f"v_cmp_gt_u32 vcc, s40, v{74+2*n}"); I(f"v_cndmask_b32_e64 v{74+2*n}, 0, 1.0, vcc")
    I(f"s_mov_b32 s40, {RR}"); I(f"s_mov_b32 s41, {RR + 10240}")
    GG = lambda k: [(24, 96)[k] + 4*n for n in range(10)]
    def sumg(k):
        b = GG(k)
        for n in range(5):
            for h in range(2): I(f"v_pk_add_f32 {pr_(136+4*n+2*h)}, {pr_(b[n]+2*h)}, {pr_(b[n+5]+2*h)}")
    mpoll(impsets, lambda k: [f"buffer_load_dwordx4 v[{GG(k)[n]}:{GG(k)[n]+3}], v{68+n%5}, {SRD_WS}, s{40+n//5} offen sc1" for n in range(10)],
          lambda k: chk24(GG(k), vTB, 66)(), sumg, impsl)
    for n in range(5):
        for h in range(2): I(f"v_pk_add_f32 {pr_(136+4*n+2*h)}, {pr_(136+4*n+2*h)}, {pr_(74+2*n)} op_sel_hi:[1,0]")
    for n in range(5): I(f"ds_write_b128 v{68+n}, v[{136+4*n}:{139+4*n}] offset:{L_MODS}")
    a.label("L_imp_b4")
    I("s_waitcnt lgkmcnt(0)")
    I("s_barrier")
    I(f"s_cmp_eq_u32 {sW}, 0"); I("s_cbranch_scc1 L_imp_ln")
    I(f"s_lshl_b32 s40, {sW}, 3"); I(f"s_or_b32 s40, s40, {sG}"); I("s_cmp_eq_u32 s40, 8"); I("s_cbranch_scc0 L_FINISH")
    I(f"v_mov_b32 v58, 0"); setexec(1)
    I(f"buffer_store_dword v{vTG32}, v58, {SRD_WS}, 0 offen sc1")
    I("s_mov_b64 exec, -1")
    I("s_branch L_FINISH")
    a.label("L_imp_ln")
    stamp(8)
    for n in range(5): I(f"ds_read_b64 v[{24+2*n}:{25+2*n}], v58 offset:{L_IA + 8*n}")
    for n in range(5): I(f"ds_read_b64 v[{34+2*n}:{35+2*n}], v58 offset:{L_MODS + 8*n}")
    for n in range(5): I(f"ds_read_b64 v[{66+2*n}:{67+2*n}], v58 offset:{L_MODS + 5120 + 8*n}")
    for n in range(5): I(f"ds_read_b64 v[{44+2*n}:{45+2*n}], v58 offset:{L_MODS + 2560 + 8*n}")
    REC = 96
    I("s_waitcnt lgkmcnt(10)")
    for n in range(5): I(f"v_pk_fma_f32 v[{24+2*n}:{25+2*n}], v[{34+2*n}:{35+2*n}], v[{24+2*n}:{25+2*n}], v[{76+2*n}:{77+2*n}]")
    def stats(X, fill):
        I(f"v_pk_add_f32 v[54:55], v[{X}:{X+1}], v[{X+2}:{X+3}]"); I(f"v_pk_mul_f32 v[56:57], v[{X}:{X+1}], v[{X}:{X+1}]")
        for n in range(1, 5):
            if n > 1: I(f"v_pk_add_f32 v[54:55], v[54:55], v[{X+2*n}:{X+2*n+1}]")
            I(f"v_pk_fma_f32 v[56:57], v[{X+2*n}:{X+2*n+1}], v[{X+2*n}:{X+2*n+1}], v[56:57]")
        I("v_add_f32 v54, v54, v55"); I("v_add_f32 v56, v56, v57")
        steps = []
        for mod in R16: steps.append([f"v_add_f32_dpp v54, v54, v54 {mod} {DPPM}", f"v_add_f32_dpp v56, v56, v56 {mod} {DPPM}"])
        for sw in ("v_permlane16_swap_b32", "v_permlane32_swap_b32"):
            steps.append(["v_mov_b32 v55, v54", "v_mov_b32 v57, v56"])
            steps.append([f"{sw} v54, v55", f"{sw} v56, v57"])
            steps.append(["v_add_f32 v54, v54, v55", "v_add_f32 v56, v56, v57"])
        fill = list(fill)
        for st in steps:
            for s in st: I(s)
            if fill: I(fill.pop(0))
        for s in fill: I(s)
        I(f"v_mul_f32 v54, {hex(INV640)}, v54")
        I(f"v_mul_f32 v56, {hex(INV640)}, v56"); I("v_fma_f32 v56, -v54, v54, v56"); I("v_max_f32 v56, 0, v56")
        I(f"v_add_f32 v56, {hex(EPS)}, v56"); I("v_rsq_f32 v55, v56")
        I("v_mul_f32 v56, v54, v55"); I("v_mov_b32 v54, v55")
    fill1 = [f"v_mov_b32 v{REC+4*c+1}, v{24+c}" for c in range(10)]
    stats(24, fill1)
    I("s_waitcnt lgkmcnt(0)")
    for n in range(5): I(f"v_pk_fma_f32 v[{24+2*n}:{25+2*n}], v[{24+2*n}:{25+2*n}], v[54:55], v[56:57] op_sel_hi:[1,0,0] neg_lo:[0,0,1] neg_hi:[0,0,1]")
    for n in range(5): I(f"v_pk_fma_f32 v[{24+2*n}:{25+2*n}], v[{24+2*n}:{25+2*n}], v[{66+2*n}:{67+2*n}], v[{44+2*n}:{45+2*n}]")
    fill2 = [f"ds_read_b32 v{REC+4*c+2}, v58 offset:{L_MODS + 7680 + 4*c}" for c in range(10)]
    stats(24, fill2)
    for c in range(10): I(f"v_fma_f32 v{REC+4*c}, v{24+c}, v54, -v56")
    I("s_waitcnt lgkmcnt(0)")
    I("s_mov_b64 exec, s[42:43]")
    store_mode([f"buffer_store_dwordx4 v[{REC+4*c}:{REC+4*c+3}], v59, {SRD_WS}, s46 offen offset:{(128 if bcline else 16)*c}" for c in range(10)])
    I("s_mov_b64 exec, -1")
    stamp(9)
    I("s_branch L_FINISH")
    q2()
    m2()
    a.c("================= end =================")
    a.label("L_FINISH")
    if amp:
        I(f"v_readlane_b32 s40, {vST}, {amp[1]}"); I(f"v_readlane_b32 s41, {vST}, 0"); I("s_nop 3")
        if ampg:
            I("v_mov_b32 v166, 0"); I(f"global_load_dword v165, v166, s[{P_DBG}:{P_DBG+1}] sc1"); I("s_waitcnt vmcnt(0)"); I("v_readfirstlane_b32 s41, v165"); I("s_nop 3")
        I("s_cmp_eq_u32 s40, 0"); I("s_cbranch_scc1 L_ampdone")
        I("s_sub_u32 s40, s40, s41"); I(f"s_mul_i32 s40, s40, {ampk}")
        I("s_memrealtime s[42:43]"); I("s_waitcnt lgkmcnt(0)"); I("s_add_u32 s40, s40, s42")
        a.label("L_ampspin")
        I("s_sleep 2"); I("s_memrealtime s[42:43]"); I("s_waitcnt lgkmcnt(0)"); I("s_sub_u32 s43, s40, s42"); I("s_cmp_gt_i32 s43, 0"); I("s_cbranch_scc1 L_ampspin")
        a.label("L_ampdone")
    elif stamps and dbgmax is not None:
        I("s_memrealtime s[50:51]"); I("s_waitcnt lgkmcnt(0)"); I(f"v_writelane_b32 {vST}, s50, 15")
        I(f"v_readlane_b32 s50, {vST}, 0"); I("s_nop 3"); I("s_not_b32 s50, s50"); I(f"v_writelane_b32 {vST}, s50, 0")
        I(f"s_min_u32 s50, {sW}, 8") ; I(f"s_cmp_eq_u32 {sW}, 9"); I("s_cselect_b32 s50, 9, s50"); I(f"s_cmp_lt_u32 {sW}, 8"); I("s_cselect_b32 s50, 0, s50")
        I(f"s_cmp_eq_u32 s50, {dict(kv=0, q=8, m=9)[dbgmax]}"); I("s_cbranch_scc1 L_dm1")
        I(f"v_readlane_b32 s48, {vST}, 0"); I(f"v_readlane_b32 s49, {vST}, 15"); I(f"v_mov_b32 {vST}, 0"); I("s_nop 3"); I(f"v_writelane_b32 {vST}, s48, 0"); I(f"v_writelane_b32 {vST}, s49, 15")
        a.label("L_dm1")
        I("v_lshlrev_b32 v166, 2, v0"); setexec(0xffff)
        I(f"global_atomic_umax v166, {vST}, s[{P_DBG}:{P_DBG+1}]")
        I("s_mov_b64 exec, -1")
    elif stamps:
        I("s_memrealtime s[50:51]"); I("s_waitcnt lgkmcnt(0)"); I(f"v_writelane_b32 {vST}, s50, 15")
        I("s_getreg_b32 s50, hwreg(HW_REG_XCC_ID, 0, 4)"); I(f"v_writelane_b32 {vST}, s50, 16")
        I("s_lshl_b32 s50, s2, 4"); I(f"s_add_u32 s50, s50, {sW}"); I("s_lshl_b32 s50, s50, 8"); I(f"s_add_u32 s50, s50, {STP}")
        I("v_lshlrev_b32 v166, 2, v0")
        I(f"buffer_store_dword {vST}, v166, {SRD_WS}, s50 offen")
    I("s_endpgm")
    for l0, l1, texts in slow:
        a.label(l0)
        for t in texts: I(t + " sc1")
        I(f"s_branch {l1}")
    a.label("L_END")
    I("s_endpgm")
    a.raw('.section .rodata,"a"'); a.raw(".p2align 6"); a.raw(f".amdhsa_kernel {NAME}_kernel")
    a.raw("  .amdhsa_next_free_vgpr 168"); a.raw("  .amdhsa_next_free_sgpr 102"); a.raw("  .amdhsa_accum_offset 168")
    a.raw("  .amdhsa_group_segment_fixed_size 0"); a.raw("  .amdhsa_kernarg_size 120"); a.raw("  .amdhsa_user_sgpr_count 2")
    a.raw("  .amdhsa_user_sgpr_kernarg_segment_ptr 1"); a.raw("  .amdhsa_system_sgpr_workgroup_id_x 1"); a.raw(".end_amdhsa_kernel")
    return a

if __name__ == "__main__":
    kw = eval("dict(" + (sys.argv[2] if len(sys.argv) > 2 else "") + ")")
    a = gen(**kw)
    open(sys.argv[1], "w").write(a.text())
    print("instructions", a.ninstr, "nops", a.nops)
```

```python
import sys, struct
from asmdsl import Asm
NAME = "adaLN_cond__sliding_block_cached__mixer_token_mlp__decode"

XT   = 0x1000
H1   = 0xA000
H2   = 0x14000
H3   = 0x54000
H3ML = 0x94000
H4   = 0x95000
RR   = 0xA0000
BC   = 0xA6000
DBG = 0x200000
STP = 0x800000
L_SC = 0
L_H16 = 2560
L_Q16 = 2880
L_MW = 3136
L_LW = 3168
L_MODE = 3200
L_ZERO = 3216
L_OW = 3328
L_AV = 7680
L_RED = 9728
L_IA = 14080
L_MODS = 16640
L_FIN = 26880
LDS_BYTES = 27648

LOG2E = 0x3fb8aa3b
SCALE = 0x3db504f3
INV640 = 0x3acccccd
EPS = 0x3727c5ac
def f2h(x): return "0x%08x" % struct.unpack("<I", struct.pack("<f", x))[0]
GC0 = -2*0.7978845608028654*1.4426950408889634
GC1 = GC0*0.044715

DOC = """
One persistent launch: 256 workgroups (one per CU) x 10 waves.  b = workgroup id, g = b & 7 (group), i = b >> 3,
head = 4g + (i & 3), j = i >> 2 (256-key slice of the head's 2048-key window).
  waves 0..7 (KV)  stream the K and V slice into registers, scores / softmax / P*V, then the role of the workgroup:
                   i < 20       wo block (64 columns x 256 rows: two heads of the group), then the token MLP for 3 columns
                   20 <= i < 30 gate block of w_mod (64 columns x 320 rows), i < 27 also the token MLP
                   i == 30      importer: sums the wo / gate partial sums, both layernorms, broadcasts (t, x1, gb)
  wave 8 (Q)       wq rows 80j..80j+79 of the head; layernorm(x), h, partial q, exchange of q inside the head
  wave 9 (M)       silu(c); shift / scale block of w_mod (64 columns x 160 rows; groups 0..3, i < 20)
GEMVs run on v_mfma_f32_16x16x32_bf16 with the weights as they lie in memory: the vector operand is spread over the
16 rows with one non-zero element per row (masks v4..v7), so no transposition is needed.
Hand-offs between workgroups go through d_ws as self-validating 16-byte granules: every launch reads the epoch word
ws[0], uses epoch+1 as its tag, and one wave stores the tag back once all workgroups have read it.  Consumers poll the
data itself (sc1 loads) until the tags match.  Stores are write-through (sc1) across groups; inside a group they are
plain stores when a table of XCC ids shows at run time that all 32 workgroups share one XCD, write-through otherwise.
  ws layout: 0x01000 xcc ids | 0x0a000 shift/scale partials | 0x14000 partial q | 0x54000 partial o | 0x94000 (max, sum)
             0x95000 wo partials | 0xa0000 gate partials | 0xa6000 broadcast records
Every poll loop is bounded.  Rounding to bf16 follows the reference on the path c, x -> h -> q -> scores.
"""

def gen(D=3, nt="nt", ntw="nt", ntt="nt", inter=False, stamps=False, dbg=False, fast=True, prefetch=True, LIMIT=400000,
        rotmul=5, D2=3, Dswitch=8, skip='', tpos='p', dbgmax=None, nset1=1, nset2=1, sl1=12, sl2=8, mgroups=4, pfall=True, align4k=True, warm=True, tsplit=(1, 1), rot=(5, 0, 0), impsets=1, impsl=3, wofirst=True, outflag='', bq=False, tq=0, hmap=0, ampg=True, rtskip=0, bcgap=0, impgap=0, h3gap=0, bcline=True, prio=0, mskip2=False, fix='', b0='mq', torder='kv', nvpre=8, ackw1=True, ackw2=True, sl0=0, kgate=0, diagnop=0, amp=None, ampk=8):
    if amp: stamps = [amp[1] + {'kv': 0, 'q': 100, 'm': 200}[amp[0]]]
    if D2 is None: D2 = D
    a = Asm(); I = a
    uid = [0]
    def lab(p):
        uid[0] += 1
        return f"L_{p}{uid[0]}"
    sB, sW, sG, sI, sHEAD, sJ, sT32, sT8, sMODE = "s2", "s3", "s4", "s5", "s6", "s7", "s8", "s9", "s10"
    SRD_K, SRD_V, SRD_A, SRD_WS = "s[12:15]", "s[16:19]", "s[20:23]", "s[28:31]"
    sOFF = [f"s{32+m}" for m in range(8)]
    P_X, P_K, P_V, P_WQ, P_WO, P_W1, P_B1, P_W2, P_B2, P_C, P_WM, P_OUT, P_DBG, P_WS = 52, 54, 56, 58, 60, 64, 66, 68, 70, 72, 74, 76, 78, 80
    sQ = [None, "s[90:91]", "s[92:93]", "s[94:95]"]
    sRV = "s[96:97]"
    sFF = "s98"
    vST = "v167"
    role = ["kv"]
    def stamp(k):
        if not stamps: return
        key = k + {"kv": 0, "q": 100, "m": 200}[role[0]]
        if stamps is not True and key not in stamps: return
        I("s_memrealtime s[50:51]"); I("s_waitcnt lgkmcnt(0)"); I(f"v_writelane_b32 {vST}, s50, {k}")
    DPPM = "row_mask:0xf bank_mask:0xf"
    def dppreduce(op, regs, mods):
        for mod in mods:
            for r in regs: I(f"{op}_dpp v{r}, v{r}, v{r} {mod} {DPPM}")
    Q2 = ["quad_perm:[1,0,3,2]", "quad_perm:[2,3,0,1]"]
    R8 = Q2 + ["row_half_mirror"]
    R16 = Q2 + ["row_ror:4", "row_ror:8"]
    def crossrow(op, regs, tmp, which=("v_permlane16_swap_b32", "v_permlane32_swap_b32")):
        for sw in which:
            for r, t in zip(regs, tmp): I(f"v_mov_b32 v{t}, v{r}")
            for r, t in zip(regs, tmp): I(f"{sw} v{r}, v{t}")
            for r, t in zip(regs, tmp): I(f"{op} v{r}, v{r}, v{t}")
    def allreduce(op, regs, tmp):
        dppreduce(op, regs, R16); crossrow(op, regs, tmp)
    def rbf(dst, src, tmp):
        I(f"v_cvt_pk_bf16_f32 v{tmp}, v{src}, v{src}"); I(f"v_lshlrev_b32 v{dst}, 16, v{tmp}")
    def rbf2(d0, d1, s0, s1, tmp):
        I(f"v_cvt_pk_bf16_f32 v{tmp}, v{s0}, v{s1}"); I(f"v_lshlrev_b32 v{d0}, 16, v{tmp}"); I(f"v_and_b32 v{d1}, 0xffff0000, v{tmp}")
    def setexec(mask):
        lo, hi = mask & 0xffffffff, mask >> 32
        if mask == (1 << 64) - 1: I("s_mov_b64 exec, -1")
        elif hi == 0 and lo <= 64: I(f"s_mov_b64 exec, {lo}")
        else: I(f"s_mov_b32 exec_lo, {hex(lo)}"); I(f"s_mov_b32 exec_hi, {hex(hi)}")
    def masks(t0, sp):
        I(f"v_and_b32 v{t0}, 7, v0"); I(f"v_lshrrev_b32 v{t0+1}, 1, v{t0}"); I(f"v_and_b32 v{t0}, 1, v{t0}")
        I(f"v_mov_b32 v{t0+2}, 0xffff"); I(f"v_mov_b32 v{t0+3}, 0xffff0000")
        I(f"v_cmp_eq_u32 vcc, 1, v{t0}")
        for r in range(4): I(f"v_cmp_eq_u32 s[{sp+2*r}:{sp+2*r+1}], {r}, v{t0+1}")
        I(f"v_cndmask_b32 v{t0+2}, v{t0+2}, v{t0+3}, vcc")
        for r in range(4): I(f"v_cndmask_b32_e64 v{4+r}, 0, v{t0+2}, s[{sp+2*r}:{sp+2*r+1}]")
    MASK = [4, 5, 6, 7]
    def poll(loads, check, cnt="s51", gap=0):
        l0, l1 = lab("poll"), lab("pdone")
        I(f"s_mov_b32 {cnt}, 0")
        a.label(l0)
        for s in loads: I(s)
        I(f"s_add_u32 {cnt}, {cnt}, 1")
        I("s_waitcnt vmcnt(0)")
        check()
        I("s_and_b64 exec, exec, vcc")
        I(f"s_cbranch_scc0 {l1}")
        if gap:
            a.c("poll back-off: keeps the pollers from crowding the lines that are about to be written")
            I(f"s_sleep {gap}")
        I(f"s_cmp_lt_u32 {cnt}, {LIMIT}")
        I(f"s_cbranch_scc1 {l0}")
        a.label(l1)
        I("s_mov_b64 exec, -1")
    def ppoll(nset, loads, check, done, sl, cnt="s51", after_first=None):
        n = len(loads(0))
        lp = lab("pp"); ld = [lab("ppd") for _ in range(nset)]; lj = lab("ppj")
        I(f"s_mov_b32 {cnt}, 0")
        for k in range(nset):
            for s in loads(k): I(s)
            if k == 0 and after_first: after_first()
            if k < nset - 1 and sl: I(f"s_sleep {sl}")
        a.label(lp)
        for k in range(nset):
            I(f"s_waitcnt vmcnt({n*(nset-1)})")
            check(k)
            I("s_cmp_eq_u64 vcc, 0"); I(f"s_cbranch_scc1 {ld[k]}")
            for s in loads(k): I(s)
        I(f"s_add_u32 {cnt}, {cnt}, 1"); I(f"s_cmp_lt_u32 {cnt}, {LIMIT}"); I(f"s_cbranch_scc1 {lp}")
        for k in range(nset):
            a.label(ld[k]); done(k)
            if k < nset - 1: I(f"s_branch {lj}")
        a.label(lj)
    def mpoll(nset, loads, check, done, sl, cnt="s51", mregs=("s[84:85]", "s[86:87]", "s[88:89]")):
        n = len(loads(0))
        lp = lab("mp"); ld = [lab("mpd") for _ in range(nset)]; lj = lab("mpj")
        I(f"s_mov_b32 {cnt}, 0")
        for k in range(nset):
            I(f"s_mov_b64 {mregs[k]}, exec")
            for t in loads(k): I(t)
            if k < nset - 1 and sl: I(f"s_sleep {sl}")
        a.label(lp)
        for k in range(nset):
            I(f"s_mov_b64 exec, {mregs[k]}")
            I(f"s_waitcnt vmcnt({n*(nset-1)})")
            check(k)
            I(f"s_and_b64 {mregs[k]}, exec, vcc")
            I(f"s_cbranch_scc0 {ld[k]}")
            if impgap: I(f"s_sleep {impgap}")
            I(f"s_mov_b64 exec, {mregs[k]}")
            for t in loads(k): I(t)
        I(f"s_add_u32 {cnt}, {cnt}, 1"); I(f"s_cmp_lt_u32 {cnt}, {LIMIT}"); I(f"s_cbranch_scc1 {lp}")
        for k in range(nset):
            a.label(ld[k]); I("s_mov_b64 exec, -1")
            done(k)
            if k < nset - 1: I(f"s_branch {lj}")
        a.label(lj)
    def chk24(granules, vTb, t0):
        def f():
            for b in granules:
                for c in range(4): I(f"v_xor_b32 v{b+c}, v{vTb}, v{b+c}")
            first = True
            for b in granules:
                if first: I(f"v_or3_b32 v{t0}, v{b}, v{b+1}, v{b+2}"); I(f"v_or_b32 v{t0}, v{t0}, v{b+3}"); first = False
                else: I(f"v_or3_b32 v{t0}, v{t0}, v{b}, v{b+1}"); I(f"v_or3_b32 v{t0}, v{t0}, v{b+2}, v{b+3}")
            I(f"v_and_b32 v{t0}, 0xff, v{t0}"); I(f"v_cmp_ne_u32 vcc, 0, v{t0}")
        return f
    slow = []
    def store_mode(texts):
        if not fast:
            for t in texts: I(t + " sc1")
            return
        l0, l1 = lab("sl"), lab("sd")
        I(f"s_cmp_eq_u32 {sMODE}, 1"); I(f"s_cbranch_scc0 {l0}")
        for t in texts: I(t)
        a.label(l1)
        slow.append((l0, l1, texts))
    def dbgstore(regs, slot):
        if not dbg: return
        I("s_mul_i32 s50, s2, 0x4000"); I(f"s_add_u32 s50, s50, {DBG + slot*0x400}")
        I("v_lshlrev_b32 v166, 2, v0")
        for n, r in enumerate(regs): I(f"buffer_store_dword v{r}, v166, {SRD_WS}, s50 offen offset:{n*256}")
        I("s_waitcnt vmcnt(0)")
    def epoch():
        I("s_waitcnt lgkmcnt(0)")
        I(f"s_add_u32 {sT32}, {sT32}, 1"); I(f"s_and_b32 {sT8}, {sT32}, 0xff")

    NW = 10
    a.raw(open("header.txt").read().rstrip("\n"))
    a.raw(f"; @launch grid=(256,1,1) block=({64*NW},1,1) lds={LDS_BYTES}")
    for line in DOC.strip("\n").split("\n"): a.raw(("; " + line).rstrip())
    a.raw('.amdgcn_target "amdgcn-amd-amdhsa--gfx950"')
    a.raw(".text"); a.raw(f".globl {NAME}_kernel")
    if align4k: a.raw(".p2align 12")
    a.raw(".p2align 8"); a.raw(f".type {NAME}_kernel,@function"); a.raw(f"{NAME}_kernel:")
    if stamps: I("s_memrealtime s[96:97]")
    I("s_cmp_ge_u32 s2, 256"); I("s_cbranch_scc1 L_END")
    I("s_load_dwordx16 s[52:67], s[0:1], 0")
    I("s_load_dwordx8 s[68:75], s[0:1], 64")
    I("s_load_dwordx4 s[76:79], s[0:1], 96")
    I("s_load_dwordx2 s[80:81], s[0:1], 112")
    I("v_lshrrev_b32 v1, 6, v0")
    I("v_and_b32 v0, 63, v0")
    I(f"v_readfirstlane_b32 {sW}, v1")
    I(f"s_and_b32 {sG}, s2, 7"); I(f"s_lshr_b32 {sI}, s2, 3")
    if prefetch:
        I(f"s_and_b32 s46, {sI}, {0 if pfall else 7}"); I(f"s_or_b32 s46, s46, {sW}"); I("s_cmp_eq_u32 s46, 0"); I("s_cbranch_scc0 L_nopf")
        I("s_getpc_b64 s[46:47]")
        a.label("L_PC")
        I("v_lshlrev_b32 v161, 7, v0")
        for pf in range(2):
            I(f"v_add_u32 v{162+pf}, {8192*pf}, v161"); I(f"v_min_u32 v{162+pf}, L_END-L_PC, v{162+pf}")
            I(f"global_load_dword v{164+pf}, v{162+pf}, s[46:47]")
        a.label("L_nopf")
    if hmap == 0:
        I(f"s_and_b32 s11, {sI}, 3"); I(f"s_lshl_b32 {sHEAD}, {sG}, 2"); I(f"s_add_u32 {sHEAD}, {sHEAD}, s11")
        I(f"s_lshr_b32 {sJ}, {sI}, 2")
    else:
        I(f"s_lshr_b32 s11, {sI}, 3"); I(f"s_lshl_b32 {sHEAD}, {sG}, 2"); I(f"s_add_u32 {sHEAD}, {sHEAD}, s11")
        I(f"s_and_b32 {sJ}, {sI}, 7")
    I("v_and_b32 v2, 15, v0"); I("v_lshrrev_b32 v3, 4, v0")
    if stamps: I(f"v_mov_b32 {vST}, 0")
    I("s_mov_b32 s30, 0x100000" if (amp or not (dbg or stamps)) else "s_mov_b32 s30, 0x10000000"); I("s_mov_b32 s31, 0x20000")
    I("s_mov_b32 s23, 0x20000")
    def args_ready():
        I("s_waitcnt lgkmcnt(0)")
        if stamps: I(f"v_writelane_b32 {vST}, s96, 0")
        I(f"s_load_dword {sT32}, s[{P_WS}:{P_WS+1}], 0")
        I(f"s_mov_b32 s28, s{P_WS}"); I(f"s_and_b32 s29, s{P_WS+1}, 0xffff")
    I("s_mov_b32 s101, 0")
    I(f"s_cmp_lt_u32 {sW}, 8"); I("s_cbranch_scc1 L_KV0")
    I(f"s_cmp_eq_u32 {sW}, 8"); I("s_cbranch_scc1 L_QW")
    def b0b():
        if not mskip2: I("s_barrier"); return
        l = lab("nb")
        I(f"s_cmp_lt_u32 {sG}, {mgroups}"); I("s_cselect_b32 s100, 20, 0"); I(f"s_cmp_lt_u32 {sI}, s100"); I(f"s_cbranch_scc1 {l}")
        I("s_barrier"); a.label(l)
    stub = [0]
    def maybe_stub(n):
        if warm and n % 5 == 0 and stub[0] < 8:
            a.label(f"L_stub{stub[0]}"); I("s_cmp_eq_u32 s101, 1"); I("s_cbranch_scc1 L_KV"); stub[0] += 1

    role[0] = "m"
    vM_ = 12
    CR, C0, vTG, cA0, cA1, cD0, cD1 = 156, 132, 147, 148, 152, 156, 160
    rows = 640 // mgroups
    nld = rows // 8
    a.c("================= M wave: issue part =================")
    a.label("L_MW")
    if prio: I(f"s_setprio {prio}")
    I(f"s_cmp_lt_u32 {sG}, {mgroups}"); I("s_cselect_b32 s40, 20, 0"); I(f"s_cmp_lt_u32 {sI}, s40"); I("s_cselect_b32 s47, 1, 0")
    I("s_cbranch_scc1 L_mgo")
    I(f"s_sub_u32 s40, {sI}, 20"); I("s_cmp_lt_u32 s40, 10"); I("s_cbranch_scc1 L_MGATE")
    if stamps: args_ready()
    I("s_branch L_FINISH")
    a.label("L_mgo")
    I(f"s_mul_i32 s42, {sG}, {rows*7680}"); I(f"s_lshl_b32 s43, {sI}, 7"); I("s_add_u32 s42, s42, s43")
    I("v_bfe_u32 v10, v0, 3, 1"); I("v_lshl_add_u32 v10, v10, 2, v3"); I("s_movk_i32 s43, 7680"); I("v_mul_lo_u32 v10, v10, s43")
    I("v_and_b32 v11, 7, v0"); I("v_lshl_add_u32 v10, v11, 4, v10")
    I(f"v_min_u32 v8, {rows//4 - 1}, v0"); I("v_lshlrev_b32 v8, 3, v8"); I(f"s_mul_i32 s43, {sG}, {rows*2}"); I("v_add_u32 v8, s43, v8")
    I(f"s_mov_b32 s22, {0 if 'M' in skip else (rows-1)*7680+128}"); I(f"s_mov_b32 s49, {0 if 'M' in skip else 8*7680}"); I("s_mov_b32 s44, 0")
    args_ready()
    I(f"global_load_dwordx2 v[{CR}:{CR+1}], v8, s[{P_C}:{P_C+1}]")
    I(f"s_add_u32 s20, s{P_WM}, s42"); I(f"s_addc_u32 s21, s{P_WM+1}, 0"); I("s_and_b32 s21, s21, 0xffff")
    for n in range(nld):
        I(f"buffer_load_dwordx4 v[{vM_+4*n}:{vM_+4*n+3}], v10, {SRD_A}, s44 offen {ntw}")
        if n < nld - 1:
            I(f"s_add_u32 s44, s44, s49")
            maybe_stub(n + 1)
    if b0: I("s_barrier")
    if b0 == 'mq' and not mskip2: I("s_barrier")
    I("s_branch L_M2")
    a.c("================= Q wave: issue part =================")
    a.label("L_QW")
    if prio: I(f"s_setprio {prio}")
    role[0] = "q"
    NRB = mgroups
    vQ = 52
    XR, vTG, cA0, cA1, cD0, XQ = 142, 147, 148, 152, 156, 164
    I("v_mul_u32_u24 v8, 20, v0")
    I(f"s_mul_i32 s42, {sJ}, 160"); I("v_min_u32 v9, 19, v0"); I("v_lshlrev_b32 v9, 3, v9"); I("v_add_u32 v9, s42, v9")
    I(f"s_mul_i32 s42, {sJ}, {80*8192}"); I(f"s_lshl_b32 s43, {sHEAD}, 8"); I("s_add_u32 s42, s42, s43")
    I(f"s_mov_b32 s22, {0 if 'Q' in skip else 79*8192+256}")
    I("v_lshlrev_b32 v11, 13, v3"); I("v_lshl_add_u32 v11, v2, 4, v11")
    I("s_mov_b32 s44, 0")
    I(f"s_mov_b32 s49, {0 if 'Q' in skip else 4*8192}")
    args_ready()
    I(f"global_load_dwordx4 v[{XR}:{XR+3}], v8, s[{P_X}:{P_X+1}]"); I(f"global_load_dword v{XR+4}, v8, s[{P_X}:{P_X+1}] offset:16")
    I(f"global_load_dwordx2 v[{XQ}:{XQ+1}], v9, s[{P_X}:{P_X+1}]")
    I(f"s_add_u32 s20, s{P_WQ}, s42"); I(f"s_addc_u32 s21, s{P_WQ+1}, 0"); I("s_and_b32 s21, s21, 0xffff")
    if b0 in ('m', 'mq'): I("s_barrier")
    for m in range(20):
        I(f"buffer_load_dwordx4 v[{vQ+4*m}:{vQ+4*m+3}], v11, {SRD_A}, s44 offen {nt}")
        if m < 19:
            I(f"s_add_u32 s44, s44, s49")
            maybe_stub(m + 1)
    if b0 == 'mq': b0b()
    elif b0 == 'both': I("s_barrier")
    I("s_branch L_Q2")
    def m2():
        role[0] = 'm'
        vTG, cA0, cA1, cD0, cD1 = 147, 148, 152, 156, 160
        a.label('L_M2')
        stamp(11)
        masks(148, 32)
        def silu(vals, raw_t):
            for k in range(0, len(vals), 2):
                cs = vals[k:k+2]
                t = {c: raw_t + 4*n for n, c in enumerate(cs)}
                for c in cs: I(f"v_mul_f32 v{t[c]}, {hex(LOG2E ^ 0x80000000)}, v{c}")
                for c in cs: I(f"v_exp_f32 v{t[c]}, v{t[c]}")
                for c in cs: I(f"v_add_f32 v{t[c]}, 1.0, v{t[c]}")
                for c in cs: I(f"v_rcp_f32 v{t[c]+1}, v{t[c]}")
                for c in cs: I(f"v_mul_f32 v{t[c]+2}, v{c}, v{t[c]+1}")
                for c in cs: I(f"v_fma_f32 v{t[c]+3}, -v{t[c]+2}, v{t[c]}, v{c}")
                for c in cs: I(f"v_fma_f32 v{t[c]+2}, v{t[c]+3}, v{t[c]+1}, v{t[c]+2}")
                for c in cs: I(f"v_cvt_pk_bf16_f32 v{c}, v{t[c]+2}, v{t[c]+2}")
        I(f"v_lshlrev_b32 v9, 4, v0"); I(f"s_mul_i32 s42, {sG}, {rows*4}"); I("v_add_u32 v9, s42, v9")
        I("v_bfe_u32 v8, v0, 3, 1"); I("v_lshl_add_u32 v8, v8, 2, v3"); I("v_lshlrev_b32 v8, 2, v8"); I("v_add_u32 v8, s42, v8")
        I(f"s_waitcnt vmcnt({nld})")
        stamp(6)
        for n in range(2):
            I(f"v_lshlrev_b32 v{C0+2*n}, 16, v{CR+n}"); I(f"v_and_b32 v{C0+2*n+1}, 0xffff0000, v{CR+n}")
        silu([C0, C0+1, C0+2, C0+3], 148)
        setexec((1 << (rows//4)) - 1)
        I(f"ds_write_b128 v9, v[{C0}:{C0+3}] offset:{L_SC}")
        I("s_mov_b64 exec, -1")
        I("s_waitcnt lgkmcnt(0)")
        stamp(7)
        AV = 112
        for n in range(0, nld, 2): I(f"ds_read2_b32 v[{AV+n}:{AV+n+1}], v8 offset0:{8*n} offset1:{8*n+8}")
        epoch()
        I(f"v_mov_b32 v{vTG}, {sT32}")
        I("v_lshrrev_b32 v9, 3, v2"); I("v_lshrrev_b32 v10, 1, v3"); I("v_cmp_eq_u32 s[42:43], v9, v10")
        I("v_and_b32 v9, 7, v2"); I("v_and_b32 v10, 1, v3"); I("v_lshl_add_u32 v9, v9, 1, v10"); I("v_lshlrev_b32 v8, 4, v9"); I("v_lshlrev_b32 v9, 3, v9")
        I(f"s_mul_i32 s44, {sG}, 7680"); I(f"s_add_u32 s44, s44, {H1}"); I(f"s_lshl_b32 s45, {sI}, 7"); I("s_add_u32 s45, s45, s44"); I("s_add_u32 s45, s45, 5120")
        I(f"s_lshl_b32 s40, {sI}, 8"); I("s_add_u32 s44, s44, s40")
        for n in range(nld):
            A_ = cA0 if n % 2 == 0 else cA1
            for r in range(4): I(f"v_and_b32 v{A_+r}, v{AV+n}, v{MASK[r]}")
            I(f"s_waitcnt vmcnt({nld - 1 - n})")
            c = "0" if n == 0 else f"v[{cD0}:{cD0+3}]"
            I(f"v_mfma_f32_16x16x32_bf16 v[{cD0}:{cD0+3}], v[{A_}:{A_+3}], v[{vM_+4*n}:{vM_+4*n+3}], {c}")
        stamp(8)
        I(f"v_mov_b32 v137, v{vTG}")
        for c in range(4): I(f"v_cndmask_b32_e64 v{132+c}, 0, v{cD0+c}, s[42:43]")
        dppreduce("v_add_f32", [132, 133, 134, 135], ["row_ror:8"])
        crossrow("v_add_f32", [132, 133, 134, 135], [138, 139, 140, 141], which=("v_permlane32_swap_b32",))
        I(f"v_mov_b32 v136, v135"); I(f"v_mov_b32 v135, v{vTG}")
        setexec(0x00ff00ff)
        I(f"buffer_store_dwordx4 v[132:135], v8, {SRD_WS}, s44 offen sc1")
        I(f"buffer_store_dwordx2 v[136:137], v9, {SRD_WS}, s45 offen sc1")
        I("s_mov_b64 exec, -1")
        stamp(1)
        I("s_branch L_FINISH")
        a.label("L_MGATE")
        I("v_mul_u32_u24 v8, 20, v0")
        args_ready()
        I(f"global_load_dwordx4 v[{CR}:{CR+3}], v8, s[{P_C}:{P_C+1}]"); I(f"global_load_dword v{CR+4}, v8, s[{P_C}:{P_C+1}] offset:16")
        if b0: I("s_barrier")
        if b0 == 'mq': I("s_barrier")
        I("s_waitcnt vmcnt(0)")
        for n in range(5):
            I(f"v_lshlrev_b32 v{C0+2*n}, 16, v{CR+n}"); I(f"v_and_b32 v{C0+2*n+1}, 0xffff0000, v{CR+n}")
        silu([C0+c for c in range(10)], 148)
        I("v_lshlrev_b32 v8, 1, v8")
        for n in range(5): I(f"ds_write_b64 v8, v[{C0+2*n}:{C0+2*n+1}] offset:{L_SC + 8*n}")
        I("s_waitcnt lgkmcnt(0)")
        I("s_branch L_FINISH")

    def q2():
        role[0] = 'q'
        vTG, cA0, cA1, cD0 = 147, 148, 152, 156
        a.label('L_Q2')
        stamp(11)
        masks(148, 32)
        if amp and ampg:
            I("s_cmp_eq_u32 s2, 0"); I("s_cbranch_scc0 L_noref")
            I("v_mov_b32 v166, 0"); setexec(1); I(f"global_store_dword v166, {vST}, s[{P_DBG}:{P_DBG+1}] sc1"); I("s_mov_b64 exec, -1"); I("s_waitcnt vmcnt(21)") if False else None
            a.label("L_noref")
        I("s_getreg_b32 s45, hwreg(HW_REG_XCC_ID, 0, 4)")
        epoch()
        I(f"s_lshl_b32 s46, {sT32}, 4"); I("s_or_b32 s47, s46, s45")
        I("v_mov_b32 v163, s47"); I(f"s_lshl_b32 s48, {sG}, 12"); I(f"s_lshl_b32 s49, {sI}, 7"); I("s_add_u32 s48, s48, s49"); I(f"s_add_u32 s48, s48, {XT}"); I("v_mov_b32 v9, 0")
        setexec(1)
        I(f"buffer_store_dword v163, v9, {SRD_WS}, s48 offen sc1")
        I("s_mov_b64 exec, -1")
        I(f"v_mov_b32 v{vTG}, {sT32}")
        I("s_waitcnt vmcnt(20)")
        stamp(6)
        X0 = 132
        for n in range(5):
            I(f"v_lshlrev_b32 v{X0+2*n}, 16, v{XR+n}"); I(f"v_and_b32 v{X0+2*n+1}, 0xffff0000, v{XR+n}")
        I(f"v_add_f32 v148, v{X0}, v{X0+1}")
        for c in range(2, 10): I(f"v_add_f32 v148, v148, v{X0+c}")
        allreduce("v_add_f32", [148], [149])
        I(f"v_mul_f32 v148, {hex(INV640)}, v148")
        I(f"v_sub_f32 v149, v{X0}, v148"); I("v_mul_f32 v150, v149, v149")
        for c in range(1, 10): I(f"v_sub_f32 v149, v{X0+c}, v148"); I("v_fmac_f32 v150, v149, v149")
        allreduce("v_add_f32", [150], [149])
        I(f"v_mul_f32 v150, {hex(INV640)}, v150")
        rbf2(148, 150, 148, 150, 149)
        I(f"v_add_f32 v150, {hex(EPS)}, v150"); rbf(150, 150, 149)
        I("v_sqrt_f32 v150, v150"); rbf(150, 150, 149)
        I("v_rcp_f32 v151, v150")
        vZ = 48
        for h in range(2):
            I(f"v_lshlrev_b32 v{vZ+2*h}, 16, v{XQ+h}"); I(f"v_and_b32 v{vZ+2*h+1}, 0xffff0000, v{XQ+h}")
        for c in range(4): I(f"v_sub_f32 v{vZ+c}, v{vZ+c}, v148")
        rbf2(vZ, vZ+1, vZ, vZ+1, 149); rbf2(vZ+2, vZ+3, vZ+2, vZ+3, 149)
        for c in range(4):
            I(f"v_mul_f32 v152, v{vZ+c}, v151"); I(f"v_fma_f32 v153, -v152, v150, v{vZ+c}"); I(f"v_fma_f32 v{vZ+c}, v153, v151, v152")
        rbf2(vZ, vZ+1, vZ, vZ+1, 149); rbf2(vZ+2, vZ+3, vZ+2, vZ+3, 149)
        stamp(7)
        I("v_min_u32 v8, 39, v0"); I(f"s_mul_i32 s42, {sJ}, 20"); I("v_add_u32 v9, s42, v8")
        I("v_cmp_lt_u32 vcc, 19, v8"); I("v_add_u32 v10, 140, v9"); I("v_cndmask_b32 v9, v9, v10, vcc"); I("v_lshlrev_b32 v10, 3, v9"); I("v_add_u32 v10, 5120, v10"); I("v_lshlrev_b32 v9, 4, v9")
        I("v_and_b32 v8, 31, v0"); I("v_lshlrev_b32 v8, 7, v8"); I(f"s_lshl_b32 s42, {sG}, 12"); I(f"s_add_u32 s42, s42, {XT}")
        for rb in range(NRB): I(f"s_mov_b32 s{32+rb}, {H1 + 7680*rb}")
        I(f"s_and_b32 s43, {sT32}, 0x0fffffff")
        SETSZ = 6*NRB
        assert 12 + SETSZ*nset1 <= 48 or (nset1 == 1 and NRB == 8 and False)
        G1 = lambda k: 12 + SETSZ*k
        XR1 = lambda k: 160 + k
        def ld1(k):
            out = [f"buffer_load_dword v{XR1(k)}, v8, {SRD_WS}, s42 offen sc1"]
            for rb in range(NRB):
                b = G1(k) + 6*rb
                out.append(f"buffer_load_dwordx4 v[{b}:{b+3}], v9, {SRD_WS}, s{32+rb} offen sc1")
                out.append(f"buffer_load_dwordx2 v[{b+4}:{b+5}], v10, {SRD_WS}, s{32+rb} offen sc1")
            return out
        def ck1(k):
            I(f"v_lshrrev_b32 v132, 4, v{XR1(k)}"); I("v_xor_b32 v132, s43, v132")
            for rb in range(NRB):
                b = G1(k) + 6*rb
                I(f"v_bitop3_b32 v133, v{b+3}, v{b+5}, v{vTG} bitop3:0x7e"); I("v_or_b32 v132, v132, v133")
            I("v_cmp_ne_u32 vcc, 0, v132")
        def dn1(k):
            for c in range(4):
                src = (lambda rb: G1(k) + 6*rb + (c if c < 3 else 4))
                I(f"v_add_f32 v{136+c}, v{src(0)}, v{src(1)}")
                for rb in range(2, NRB): I(f"v_add_f32 v{136+c}, v{136+c}, v{src(rb)}")
            I(f"v_mov_b32 v140, v{XR1(k)}")
        if ackw1 == 'q': I("s_waitcnt vmcnt(1)")
        elif ackw1 == 'rt':
            I("s_waitcnt vmcnt(1)")
            if rtskip: I(f"s_cmp_ge_u32 {sG}, {rtskip}"); I("s_cbranch_scc1 L_nort")
            I("v_mov_b32 v147, 0"); setexec(1)
            I(f"buffer_store_dword v163, v147, {SRD_WS}, s48 offen sc1")
            I("s_mov_b64 exec, -1"); I(f"v_mov_b32 v{vTG}, {sT32}"); I("s_waitcnt vmcnt(0)")
            if rtskip: a.label("L_nort")
        elif ackw1: I("s_waitcnt vmcnt(0)")
        if sl0: I(f"s_sleep {sl0}")
        stamp(8)
        setexec((1 << 40) - 1)
        ppoll(nset1, ld1, ck1, dn1, sl1, after_first=(lambda: I("s_barrier")) if kgate else None)
        I("s_mov_b64 exec, -1")
        if stamps and not amp: I(f"v_writelane_b32 {vST}, s51, 12")
        stamp(2)
        setexec((1 << 32) - 1)
        I("v_cmp_ne_u32 vcc, s47, v140")
        I("s_mov_b64 exec, -1")
        I("s_cmp_eq_u64 vcc, 0"); I(f"s_cselect_b32 {sMODE}, 1, 0")
        if not fast: I(f"s_mov_b32 {sMODE}, 0")
        rbf2(136, 137, 136, 137, 132); rbf2(138, 139, 138, 139, 132)
        I("v_add_u32 v8, 20, v0"); I("v_lshlrev_b32 v8, 2, v8")
        for c in range(4): I(f"ds_bpermute_b32 v{140+c}, v8, v{136+c}")
        I(f"v_mov_b32 v144, {sMODE}"); I(f"v_mov_b32 v145, 0")
        setexec(1); I(f"ds_write_b32 v145, v144 offset:{L_MODE}")
        I("s_mov_b64 exec, -1")
        I("v_lshlrev_b32 v146, 4, v0"); I(f"v_lshlrev_b32 v36, 2, v3"); I(f"v_add_u32 v36, {L_H16}, v36")
        I("s_waitcnt lgkmcnt(0)")
        for c in range(4): I(f"v_add_f32 v{140+c}, 1.0, v{140+c}")
        rbf2(140, 141, 140, 141, 132); rbf2(142, 143, 142, 143, 132)
        for c in range(4): I(f"v_mul_f32 v{140+c}, v{vZ+c}, v{140+c}")
        rbf2(140, 141, 140, 141, 132); rbf2(142, 143, 142, 143, 132)
        for c in range(4): I(f"v_add_f32 v{140+c}, v{140+c}, v{136+c}")
        for c in range(4): I(f"v_cvt_pk_bf16_f32 v{140+c}, v{140+c}, v{140+c}")
        dbgstore([140, 141, 142, 143], 3)
        setexec((1 << 20) - 1)
        I(f"ds_write_b128 v146, v[140:143] offset:{L_H16}")
        I("s_mov_b64 exec, -1")
        I("s_waitcnt lgkmcnt(0)")
        HP = [(132, 133), (134, 135), (136, 137), (138, 139), (140, 141), (142, 143), (144, 145), (48, 49), (50, 51), (164, 165)]
        for n in range(10): I(f"ds_read2_b32 v[{HP[n][0]}:{HP[n][1]}], v36 offset0:{8*n} offset1:{8*n+4}")
        I("v_lshl_add_u32 v8, v2, 1, v3"); I("v_lshlrev_b32 v11, 3, v8"); I("v_lshlrev_b32 v8, 4, v8")
        I(f"s_lshl_b32 s42, {sHEAD}, 3"); I(f"s_add_u32 s43, s42, {sJ}"); I("s_mul_i32 s43, s43, 768"); I(f"s_add_u32 s43, s43, {H2}")
        I("s_waitcnt lgkmcnt(0)")
        for m in range(20):
            A_ = cA0 if m % 2 == 0 else cA1
            for r in range(4): I(f"v_and_b32 v{A_+r}, v{HP[m//2][m%2]}, v{MASK[r]}")
            c = "0" if m == 0 else f"v[{cD0}:{cD0+3}]"
            I(f"v_mfma_f32_16x16x32_bf16 v[{cD0}:{cD0+3}], v[{A_}:{A_+3}], v[{vQ+4*m}:{vQ+4*m+3}], {c}")
        I(f"v_mov_b32 v135, v{vTG}"); I(f"v_mov_b32 v137, v{vTG}")
        I("v_and_b32 v146, 31, v0"); I("v_lshrrev_b32 v138, 5, v0"); I("s_movk_i32 s44, 3072")
        I("v_lshlrev_b32 v9, 4, v146"); I("v_mad_u32_u24 v9, v138, s44, v9"); I("v_lshlrev_b32 v10, 3, v146"); I("v_mad_u32_u24 v10, v138, s44, v10")
        I(f"s_mul_i32 s42, s42, 768"); I(f"s_add_u32 s42, s42, {H2}")
        for c in range(3): I(f"v_mov_b32 v{132+c}, v{cD0+c}")
        I(f"v_mov_b32 v136, v{cD0+3}")
        setexec((1 << 32) - 1)
        store_mode([f"buffer_store_dwordx4 v[132:135], v8, {SRD_WS}, s43 offen", f"buffer_store_dwordx2 v[136:137], v11, {SRD_WS}, s43 offen offset:512"])
        I("s_mov_b64 exec, -1")
        stamp(3)
        G2 = lambda k: vQ + 24*k
        def ld2(k):
            out = []
            for n in range(4):
                b = G2(k) + 6*n
                out.append(f"buffer_load_dwordx4 v[{b}:{b+3}], v9, {SRD_WS}, s42 offen offset:{768*n} sc1")
                out.append(f"buffer_load_dwordx2 v[{b+4}:{b+5}], v10, {SRD_WS}, s42 offen offset:{768*n+512} sc1")
            return out
        def ck2(k):
            for n in range(4): I(f"v_bitop3_b32 v{138+n}, v{G2(k)+6*n+3}, v{G2(k)+6*n+5}, v{vTG} bitop3:0x7e")
            I("v_or3_b32 v138, v138, v139, v140"); I("v_or_b32 v138, v138, v141"); I("v_cmp_ne_u32 vcc, 0, v138")
        def dn2(k):
            for c in range(4):
                src = (lambda n: G2(k) + 6*n + (c if c < 3 else 4))
                I(f"v_add_f32 v{138+c}, v{src(0)}, v{src(1)}"); I(f"v_add_f32 v{142+c}, v{src(2)}, v{src(3)}")
        if ackw2 is True: I("s_waitcnt vmcnt(0)")
        elif ackw2:
            a.c("poll back-off: the other seven partial sums of the head are stored at about the same moment; a poll that comes too early costs a full queue latency")
            I(f"s_sleep {ackw2}")
        stamp(9)
        ppoll(nset2, ld2, ck2, dn2, sl2, after_first=(lambda: I("s_barrier")) if bq else None)
        if stamps and not amp: I(f"v_writelane_b32 {vST}, s51, 13")
        stamp(4)
        for c in range(4): I(f"v_add_f32 v{138+c}, v{138+c}, v{142+c}")
        crossrow("v_add_f32", [138, 139, 140, 141], [142, 143, 144, 145], which=("v_permlane32_swap_b32",))
        I("v_cvt_pk_bf16_f32 v142, v138, v139"); I("v_cvt_pk_bf16_f32 v143, v140, v141")
        dbgstore([142, 143], 4)
        I("v_lshlrev_b32 v146, 3, v146")
        I("v_mov_b32 v144, 0"); I("v_mov_b32 v145, 0"); I("v_mov_b32 v8, 0")
        setexec((1 << 32) - 1)
        I(f"ds_write_b64 v146, v[142:143] offset:{L_Q16}")
        setexec(1)
        I(f"ds_write_b64 v8, v[144:145] offset:{L_ZERO}"); I(f"ds_write_b64 v8, v[144:145] offset:{L_ZERO+8}")
        I("s_mov_b64 exec, -1")
        I("s_waitcnt lgkmcnt(0)")
        I("s_barrier")
        stamp(5)
        I("s_branch L_FINISH")

    a.c("================= KV waves =================")
    a.label("L_KV0")
    if warm:
        I("s_mov_b32 s101, 1")
        for k in range(6):
            I(f"s_cmp_eq_u32 {sW}, {k}"); I(f"s_cbranch_scc1 L_stub{k}")
    a.label("L_KV")
    role[0] = "kv"
    vK, vV, vT, vBQ = 8, 40, 72, 92
    vD0, vD1, vA0, vA1, vDO = 112, 116, 120, 124, 128
    vP0, vP1 = 132, 133
    vW1, vB1, vW2, vB2 = 144, 146, 148, 150
    aOW, aOR, aH3, aG3, aML, aAVw, aAVr, aREDw, aREDr, aBC, aH3B, aG3B = 151, 152, 153, 154, 155, 156, 157, 158, 159, 160, 108, 109
    aBQ = [140, 141, 142, 143]
    I(f"s_lshl_b32 s40, {sHEAD}, 21"); I(f"s_lshl_b32 s41, {sJ}, 16"); I("s_add_u32 s40, s40, s41"); I(f"s_add_u32 s40, s40, {6144*256}")
    I("s_mov_b32 s14, 65536"); I("s_mov_b32 s15, 0x20000"); I("s_mov_b32 s19, 0x20000"); I(f"s_mov_b32 {sFF}, 0xff")
    I("v_and_b32 v134, 3, v0"); I("v_lshlrev_b32 v134, 4, v134")
    I("v_bfe_u32 v135, v0, 2, 2"); I("v_lshl_or_b32 v134, v135, 8, v134"); I("v_lshl_or_b32 v134, v3, 6, v134")
    vKO, vVO = 134, 161
    rg, ri, rw = rot
    I(f"s_mul_i32 s41, {sG}, {rg}"); I(f"s_mul_i32 s43, {sI}, {ri}"); I("s_add_u32 s41, s41, s43"); I(f"s_mul_i32 s43, {sW}, {rw}"); I("s_add_u32 s41, s41, s43")
    I(f"s_lshl_b32 s42, {sW}, {10 if inter else 13}")
    args_ready()
    I(f"s_add_u32 s12, s{P_K}, s40"); I(f"s_addc_u32 s13, s{P_K+1}, 0"); I("s_and_b32 s13, s13, 0xffff")
    issued = []
    def paced(text):
        bigs = [k for k, x in enumerate(issued) if x == "big"]
        depth = D if len(bigs) < Dswitch else D2
        if len(bigs) >= depth: I(f"s_waitcnt vmcnt({len(issued) - 1 - bigs[len(bigs) - depth]})")
        issued.append("big"); I(text)
    def offs(m):
        if m: I(f"s_add_u32 s41, s41, 1")
        I("s_and_b32 s43, s41, 7"); I(f"s_lshl_b32 s43, s43, {13 if inter else 10}"); I(f"s_add_u32 {sOFF[m]}, s43, s42")
    nfirst = min(D, 8) if not kgate else 0
    if not kgate:
        if b0: I("s_barrier")
        if b0 == 'mq': b0b()
    for m in range(nfirst):
        offs(m); paced(f"buffer_load_dwordx4 v[{vK+4*m}:{vK+4*m+3}], v{vKO}, {SRD_K}, {sOFF[m]} offen {nt}")
    if not kgate: stamp(12)
    for m in range(nfirst, 8): offs(m)
    I(f"s_add_u32 s16, s{P_V}, s40"); I(f"s_addc_u32 s17, s{P_V+1}, 0"); I("s_and_b32 s17, s17, 0xffff"); I("s_mov_b32 s18, 65536")
    I("v_lshlrev_b32 v161, 4, v0")
    I(f"s_cmp_ge_u32 {sI}, 10"); I("s_cselect_b32 s41, 1, 0"); I("s_mul_i32 s42, s41, 10"); I(f"s_sub_u32 s42, {sI}, s42")
    I(f"s_lshl_b32 s40, {sG}, 1"); I("s_add_u32 s40, s40, s41"); I("s_add_u32 s99, s40, 0")
    I(f"s_mul_i32 s40, s40, {256*1280}"); I("s_lshl_b32 s42, s42, 7"); I("s_add_u32 s40, s40, s42")
    I(f"s_and_b32 s41, {sG}, 3"); I("s_mul_i32 s41, s41, 10"); I(f"s_add_u32 s41, s41, {sI}"); I("s_sub_u32 s41, s41, 20"); I("s_add_u32 s100, s41, 0")
    I("s_lshl_b32 s41, s41, 7"); I(f"s_lshr_b32 s42, {sG}, 2"); I(f"s_mul_i32 s42, s42, {320*7680}"); I("s_add_u32 s42, s42, s41"); I("s_add_u32 s42, s42, 2560")
    I(f"s_cmp_lt_u32 {sI}, 20")
    I(f"s_cselect_b32 s40, s40, s42"); I(f"s_cselect_b32 s20, s{P_WO}, s{P_WM}"); I(f"s_cselect_b32 s21, s{P_WO+1}, s{P_WM+1}")
    I(f"s_mov_b32 s22, {319*7680+128}"); I(f"s_cmov_b32 s22, {255*1280+128}"); I("s_movk_i32 s43, 7680"); I("s_cmov_b32 s43, 1280"); I("s_movk_i32 s44, 40"); I("s_cmov_b32 s44, 32")
    I(f"s_cmp_lt_u32 {sI}, 30"); I("s_cselect_b32 s40, s40, 0")
    I("s_add_u32 s20, s20, s40"); I("s_addc_u32 s21, s21, 0"); I("s_and_b32 s21, s21, 0xffff")
    I("v_bfe_u32 v110, v0, 3, 1"); I("v_lshl_add_u32 v110, v110, 2, v3"); I("v_mul_lo_u32 v110, v110, s43")
    I("v_and_b32 v137, 7, v0"); I("v_lshl_add_u32 v110, v137, 4, v110")
    vTO = 110
    I(f"s_mul_i32 s45, {sW}, s44"); I("s_mul_i32 s45, s45, s43")
    I("s_lshl_b32 s46, s43, 3")
    I(f"s_cmp_lt_u32 {sI}, {0 if 'T' in skip else 30}"); I("s_cselect_b32 s45, s45, 0"); I("s_cselect_b32 s46, s46, 0"); I("s_cselect_b32 s22, s22, 0")
    I("s_cmp_eq_u32 s44, 40"); I("s_cselect_b32 s47, 0, 0x7ff00000"); I(f"v_add_u32 v111, s47, v110")
    if kgate:
        if b0: I("s_barrier")
        if b0 == 'mq': I("s_barrier")
        for n in range(kgate):
            if n == 4:
                I("s_cmp_eq_u32 s44, 40"); I("s_cselect_b32 s47, s45, 0")
                I(f"buffer_load_dwordx4 v[{vT+4*n}:{vT+4*n+3}], v111, {SRD_A}, s47 offen {ntt}")
            else:
                I(f"buffer_load_dwordx4 v[{vT+4*n}:{vT+4*n+3}], v{vTO}, {SRD_A}, s45 offen {ntt}")
                I("s_add_u32 s45, s45, s46")
    I(f"s_mul_i32 s47, {sW}, 432"); I("v_lshlrev_b32 v137, 3, v0"); I("v_add_u32 v137, s47, v137")
    for r in range(6): I(f"v_mov_b32 v{vW1+r}, 0")
    I("v_mov_b32 v138, 0")
    masks(136 + 0 if False else 120, 82)
    I("v_lshrrev_b32 v138, 2, v2")
    I("v_and_b32 v139, 3, v2")
    for m in range(1, 4): I(f"v_cmp_eq_u32 {sQ[m]}, {m}, v139")
    I("v_lshrrev_b32 v120, 3, v2"); I("v_lshrrev_b32 v121, 1, v3"); I(f"v_cmp_eq_u32 {sRV}, v120, v121")
    I("v_and_b32 v121, 7, v2"); I("v_and_b32 v122, 1, v3"); I("v_lshl_add_u32 v121, v121, 1, v122"); I("v_lshl_add_u32 v120, v120, 4, v121"); I("v_lshlrev_b32 v120, 4, v120")
    I(f"s_mul_i32 s40, {sW}, 544"); I(f"v_add_u32 v{aREDw}, s40, v120")
    I("v_and_b32 v120, 3, v0"); I("v_mul_u32_u24 v120, 1088, v120"); I("v_lshrrev_b32 v121, 2, v0"); I(f"v_lshl_add_u32 v{aREDr}, v121, 4, v120")
    I("v_and_b32 v120, 7, v0"); I("v_mul_u32_u24 v120, 544, v120"); I("v_lshrrev_b32 v121, 3, v0"); I(f"v_lshl_add_u32 v{aOR}, v121, 4, v120")
    I(f"s_lshl_b32 s41, {sW}, 6"); I(f"v_add_u32 v{aOR}, s41, v{aOR}")
    I(f"v_lshlrev_b32 v{aH3}, 4, v121"); I(f"v_add_u32 v{aH3}, s41, v{aH3}")
    I(f"v_lshrrev_b32 v{aH3B}, 1, v{aH3}")
    I(f"v_lshl_add_u32 v{aOW}, v2, 1, v3"); I(f"v_lshlrev_b32 v{aOW}, 4, v{aOW}"); I(f"v_add_u32 v{aOW}, s40, v{aOW}")
    I("v_and_b32 v120, 31, v0"); I("v_lshrrev_b32 v121, 5, v0")
    I("s_movk_i32 s41, 3072"); I(f"v_lshlrev_b32 v{aG3}, 4, v120"); I(f"v_mad_u32_u24 v{aG3}, v121, s41, v{aG3}")
    I(f"v_lshlrev_b32 v{aG3B}, 3, v120"); I(f"v_mad_u32_u24 v{aG3B}, v121, s41, v{aG3B}")
    I(f"v_lshlrev_b32 v{aML}, 2, v121"); I(f"v_add_u32 v{aML}, v{aML}, v0"); I(f"v_and_b32 v{aML}, 7, v{aML}"); I(f"v_lshlrev_b32 v{aML}, 4, v{aML}")
    I(f"v_lshlrev_b32 v{aAVw}, 4, v120"); I(f"s_lshl_b32 s41, {sW}, 9"); I(f"v_add_u32 v{aAVw}, s41, v{aAVw}")
    I(f"s_lshl_b32 s40, {sW}, 7"); I(f"s_add_u32 s40, s40, {L_AV}")
    I(f"s_mul_i32 s41, {sW}, 160"); I(f"s_lshr_b32 s42, {sG}, 2"); I("s_mul_i32 s42, s42, 1280"); I("s_add_u32 s41, s41, s42"); I(f"s_add_u32 s41, s41, {L_SC}")
    I("s_cmp_eq_u32 s44, 40"); I("s_cselect_b32 s40, s41, s40")
    I("v_bfe_u32 v120, v0, 3, 1"); I("v_lshl_add_u32 v120, v120, 2, v3"); I(f"v_lshlrev_b32 v{aAVr}, 2, v120"); I(f"v_add_u32 v{aAVr}, s40, v{aAVr}")
    I("v_min_u32 v120, 2, v3"); I(f"s_mul_i32 s40, {sI}, 3"); I("v_add_u32 v120, s40, v120"); I("v_min_u32 v120, 79, v120")
    if bcline:
        I("v_mul_u32_u24 v121, 205, v120"); I("v_lshrrev_b32 v121, 11, v121"); I("v_mul_u32_u24 v122, 10, v121"); I("v_sub_u32 v120, v120, v122")
        I("v_lshl_add_u32 v120, v120, 3, v121")
    I(f"v_lshlrev_b32 v{aBC}, 4, v120")
    I("v_lshl_add_u32 v139, v3, 2, v139"); I(f"v_lshlrev_b32 v139, 4, v139"); I(f"v_add_u32 v139, {L_Q16}, v139"); I(f"v_mov_b32 v120, {L_ZERO}")
    for m in range(4): I(f"v_cmp_eq_u32 s[{82+2*m}:{83+2*m}], {m}, v138")
    for m in range(4): I(f"v_cndmask_b32_e64 v{aBQ[m]}, v120, v139, s[{82+2*m}:{83+2*m}]")
    I("v_mov_b32 v138, 0")
    def tail_load(n, pace):
        f = paced if pace else I
        if n == 4:
            I("s_cmp_eq_u32 s44, 40"); I("s_cselect_b32 s47, s45, 0")
            f(f"buffer_load_dwordx4 v[{vT+4*n}:{vT+4*n+3}], v111, {SRD_A}, s47 offen {ntt}")
        else:
            f(f"buffer_load_dwordx4 v[{vT+4*n}:{vT+4*n+3}], v{vTO}, {SRD_A}, s45 offen {ntt}")
            I("s_add_u32 s45, s45, s46")
    def tail_loads():
        for n in range(5): tail_load(n, False)
    nearly = {'kv': 0, 'ktv': 5, 'kt4v': 4, 'kt3v': 3}[torder]
    if kgate:
        nearly = kgate
        I("s_barrier")
        stamp(12)
    for m in range(nfirst, 8): paced(f"buffer_load_dwordx4 v[{vK+4*m}:{vK+4*m+3}], v{vKO}, {SRD_K}, {sOFF[m]} offen {nt}")
    if not kgate:
        for n in range(nearly): tail_load(n, True)
    for m in range(nvpre): paced(f"buffer_load_dwordx4 v[{vV+4*m}:{vV+4*m+3}], v{vVO}, {SRD_V}, {sOFF[m]} offen {nt}")
    def late_v():
        for m in range(nvpre, 8): I(f"buffer_load_dwordx4 v[{vV+4*m}:{vV+4*m+3}], v{vVO}, {SRD_V}, {sOFF[m]} offen {nt}")
    setexec((1 << 54) - 1)
    I(f"global_load_dwordx2 v[{vW1}:{vW1+1}], v137, s[{P_W1}:{P_W1+1}]")
    I(f"global_load_dwordx2 v[{vB1}:{vB1+1}], v137, s[{P_B1}:{P_B1+1}]")
    I(f"global_load_dwordx2 v[{vW2}:{vW2+1}], v137, s[{P_W2}:{P_W2+1}]")
    I("s_mov_b64 exec, -1")
    I(f"global_load_ushort v{vB2}, v138, s[{P_B2}:{P_B2+1}]")
    tnext = [nearly]
    early = [0]
    def tail_loads(k=99):
        if k == 99 and wofirst and early[0]:
            lg, lj = lab("tg"), lab("tj")
            I("s_cmp_eq_u32 s44, 40"); I(f"s_cbranch_scc0 {lg}")
            p0 = a.pos
            for n in range(nearly, nearly + early[0]): tail_load(n, False)
            a.label(lg)
            a.pos = p0
        while k > 0 and tnext[0] < 5:
            if k != 99 and wofirst:
                lg = lab("tw")
                I("s_cmp_eq_u32 s44, 40"); I(f"s_cbranch_scc1 {lg}")
                p0 = a.pos
                tail_load(tnext[0], False); a.label(lg); early[0] += 1
                a.pos = p0
            else: tail_load(tnext[0], False)
            tnext[0] += 1
            if k != 99: k -= 1
    NLATE = 5 - nearly
    NAFTER_V = 4 + NLATE
    if 'W' in skip:
        I("s_waitcnt vmcnt(4)"); stamp(13)
    stamp(1)
    if bq:
        I("s_barrier")
        late_v()
        tail_loads(tq)
    epoch()
    a.c("B1: q, placement mode and silu(c) are in LDS")
    I("s_barrier")
    stamp(2)
    for m in range(4): I(f"ds_read_b128 v[{vBQ+4*m}:{vBQ+4*m+3}], v{aBQ[m]}")
    I(f"ds_read_b32 v138, v138 offset:{L_MODE}")
    if not bq: late_v()
    if tpos == 'b1': tail_loads()
    I(f"s_waitcnt vmcnt({8 + (NAFTER_V if tpos == 'b1' else 4)})")
    I("s_waitcnt lgkmcnt(4)")
    for m in range(8):
        t = m // 4; D_ = vD0 if t == 0 else vD1
        if m in (1, 2, 3): I(f"s_waitcnt lgkmcnt({4-m})")
        c = "0" if m % 4 == 0 else f"v[{D_}:{D_+3}]"
        I(f"v_mfma_f32_16x16x32_bf16 v[{D_}:{D_+3}], v[{vK+4*m}:{vK+4*m+3}], v[{vBQ+4*(m%4)}:{vBQ+4*(m%4)+3}], {c}")
    tail_loads(tsplit[0])
    I("s_waitcnt lgkmcnt(0)")
    I(f"v_readfirstlane_b32 {sMODE}, v138")
    I(f"s_lshl_b32 s40, {sW}, 2"); I("v_mov_b32 v138, s40")
    for k in (1, 2, 3):
        for t, D_ in ((0, vD0), (1, vD1)):
            s = 134 + t
            I(f"v_cndmask_b32_e64 v{s}, v{D_ if k == 1 else s}, v{D_+k}, {sQ[k]}")
    dppreduce("v_add_f32", [134, 135], Q2)
    rbf2(134, 135, 134, 135, 136)
    I(f"v_mul_f32 v134, {hex(SCALE)}, v134"); I(f"v_mul_f32 v135, {hex(SCALE)}, v135")
    rbf2(134, 135, 134, 135, 136)
    dbgstore([134, 135], 0)
    I("v_max_f32 v136, v134, v135")
    dppreduce("v_max_f32", [136], ["row_ror:4", "row_ror:8"]); crossrow("v_max_f32", [136], [137])
    setexec(1)
    I(f"ds_write_b32 v138, v136 offset:{L_MW}")
    I("s_mov_b64 exec, -1")
    I("v_mov_b32 v137, 0")
    I("s_waitcnt lgkmcnt(0)")
    a.c("B2: per-wave score maxima")
    I("s_barrier")
    I(f"ds_read_b128 v[120:123], v137 offset:{L_MW}"); I(f"ds_read_b128 v[140:143], v137 offset:{L_MW+16}")
    tail_loads(tsplit[1])
    I("s_waitcnt lgkmcnt(0)")
    I("v_max3_f32 v136, v120, v121, v122"); I("v_max3_f32 v137, v123, v140, v141"); I("v_max3_f32 v136, v136, v142, v143"); I("v_max_f32 v136, v136, v137")
    vM = 136
    I("v_sub_f32 v134, v134, v136"); I("v_sub_f32 v135, v135, v136")
    I(f"v_mul_f32 v134, {hex(LOG2E)}, v134"); I(f"v_mul_f32 v135, {hex(LOG2E)}, v135")
    I("v_exp_f32 v134, v134"); I("v_exp_f32 v135, v135")
    I(f"v_cvt_pk_bf16_f32 v{vP0}, v134, v134"); I(f"v_cvt_pk_bf16_f32 v{vP1}, v135, v135")
    I("v_add_f32 v137, v134, v135")
    if tpos == 'p0': tail_loads()
    for m in range(8):
        P_ = vP0 if m < 4 else vP1
        for r in range(4): I(f"v_and_b32_dpp v{vK+4*m+r}, v{P_}, v{MASK[r]} row_newbcast:{4*(m%4)} {DPPM}")
    dppreduce("v_add_f32", [137], ["row_ror:4", "row_ror:8"]); crossrow("v_add_f32", [137], [139])
    setexec(1)
    I(f"ds_write_b32 v138, v137 offset:{L_LW}")
    I("s_mov_b64 exec, -1")
    I(f"s_lshr_b32 s40, {sG}, 2"); I("s_mul_i32 s40, s40, 10240"); I("s_lshl_b32 s41, s100, 8"); I("s_add_u32 s40, s40, s41"); I(f"s_add_u32 s40, s40, {RR}")
    I(f"s_mul_i32 s41, s99, 2560"); I(f"s_cmp_ge_u32 {sI}, 10"); I("s_cselect_b32 s42, 10, 0"); I(f"s_sub_u32 s42, {sI}, s42"); I("s_lshl_b32 s42, s42, 8"); I("s_add_u32 s41, s41, s42"); I(f"s_add_u32 s41, s41, {H4}")
    I("s_cmp_eq_u32 s44, 40"); I("s_cselect_b32 s100, s40, s41")
    vTB, vTG32, vC0 = 92, 93, 94
    uW1, uB1, uW2 = 96, 100, 104
    I(f"v_mov_b32 v{vTB}, {sT8}"); I(f"v_mov_b32 v{vTG32}, {sT32}")
    I(f"v_mov_b32 v{vC0}, {f2h(GC0)}"); I(f"v_mov_b32 v{vC0+1}, {f2h(GC0)}")
    I(f"s_lshl_b32 s40, {sHEAD}, 3"); I(f"s_add_u32 s40, s40, {sJ}"); I("s_mul_i32 s40, s40, 768"); I(f"s_add_u32 s40, s40, {H3}")
    I(f"s_lshl_b32 s41, {sHEAD}, 7"); I(f"s_lshl_b32 s42, {sJ}, 4"); I("s_add_u32 s41, s41, s42"); I(f"s_add_u32 s41, s41, {H3ML}")
    I("v_mov_b32 v140, 0")
    stamp(4)
    if tpos == 'p': tail_loads()
    for m in range(8):
        I(f"s_waitcnt vmcnt({(7-m) + (NAFTER_V if m < nvpre else NLATE)})")
        c = "0" if m == 0 else f"v[{vDO}:{vDO+3}]"
        I(f"v_mfma_f32_16x16x32_bf16 v[{vDO}:{vDO+3}], v[{vK+4*m}:{vK+4*m+3}], v[{vV+4*m}:{vV+4*m+3}], {c}")
    stamp(5)
    setexec((1 << 32) - 1)
    I(f"ds_write_b128 v{aOW}, v[{vDO}:{vDO+3}] offset:{L_OW}")
    I("s_mov_b64 exec, -1")
    I("s_waitcnt lgkmcnt(0)")
    a.c("B3: per-wave P*V results; wave w merges quads 4w..4w+3 and publishes them")
    I("s_barrier")
    I(f"ds_read_b128 v[24:27], v{aOR} offset:{L_OW}")
    I(f"ds_read_b128 v[40:43], v140 offset:{L_LW}"); I(f"ds_read_b128 v[44:47], v140 offset:{L_LW+16}")
    I(f"v_mov_b32 v31, v{vTG32}")
    I("s_waitcnt lgkmcnt(2)")
    dppreduce("v_add_f32", [24, 25, 26, 27], R8)
    I("v_mov_b32 v30, v27")
    I(f"v_mov_b32 v27, v{vTG32}")
    I("s_mov_b32 exec_lo, 0x01010101"); I("s_mov_b32 exec_hi, 0")
    store_mode([f"buffer_store_dwordx4 v[24:27], v{aH3}, {SRD_WS}, s40 offen", f"buffer_store_dwordx2 v[30:31], v{aH3B}, {SRD_WS}, s40 offen offset:512"])
    I("s_mov_b64 exec, -1")
    I(f"s_cmp_eq_u32 {sW}, 7"); I("s_cbranch_scc0 L_noml")
    I("s_waitcnt lgkmcnt(0)")
    I("v_add_f32 v40, v40, v41"); I("v_add_f32 v42, v42, v43"); I("v_add_f32 v44, v44, v45"); I("v_add_f32 v46, v46, v47")
    I("v_add_f32 v40, v40, v42"); I("v_add_f32 v44, v44, v46"); I("v_add_f32 v41, v40, v44")
    I(f"v_mov_b32 v40, v{vM}"); I("v_mov_b32 v42, 0"); I(f"v_mov_b32 v43, v{vTG32}")
    setexec(1)
    store_mode([f"buffer_store_dwordx4 v[40:43], v140, {SRD_WS}, s41 offen"])
    I("s_mov_b64 exec, -1")
    a.label("L_noml")
    I("s_waitcnt lgkmcnt(0)")
    stamp(6)
    a.c("----- roles -----")
    I(f"s_cmp_lt_u32 {sI}, 20"); I("s_cbranch_scc0 L_NOTWO")

    I(f"s_cmp_lt_u32 {sW}, 2"); I("s_cbranch_scc0 L_wo_b4")
    I(f"s_lshl_b32 s40, s99, 1"); I(f"s_add_u32 s40, s40, {sW}"); I("s_lshl_b32 s41, s40, 7"); I(f"s_add_u32 s41, s41, {H3ML}")
    I(f"s_mul_i32 s40, s40, {8*768}"); I(f"s_add_u32 s40, s40, {H3}")
    lds_ = [f"buffer_load_dwordx4 v[40:43], v{aML}, {SRD_WS}, s41 offen sc1"]
    for n in range(4):
        lds_.append(f"buffer_load_dwordx4 v[{24+4*n}:{27+4*n}], v{aG3}, {SRD_WS}, s40 offen offset:{768*n} sc1")
        lds_.append(f"buffer_load_dwordx2 v[{44+2*n}:{45+2*n}], v{aG3B}, {SRD_WS}, s40 offen offset:{768*n+512} sc1")
    def chk3():
        I(f"v_bitop3_b32 v52, v27, v45, v{vTG32} bitop3:0x7e"); I(f"v_bitop3_b32 v53, v31, v47, v{vTG32} bitop3:0x7e")
        I(f"v_bitop3_b32 v54, v35, v49, v{vTG32} bitop3:0x7e"); I(f"v_bitop3_b32 v55, v39, v51, v{vTG32} bitop3:0x7e")
        I(f"v_xor_b32 v56, v43, v{vTG32}"); I("v_or3_b32 v52, v52, v53, v54"); I("v_or3_b32 v52, v52, v55, v56")
        I("v_cmp_ne_u32 vcc, 0, v52")
    poll(lds_, chk3, gap=h3gap)
    stamp(7)
    I("v_mov_b32 v42, v40")
    dppreduce("v_max_f32", [42], R8)
    I("v_sub_f32 v40, v40, v42"); I(f"v_mul_f32 v40, {hex(LOG2E)}, v40"); I("v_exp_f32 v40, v40")
    I("v_mul_f32 v41, v41, v40")
    val = lambda n, c: (24 + 4*n + c) if c < 3 else (44 + 2*n)
    den = [f"v_add_f32_dpp v41, v41, v41 {m} {DPPM}" for m in R8] + ["v_rcp_f32 v41, v41"]
    for n in range(4):
        for c in range(4): I(f"v_mul_f32_dpp v{56+c}, v40, v{val(0, c)} row_newbcast:0 {DPPM}" if n == 0 else f"v_fmac_f32_dpp v{56+c}, v40, v{val(n, c)} row_newbcast:{n} {DPPM}")
        I(den[n])
    crossrow("v_add_f32", [56, 57, 58, 59], [60, 61, 62, 63], which=("v_permlane32_swap_b32",))
    for c in range(4): I(f"v_mul_f32 v{56+c}, v{56+c}, v41")
    for c in range(4): I(f"v_cvt_pk_bf16_f32 v{56+c}, v{56+c}, v{56+c}")
    dbgstore([56, 57, 58, 59], 1)
    setexec((1 << 32) - 1)
    I(f"ds_write_b128 v{aAVw}, v[56:59] offset:{L_AV}")
    I("s_mov_b64 exec, -1")
    I("s_waitcnt lgkmcnt(0)")
    a.label("L_wo_b4")
    I("s_barrier")
    a.c("tail GEMV (wo block or gate block)")
    a.label("L_GEMV")
    I(f"ds_read2_b32 v[24:25], v{aAVr} offset0:0 offset1:8"); I(f"ds_read2_b32 v[26:27], v{aAVr} offset0:16 offset1:24"); I(f"ds_read_b32 v28, v{aAVr} offset:128")
    I("v_lshrrev_b32 v20, 2, v0"); I("v_lshlrev_b32 v20, 4, v20")
    I("s_waitcnt vmcnt(0) lgkmcnt(0)")
    stamp(8)
    def ands(n):
        A_ = vA0 if n % 2 == 0 else vA1
        for r in range(4): I(f"v_and_b32 v{A_+r}, v{24+n}, v{MASK[r]}")
    def mm(n):
        A_ = vA0 if n % 2 == 0 else vA1
        c = "0" if n == 0 else f"v[{vD0}:{vD0+3}]"
        I(f"v_mfma_f32_16x16x32_bf16 v[{vD0}:{vD0+3}], v[{A_}:{A_+3}], v[{vT+4*n}:{vT+4*n+3}], {c}")
    ands(0); ands(1); mm(0); ands(2); mm(1); ands(3); mm(2); ands(4); mm(3)
    I("s_cmp_eq_u32 s44, 40"); I("s_cbranch_scc0 L_gemv4")
    mm(4)
    a.label("L_gemv4")
    a.nop(8)
    I(f"s_mov_b64 exec, {sRV}")
    I(f"ds_write_b128 v{aREDw}, v[{vD0}:{vD0+3}] offset:{L_RED}")
    I("s_mov_b64 exec, -1")
    I("s_waitcnt lgkmcnt(0)")
    I("s_barrier")
    I(f"s_cmp_eq_u32 {sW}, 0"); I("s_cbranch_scc0 L_nopub4")
    for s_, off in enumerate((0, 256, 544, 544 + 256)): I(f"ds_read_b128 v[{24+4*s_}:{27+4*s_}], v{aREDr} offset:{L_RED + off}")
    I("s_waitcnt lgkmcnt(2)")
    for c in range(4): I(f"v_add_f32 v{24+c}, v{24+c}, v{28+c}")
    I("s_waitcnt lgkmcnt(0)")
    for c in range(4): I(f"v_add_f32 v{32+c}, v{32+c}, v{36+c}")
    for c in range(4): I(f"v_add_f32 v{24+c}, v{24+c}, v{32+c}")
    dppreduce("v_add_f32", [24, 25, 26, 27], Q2)
    for c in range(4): I(f"v_bfi_b32 v{24+c}, {sFF}, v{vTB}, v{24+c}")
    I("s_mov_b32 exec_lo, 0x11111111"); I("s_mov_b32 exec_hi, 0x11111111")
    I(f"buffer_store_dwordx4 v[24:27], v20, {SRD_WS}, s100 offen sc1")
    I("s_mov_b64 exec, -1")
    stamp(9)
    a.label("L_nopub4")
    I(f"s_cmp_lt_u32 {sI}, 27"); I("s_cbranch_scc0 L_FINISH")

    a.c("----- token MLP: y[d] = sum_f gelu(t[d]*w1[f] + b1[f]) * w2[f] for 3 columns d -----")
    for base, raw in ((uW1, vW1), (uB1, vB1), (uW2, vW2)):
        for h in range(2):
            I(f"v_lshlrev_b32 v{base+2*h}, 16, v{raw+h}"); I(f"v_and_b32 v{base+2*h+1}, 0xffff0000, v{raw+h}")
    I(f"v_lshlrev_b32 v{vB2}, 16, v{vB2}")
    I(f"s_lshl_b32 s40, {sG}, 11"); I(f"s_add_u32 s40, s40, {BC}")
    I(f"s_mov_b32 s46, {f2h(GC1)}"); I(f"s_mov_b32 s47, {f2h(GC1)}")
    I("v_lshlrev_b32 v22, 7, v2"); I(f"s_lshl_b32 s41, {sW}, 4"); I("v_lshl_add_u32 v22, v3, 2, v22"); I("v_add_u32 v22, s41, v22")
    I("v_lshlrev_b32 v23, 7, v3"); I("v_lshl_add_u32 v23, v2, 2, v23"); I(f"v_add_u32 v23, {L_FIN}, v23")
    I("v_cmp_eq_u32 s[42:43], 1, v2"); I("v_cmp_eq_u32 s[44:45], 2, v2")
    I(f"s_mul_i32 s41, {sI}, 3"); I("v_add_u32 v21, s41, v3"); I("v_cmp_gt_u32 vcc, 80, v21")
    I(f"s_mul_i32 s41, {sG}, 80"); I("v_add_u32 v21, s41, v21"); I("v_lshlrev_b32 v21, 1, v21")
    I("s_and_b32 s48, vcc_lo, 0x00010001"); I("s_and_b32 s49, vcc_hi, 0x00000001")
    def chkbc(): I(f"v_cmp_ne_u32 vcc, v27, v{vTG32}")
    poll([f"buffer_load_dwordx4 v[24:27], v{aBC}, {SRD_WS}, s40 offen sc1"], chkbc, gap=bcgap)
    stamp(10)
    for d in range(3): I(f"v_readlane_b32 s{32+2*d}, v24, {16*d}")
    U = lambda d, h: 28 + 4*d + 2*h
    E = lambda d, h: 40 + 4*d + 2*h
    pr = lambda r: f"v[{r}:{r+1}]"
    DH = [(d, h) for d in range(3) for h in range(2)]
    for d, h in DH: I(f"v_pk_fma_f32 {pr(U(d,h))}, s[{32+2*d}:{33+2*d}], {pr(uW1+2*h)}, {pr(uB1+2*h)} op_sel_hi:[0,1,1]")
    for d, h in DH: I(f"v_pk_mul_f32 {pr(E(d,h))}, {pr(U(d,h))}, {pr(U(d,h))}")
    for d, h in DH: I(f"v_pk_fma_f32 {pr(E(d,h))}, {pr(E(d,h))}, s[46:47], {pr(vC0)}")
    for d, h in DH: I(f"v_pk_mul_f32 {pr(E(d,h))}, {pr(U(d,h))}, {pr(E(d,h))}")
    for d, h in DH:
        I(f"v_exp_f32 v{E(d,h)}, v{E(d,h)}"); I(f"v_exp_f32 v{E(d,h)+1}, v{E(d,h)+1}")
        I(f"v_pk_mul_f32 {pr(U(d,h))}, {pr(U(d,h))}, {pr(uW2+2*h)}")
    for d, h in DH: I(f"v_pk_add_f32 {pr(E(d,h))}, {pr(E(d,h))}, 1.0 op_sel_hi:[1,0]")
    for d, h in DH: I(f"v_rcp_f32 v{E(d,h)}, v{E(d,h)}"); I(f"v_rcp_f32 v{E(d,h)+1}, v{E(d,h)+1}")
    for d in range(3): I(f"v_pk_mul_f32 {pr(U(d,0))}, {pr(U(d,0))}, {pr(E(d,0))}")
    for d in range(3): I(f"v_pk_fma_f32 {pr(U(d,0))}, {pr(U(d,1))}, {pr(E(d,1))}, {pr(U(d,0))}")
    for d in range(3): I(f"v_add_f32 v{52+d}, v{U(d,0)}, v{U(d,0)+1}")
    dppreduce("v_add_f32", [52, 53, 54], R16)
    I("v_cndmask_b32_e64 v52, v52, v53, s[42:43]"); I("v_cndmask_b32_e64 v52, v52, v54, s[44:45]")
    I("s_mov_b32 exec_lo, 0x00070007"); I("s_mov_b32 exec_hi, 0x00070007")
    I(f"ds_write_b32 v22, v52 offset:{L_FIN}")
    I("s_mov_b64 exec, -1")
    I("s_waitcnt lgkmcnt(0)")
    I("s_barrier")
    I(f"s_cmp_eq_u32 {sW}, 0"); I("s_cbranch_scc0 L_FINISH")
    for _ in range(diagnop): I("s_nop 15")
    I("ds_read2_b32 v[32:33], v23 offset0:0 offset1:16")
    I("s_waitcnt lgkmcnt(0)")
    I("v_add_f32 v32, v32, v33")
    dppreduce("v_add_f32", [32], R16)
    I(f"v_add_f32 v32, v32, v{vB2}")
    I("v_fma_f32 v32, v26, v32, v25"); I("v_cvt_pk_bf16_f32 v32, v32, v32")
    dbgstore([24, 25, 26, 32], 2)
    I("s_mov_b64 exec, s[48:49]")
    I(f"global_store_short v21, v32, s[{P_OUT}:{P_OUT+1}] {outflag}")
    I("s_mov_b64 exec, -1")
    stamp(11)
    I("s_branch L_FINISH")

    a.c("----- gate role jumps to the GEMV; importer -----")
    a.label("L_NOTWO")
    I(f"s_cmp_lt_u32 {sI}, 30"); I("s_cbranch_scc1 L_GEMV")
    I(f"s_cmp_eq_u32 {sI}, 30"); I("s_cbranch_scc0 L_FINISH")
    I("s_waitcnt vmcnt(0)")
    I(f"s_cmp_eq_u32 {sW}, 0"); I("s_cbranch_scc0 L_imp_gather")
    I("v_mul_u32_u24 v58, 20, v0")
    I(f"global_load_dwordx4 v[60:63], v58, s[{P_X}:{P_X+1}]"); I(f"global_load_dword v64, v58, s[{P_X}:{P_X+1}] offset:16")
    for c in range(10): I(f"v_mov_b32 v{96+4*c+3}, v{vTG32}")
    I("v_lshlrev_b32 v58, 1, v58")
    I(f"s_lshl_b32 s41, {sG}, 3"); I("v_subrev_u32 v59, s41, v0"); I("v_lshlrev_b32 v59, 4, v59" if bcline else "v_mul_u32_u24 v59, 160, v59")
    I(f"s_lshl_b32 s46, {sG}, 11"); I(f"s_add_u32 s46, s46, {BC}")
    I("s_mov_b64 s[42:43], 0xff"); I("s_lshl_b64 s[42:43], s[42:43], s41")
    I("s_waitcnt vmcnt(0)")
    for n in range(5):
        I(f"v_lshlrev_b32 v{76+2*n}, 16, v{60+n}"); I(f"v_and_b32 v{77+2*n}, 0xffff0000, v{60+n}")
    I("s_branch L_imp_b4")
    a.label("L_imp_gather")
    I(f"s_cmp_lt_u32 {sW}, 6"); I("s_cbranch_scc0 L_imp_gate")
    I("v_and_b32 v20, 31, v0"); I(f"s_sub_u32 s41, {sW}, 1"); I("s_lshl_b32 s41, s41, 5"); I("v_add_u32 v20, s41, v20"); I("v_lshlrev_b32 v20, 4, v20")
    I("v_lshrrev_b32 v21, 5, v0"); I("s_movk_i32 s41, 20480"); I("v_mad_u32_u24 v21, v21, s41, v20")
    for n in range(4): I(f"s_mov_b32 s{32+n}, {H4 + 5120*n}")
    GB = lambda k: [(24, 96)[k] + 4*n for n in range(10)]
    pr_ = lambda r: f"v[{r}:{r+1}]"
    def sum8(k):
        b = GB(k)
        for st in (4, 2):
            for n in range(st):
                for h in range(2): I(f"v_pk_add_f32 {pr_(136+4*n+2*h)}, {pr_(b[n]+2*h if st == 4 else 136+4*n+2*h)}, {pr_(b[n+st]+2*h if st == 4 else 136+4*(n+st)+2*h)}")
        for h in range(2): I(f"v_pk_add_f32 {pr_(136+2*h)}, {pr_(136+2*h)}, {pr_(140+2*h)}")
    mpoll(impsets, lambda k: [f"buffer_load_dwordx4 v[{GB(k)[n]}:{GB(k)[n]+3}], v21, {SRD_WS}, s{32+n//2} offen offset:{2560*(n%2)} sc1" for n in range(8)],
          lambda k: chk24(GB(k)[:8], vTB, 66)(), sum8, impsl)
    stamp(7)
    crossrow("v_add_f32", [136, 137, 138, 139], [140, 141, 142, 143], which=("v_permlane32_swap_b32",))
    setexec((1 << 32) - 1)
    I(f"ds_write_b128 v20, v[136:139] offset:{L_IA}")
    I("s_mov_b64 exec, -1")
    I("s_branch L_imp_b4")
    a.label("L_imp_gate")
    I(f"s_sub_u32 s41, {sW}, 6"); I("s_mul_i32 s41, s41, 320"); I("v_add_u32 v20, s41, v0"); I("s_movk_i32 s40, 160")
    for n in range(5):
        I(f"v_add_u32 v{68+n}, {64*n}, v20"); I(f"v_subrev_u32 v{74+2*n}, 320, v{68+n}"); I(f"v_lshlrev_b32 v{68+n}, 4, v{68+n}")
        I(f"v_cmp_gt_u32 vcc, s40, v{74+2*n}"); I(f"v_cndmask_b32_e64 v{74+2*n}, 0, 1.0, vcc")
    I(f"s_mov_b32 s40, {RR}"); I(f"s_mov_b32 s41, {RR + 10240}")
    GG = lambda k: [(24, 96)[k] + 4*n for n in range(10)]
    def sumg(k):
        b = GG(k)
        for n in range(5):
            for h in range(2): I(f"v_pk_add_f32 {pr_(136+4*n+2*h)}, {pr_(b[n]+2*h)}, {pr_(b[n+5]+2*h)}")
    mpoll(impsets, lambda k: [f"buffer_load_dwordx4 v[{GG(k)[n]}:{GG(k)[n]+3}], v{68+n%5}, {SRD_WS}, s{40+n//5} offen sc1" for n in range(10)],
          lambda k: chk24(GG(k), vTB, 66)(), sumg, impsl)
    for n in range(5):
        for h in range(2): I(f"v_pk_add_f32 {pr_(136+4*n+2*h)}, {pr_(136+4*n+2*h)}, {pr_(74+2*n)} op_sel_hi:[1,0]")
    for n in range(5): I(f"ds_write_b128 v{68+n}, v[{136+4*n}:{139+4*n}] offset:{L_MODS}")
    a.label("L_imp_b4")
    I("s_waitcnt lgkmcnt(0)")
    I("s_barrier")
    I(f"s_cmp_eq_u32 {sW}, 0"); I("s_cbranch_scc1 L_imp_ln")
    I(f"s_lshl_b32 s40, {sW}, 3"); I(f"s_or_b32 s40, s40, {sG}"); I("s_cmp_eq_u32 s40, 8"); I("s_cbranch_scc0 L_FINISH")
    I(f"v_mov_b32 v58, 0"); setexec(1)
    I(f"buffer_store_dword v{vTG32}, v58, {SRD_WS}, 0 offen sc1")
    I("s_mov_b64 exec, -1")
    I("s_branch L_FINISH")
    a.label("L_imp_ln")
    stamp(8)
    for n in range(5): I(f"ds_read_b64 v[{24+2*n}:{25+2*n}], v58 offset:{L_IA + 8*n}")
    for n in range(5): I(f"ds_read_b64 v[{34+2*n}:{35+2*n}], v58 offset:{L_MODS + 8*n}")
    for n in range(5): I(f"ds_read_b64 v[{66+2*n}:{67+2*n}], v58 offset:{L_MODS + 5120 + 8*n}")
    for n in range(5): I(f"ds_read_b64 v[{44+2*n}:{45+2*n}], v58 offset:{L_MODS + 2560 + 8*n}")
    REC = 96
    I("s_waitcnt lgkmcnt(10)")
    for n in range(5): I(f"v_pk_fma_f32 v[{24+2*n}:{25+2*n}], v[{34+2*n}:{35+2*n}], v[{24+2*n}:{25+2*n}], v[{76+2*n}:{77+2*n}]")
    def stats(X, fill):
        I(f"v_pk_add_f32 v[54:55], v[{X}:{X+1}], v[{X+2}:{X+3}]"); I(f"v_pk_mul_f32 v[56:57], v[{X}:{X+1}], v[{X}:{X+1}]")
        for n in range(1, 5):
            if n > 1: I(f"v_pk_add_f32 v[54:55], v[54:55], v[{X+2*n}:{X+2*n+1}]")
            I(f"v_pk_fma_f32 v[56:57], v[{X+2*n}:{X+2*n+1}], v[{X+2*n}:{X+2*n+1}], v[56:57]")
        I("v_add_f32 v54, v54, v55"); I("v_add_f32 v56, v56, v57")
        steps = []
        for mod in R16: steps.append([f"v_add_f32_dpp v54, v54, v54 {mod} {DPPM}", f"v_add_f32_dpp v56, v56, v56 {mod} {DPPM}"])
        for sw in ("v_permlane16_swap_b32", "v_permlane32_swap_b32"):
            steps.append(["v_mov_b32 v55, v54", "v_mov_b32 v57, v56"])
            steps.append([f"{sw} v54, v55", f"{sw} v56, v57"])
            steps.append(["v_add_f32 v54, v54, v55", "v_add_f32 v56, v56, v57"])
        fill = list(fill)
        for st in steps:
            for s in st: I(s)
            if fill: I(fill.pop(0))
        for s in fill: I(s)
        I(f"v_mul_f32 v54, {hex(INV640)}, v54")
        I(f"v_mul_f32 v56, {hex(INV640)}, v56"); I("v_fma_f32 v56, -v54, v54, v56"); I("v_max_f32 v56, 0, v56")
        I(f"v_add_f32 v56, {hex(EPS)}, v56"); I("v_rsq_f32 v55, v56")
        I("v_mul_f32 v56, v54, v55"); I("v_mov_b32 v54, v55")
    fill1 = [f"v_mov_b32 v{REC+4*c+1}, v{24+c}" for c in range(10)]
    stats(24, fill1)
    I("s_waitcnt lgkmcnt(0)")
    for n in range(5): I(f"v_pk_fma_f32 v[{24+2*n}:{25+2*n}], v[{24+2*n}:{25+2*n}], v[54:55], v[56:57] op_sel_hi:[1,0,0] neg_lo:[0,0,1] neg_hi:[0,0,1]")
    for n in range(5): I(f"v_pk_fma_f32 v[{24+2*n}:{25+2*n}], v[{24+2*n}:{25+2*n}], v[{66+2*n}:{67+2*n}], v[{44+2*n}:{45+2*n}]")
    fill2 = [f"ds_read_b32 v{REC+4*c+2}, v58 offset:{L_MODS + 7680 + 4*c}" for c in range(10)]
    stats(24, fill2)
    for c in range(10): I(f"v_fma_f32 v{REC+4*c}, v{24+c}, v54, -v56")
    I("s_waitcnt lgkmcnt(0)")
    I("s_mov_b64 exec, s[42:43]")
    store_mode([f"buffer_store_dwordx4 v[{REC+4*c}:{REC+4*c+3}], v59, {SRD_WS}, s46 offen offset:{(128 if bcline else 16)*c}" for c in range(10)])
    I("s_mov_b64 exec, -1")
    stamp(9)
    I("s_branch L_FINISH")
    q2()
    m2()
    a.c("================= end =================")
    a.label("L_FINISH")
    if amp:
        I(f"v_readlane_b32 s40, {vST}, {amp[1]}"); I(f"v_readlane_b32 s41, {vST}, 0"); I("s_nop 3")
        if ampg:
            I("v_mov_b32 v166, 0"); I(f"global_load_dword v165, v166, s[{P_DBG}:{P_DBG+1}] sc1"); I("s_waitcnt vmcnt(0)"); I("v_readfirstlane_b32 s41, v165"); I("s_nop 3")
        I("s_cmp_eq_u32 s40, 0"); I("s_cbranch_scc1 L_ampdone")
        I("s_sub_u32 s40, s40, s41"); I(f"s_mul_i32 s40, s40, {ampk}")
        I("s_memrealtime s[42:43]"); I("s_waitcnt lgkmcnt(0)"); I("s_add_u32 s40, s40, s42")
        a.label("L_ampspin")
        I("s_sleep 2"); I("s_memrealtime s[42:43]"); I("s_waitcnt lgkmcnt(0)"); I("s_sub_u32 s43, s40, s42"); I("s_cmp_gt_i32 s43, 0"); I("s_cbranch_scc1 L_ampspin")
        a.label("L_ampdone")
    elif stamps and dbgmax is not None:
        I("s_memrealtime s[50:51]"); I("s_waitcnt lgkmcnt(0)"); I(f"v_writelane_b32 {vST}, s50, 15")
        I(f"v_readlane_b32 s50, {vST}, 0"); I("s_nop 3"); I("s_not_b32 s50, s50"); I(f"v_writelane_b32 {vST}, s50, 0")
        I(f"s_min_u32 s50, {sW}, 8") ; I(f"s_cmp_eq_u32 {sW}, 9"); I("s_cselect_b32 s50, 9, s50"); I(f"s_cmp_lt_u32 {sW}, 8"); I("s_cselect_b32 s50, 0, s50")
        I(f"s_cmp_eq_u32 s50, {dict(kv=0, q=8, m=9)[dbgmax]}"); I("s_cbranch_scc1 L_dm1")
        I(f"v_readlane_b32 s48, {vST}, 0"); I(f"v_readlane_b32 s49, {vST}, 15"); I(f"v_mov_b32 {vST}, 0"); I("s_nop 3"); I(f"v_writelane_b32 {vST}, s48, 0"); I(f"v_writelane_b32 {vST}, s49, 15")
        a.label("L_dm1")
        I("v_lshlrev_b32 v166, 2, v0"); setexec(0xffff)
        I(f"global_atomic_umax v166, {vST}, s[{P_DBG}:{P_DBG+1}]")
        I("s_mov_b64 exec, -1")
    elif stamps:
        I("s_memrealtime s[50:51]"); I("s_waitcnt lgkmcnt(0)"); I(f"v_writelane_b32 {vST}, s50, 15")
        I("s_getreg_b32 s50, hwreg(HW_REG_XCC_ID, 0, 4)"); I(f"v_writelane_b32 {vST}, s50, 16")
        I("s_lshl_b32 s50, s2, 4"); I(f"s_add_u32 s50, s50, {sW}"); I("s_lshl_b32 s50, s50, 8"); I(f"s_add_u32 s50, s50, {STP}")
        I("v_lshlrev_b32 v166, 2, v0")
        I(f"buffer_store_dword {vST}, v166, {SRD_WS}, s50 offen")
    I("s_endpgm")
    for l0, l1, texts in slow:
        a.label(l0)
        for t in texts: I(t + " sc1")
        I(f"s_branch {l1}")
    a.label("L_END")
    I("s_endpgm")
    a.raw('.section .rodata,"a"'); a.raw(".p2align 6"); a.raw(f".amdhsa_kernel {NAME}_kernel")
    a.raw("  .amdhsa_next_free_vgpr 168"); a.raw("  .amdhsa_next_free_sgpr 102"); a.raw("  .amdhsa_accum_offset 168")
    a.raw("  .amdhsa_group_segment_fixed_size 0"); a.raw("  .amdhsa_kernarg_size 120"); a.raw("  .amdhsa_user_sgpr_count 2")
    a.raw("  .amdhsa_user_sgpr_kernarg_segment_ptr 1"); a.raw("  .amdhsa_system_sgpr_workgroup_id_x 1"); a.raw(".end_amdhsa_kernel")
    return a

if __name__ == "__main__":
    kw = eval("dict(" + (sys.argv[2] if len(sys.argv) > 2 else "") + ")")
    a = gen(**kw)
    open(sys.argv[1], "w").write(a.text())
    print("instructions", a.ninstr, "nops", a.nops)
```

```python
import sys, struct
from asmdsl import Asm
NAME = "adaLN_cond__sliding_block_cached__mixer_token_mlp__decode"

XT   = 0x1000
H1   = 0xA000
H2   = 0x14000
H3   = 0x54000
H3ML = 0x94000
H4   = 0x95000
RR   = 0xA0000
BC   = 0xA6000
DBG = 0x200000
STP = 0x800000
L_SC = 0
L_H16 = 2560
L_Q16 = 2880
L_MW = 3136
L_LW = 3168
L_MODE = 3200
L_ZERO = 3216
L_OW = 3328
L_AV = 7680
L_RED = 9728
L_IA = 14080
L_MODS = 16640
L_FIN = 26880
LDS_BYTES = 27648

LOG2E = 0x3fb8aa3b
SCALE = 0x3db504f3
INV640 = 0x3acccccd
EPS = 0x3727c5ac
def f2h(x): return "0x%08x" % struct.unpack("<I", struct.pack("<f", x))[0]
GC0 = -2*0.7978845608028654*1.4426950408889634
GC1 = GC0*0.044715

DOC = """
One persistent launch: 256 workgroups (one per CU) x 10 waves.  b = workgroup id, g = b & 7 (group), i = b >> 3,
head = 4g + (i & 3), j = i >> 2 (256-key slice of the head's 2048-key window).
  waves 0..7 (KV)  stream the K and V slice into registers, scores / softmax / P*V, then the role of the workgroup:
                   i < 20       wo block (64 columns x 256 rows: two heads of the group), then the token MLP for 3 columns
                   20 <= i < 30 gate block of w_mod (64 columns x 320 rows), i < 27 also the token MLP
                   i == 30      importer: sums the wo / gate partial sums, both layernorms, broadcasts (t, x1, gb)
  wave 8 (Q)       wq rows 80j..80j+79 of the head; layernorm(x), h, partial q, exchange of q inside the head
  wave 9 (M)       silu(c); shift / scale block of w_mod (64 columns x 160 rows; groups 0..3, i < 20)
GEMVs run on v_mfma_f32_16x16x32_bf16 with the weights as they lie in memory: the vector operand is spread over the
16 rows with one non-zero element per row (masks v4..v7), so no transposition is needed.
Hand-offs between workgroups go through d_ws as self-validating 16-byte granules: every launch reads the epoch word
ws[0], uses epoch+1 as its tag, and one wave stores the tag back once all workgroups have read it.  Consumers poll the
data itself (sc1 loads) until the tags match.  Stores are write-through (sc1) across groups; inside a group they are
plain stores when a table of XCC ids shows at run time that all 32 workgroups share one XCD, write-through otherwise.
  ws layout: 0x01000 xcc ids | 0x0a000 shift/scale partials | 0x14000 partial q | 0x54000 partial o | 0x94000 (max, sum)
             0x95000 wo partials | 0xa0000 gate partials | 0xa6000 broadcast records
Every poll loop is bounded.  Rounding to bf16 follows the reference on the path c, x -> h -> q -> scores.
"""

def gen(D=3, nt="nt", ntw="nt", ntt="nt", inter=False, stamps=False, dbg=False, fast=True, prefetch=True, LIMIT=400000,
        rotmul=5, D2=3, Dswitch=8, skip='', tpos='p', dbgmax=None, nset1=1, nset2=1, sl1=12, sl2=8, mgroups=4, pfall=True, align4k=True, warm=True, tsplit=(1, 1), rot=(5, 0, 0), impsets=1, impsl=3, wofirst=True, outflag='', bq=False, tq=0, hmap=0, ampg=True, rtskip=0, bcgap=0, impgap=0, h3gap=0, bcline=True, prio=0, mskip2=False, nskip2=False, mspread=False, wearly=False, wlate=True, fix='', b0='mq', torder='kv', nvpre=8, ackw1=True, ackw2=True, sl0=0, kgate=0, diagnop=0, amp=None, ampk=8):
    if amp: stamps = [amp[1] + {'kv': 0, 'q': 100, 'm': 200}[amp[0]]]
    if D2 is None: D2 = D
    a = Asm(); I = a
    uid = [0]
    def lab(p):
        uid[0] += 1
        return f"L_{p}{uid[0]}"
    sB, sW, sG, sI, sHEAD, sJ, sT32, sT8, sMODE = "s2", "s3", "s4", "s5", "s6", "s7", "s8", "s9", "s10"
    SRD_K, SRD_V, SRD_A, SRD_WS = "s[12:15]", "s[16:19]", "s[20:23]", "s[28:31]"
    sOFF = [f"s{32+m}" for m in range(8)]
    P_X, P_K, P_V, P_WQ, P_WO, P_W1, P_B1, P_W2, P_B2, P_C, P_WM, P_OUT, P_DBG, P_WS = 52, 54, 56, 58, 60, 64, 66, 68, 70, 72, 74, 76, 78, 80
    sQ = [None, "s[90:91]", "s[92:93]", "s[94:95]"]
    sRV = "s[96:97]"
    sFF = "s98"
    vST = "v167"
    role = ["kv"]
    def stamp(k):
        if not stamps: return
        key = k + {"kv": 0, "q": 100, "m": 200}[role[0]]
        if stamps is not True and key not in stamps: return
        I("s_memrealtime s[50:51]"); I("s_waitcnt lgkmcnt(0)"); I(f"v_writelane_b32 {vST}, s50, {k}")
    DPPM = "row_mask:0xf bank_mask:0xf"
    def dppreduce(op, regs, mods):
        for mod in mods:
            for r in regs: I(f"{op}_dpp v{r}, v{r}, v{r} {mod} {DPPM}")
    Q2 = ["quad_perm:[1,0,3,2]", "quad_perm:[2,3,0,1]"]
    R8 = Q2 + ["row_half_mirror"]
    R16 = Q2 + ["row_ror:4", "row_ror:8"]
    def crossrow(op, regs, tmp, which=("v_permlane16_swap_b32", "v_permlane32_swap_b32")):
        for sw in which:
            for r, t in zip(regs, tmp): I(f"v_mov_b32 v{t}, v{r}")
            for r, t in zip(regs, tmp): I(f"{sw} v{r}, v{t}")
            for r, t in zip(regs, tmp): I(f"{op} v{r}, v{r}, v{t}")
    def allreduce(op, regs, tmp):
        dppreduce(op, regs, R16); crossrow(op, regs, tmp)
    def rbf(dst, src, tmp):
        I(f"v_cvt_pk_bf16_f32 v{tmp}, v{src}, v{src}"); I(f"v_lshlrev_b32 v{dst}, 16, v{tmp}")
    def rbf2(d0, d1, s0, s1, tmp):
        I(f"v_cvt_pk_bf16_f32 v{tmp}, v{s0}, v{s1}"); I(f"v_lshlrev_b32 v{d0}, 16, v{tmp}"); I(f"v_and_b32 v{d1}, 0xffff0000, v{tmp}")
    def setexec(mask):
        lo, hi = mask & 0xffffffff, mask >> 32
        if mask == (1 << 64) - 1: I("s_mov_b64 exec, -1")
        elif hi == 0 and lo <= 64: I(f"s_mov_b64 exec, {lo}")
        else: I(f"s_mov_b32 exec_lo, {hex(lo)}"); I(f"s_mov_b32 exec_hi, {hex(hi)}")
    def masks(t0, sp):
        I(f"v_and_b32 v{t0}, 7, v0"); I(f"v_lshrrev_b32 v{t0+1}, 1, v{t0}"); I(f"v_and_b32 v{t0}, 1, v{t0}")
        I(f"v_mov_b32 v{t0+2}, 0xffff"); I(f"v_mov_b32 v{t0+3}, 0xffff0000")
        I(f"v_cmp_eq_u32 vcc, 1, v{t0}")
        for r in range(4): I(f"v_cmp_eq_u32 s[{sp+2*r}:{sp+2*r+1}], {r}, v{t0+1}")
        I(f"v_cndmask_b32 v{t0+2}, v{t0+2}, v{t0+3}, vcc")
        for r in range(4): I(f"v_cndmask_b32_e64 v{4+r}, 0, v{t0+2}, s[{sp+2*r}:{sp+2*r+1}]")
    MASK = [4, 5, 6, 7]
    def poll(loads, check, cnt="s51", gap=0):
        l0, l1 = lab("poll"), lab("pdone")
        I(f"s_mov_b32 {cnt}, 0")
        a.label(l0)
        for s in loads: I(s)
        I(f"s_add_u32 {cnt}, {cnt}, 1")
        I("s_waitcnt vmcnt(0)")
        check()
        I("s_and_b64 exec, exec, vcc")
        I(f"s_cbranch_scc0 {l1}")
        if gap:
            a.c("poll back-off: keeps the pollers from crowding the lines that are about to be written")
            I(f"s_sleep {gap}")
        I(f"s_cmp_lt_u32 {cnt}, {LIMIT}")
        I(f"s_cbranch_scc1 {l0}")
        a.label(l1)
        I("s_mov_b64 exec, -1")
    def ppoll(nset, loads, check, done, sl, cnt="s51", after_first=None):
        n = len(loads(0))
        lp = lab("pp"); ld = [lab("ppd") for _ in range(nset)]; lj = lab("ppj")
        I(f"s_mov_b32 {cnt}, 0")
        for k in range(nset):
            for s in loads(k): I(s)
            if k == 0 and after_first: after_first()
            if k < nset - 1 and sl: I(f"s_sleep {sl}")
        a.label(lp)
        for k in range(nset):
            I(f"s_waitcnt vmcnt({n*(nset-1)})")
            check(k)
            I("s_cmp_eq_u64 vcc, 0"); I(f"s_cbranch_scc1 {ld[k]}")
            for s in loads(k): I(s)
        I(f"s_add_u32 {cnt}, {cnt}, 1"); I(f"s_cmp_lt_u32 {cnt}, {LIMIT}"); I(f"s_cbranch_scc1 {lp}")
        for k in range(nset):
            a.label(ld[k]); done(k)
            if k < nset - 1: I(f"s_branch {lj}")
        a.label(lj)
    def mpoll(nset, loads, check, done, sl, cnt="s51", mregs=("s[84:85]", "s[86:87]", "s[88:89]")):
        n = len(loads(0))
        lp = lab("mp"); ld = [lab("mpd") for _ in range(nset)]; lj = lab("mpj")
        I(f"s_mov_b32 {cnt}, 0")
        for k in range(nset):
            I(f"s_mov_b64 {mregs[k]}, exec")
            for t in loads(k): I(t)
            if k < nset - 1 and sl: I(f"s_sleep {sl}")
        a.label(lp)
        for k in range(nset):
            I(f"s_mov_b64 exec, {mregs[k]}")
            I(f"s_waitcnt vmcnt({n*(nset-1)})")
            check(k)
            I(f"s_and_b64 {mregs[k]}, exec, vcc")
            I(f"s_cbranch_scc0 {ld[k]}")
            if impgap: I(f"s_sleep {impgap}")
            I(f"s_mov_b64 exec, {mregs[k]}")
            for t in loads(k): I(t)
        I(f"s_add_u32 {cnt}, {cnt}, 1"); I(f"s_cmp_lt_u32 {cnt}, {LIMIT}"); I(f"s_cbranch_scc1 {lp}")
        for k in range(nset):
            a.label(ld[k]); I("s_mov_b64 exec, -1")
            done(k)
            if k < nset - 1: I(f"s_branch {lj}")
        a.label(lj)
    def chk24(granules, vTb, t0):
        def f():
            for b in granules:
                for c in range(4): I(f"v_xor_b32 v{b+c}, v{vTb}, v{b+c}")
            first = True
            for b in granules:
                if first: I(f"v_or3_b32 v{t0}, v{b}, v{b+1}, v{b+2}"); I(f"v_or_b32 v{t0}, v{t0}, v{b+3}"); first = False
                else: I(f"v_or3_b32 v{t0}, v{t0}, v{b}, v{b+1}"); I(f"v_or3_b32 v{t0}, v{t0}, v{b+2}, v{b+3}")
            I(f"v_and_b32 v{t0}, 0xff, v{t0}"); I(f"v_cmp_ne_u32 vcc, 0, v{t0}")
        return f
    slow = []
    def store_mode(texts):
        if not fast:
            for t in texts: I(t + " sc1")
            return
        l0, l1 = lab("sl"), lab("sd")
        I(f"s_cmp_eq_u32 {sMODE}, 1"); I(f"s_cbranch_scc0 {l0}")
        for t in texts: I(t)
        a.label(l1)
        slow.append((l0, l1, texts))
    def dbgstore(regs, slot):
        if not dbg: return
        I("s_mul_i32 s50, s2, 0x4000"); I(f"s_add_u32 s50, s50, {DBG + slot*0x400}")
        I("v_lshlrev_b32 v166, 2, v0")
        for n, r in enumerate(regs): I(f"buffer_store_dword v{r}, v166, {SRD_WS}, s50 offen offset:{n*256}")
        I("s_waitcnt vmcnt(0)")
    def epoch():
        I("s_waitcnt lgkmcnt(0)")
        I(f"s_add_u32 {sT32}, {sT32}, 1"); I(f"s_and_b32 {sT8}, {sT32}, 0xff")

    NW = 10
    a.raw(open("header.txt").read().rstrip("\n"))
    a.raw(f"; @launch grid=(256,1,1) block=({64*NW},1,1) lds={LDS_BYTES}")
    for line in DOC.strip("\n").split("\n"): a.raw(("; " + line).rstrip())
    a.raw('.amdgcn_target "amdgcn-amd-amdhsa--gfx950"')
    a.raw(".text"); a.raw(f".globl {NAME}_kernel")
    if align4k: a.raw(".p2align 12")
    a.raw(".p2align 8"); a.raw(f".type {NAME}_kernel,@function"); a.raw(f"{NAME}_kernel:")
    if stamps: I("s_memrealtime s[96:97]")
    I("s_cmp_ge_u32 s2, 256"); I("s_cbranch_scc1 L_END")
    I("s_load_dwordx16 s[52:67], s[0:1], 0")
    I("s_load_dwordx8 s[68:75], s[0:1], 64")
    I("s_load_dwordx4 s[76:79], s[0:1], 96")
    I("s_load_dwordx2 s[80:81], s[0:1], 112")
    I("v_lshrrev_b32 v1, 6, v0")
    I("v_and_b32 v0, 63, v0")
    I(f"v_readfirstlane_b32 {sW}, v1")
    I(f"s_and_b32 {sG}, s2, 7"); I(f"s_lshr_b32 {sI}, s2, 3")
    if prefetch:
        I(f"s_and_b32 s46, {sI}, {0 if pfall else 7}"); I(f"s_or_b32 s46, s46, {sW}"); I("s_cmp_eq_u32 s46, 0"); I("s_cbranch_scc0 L_nopf")
        I("s_getpc_b64 s[46:47]")
        a.label("L_PC")
        I("v_lshlrev_b32 v161, 7, v0")
        for pf in range(2):
            I(f"v_add_u32 v{162+pf}, {8192*pf}, v161"); I(f"v_min_u32 v{162+pf}, L_END-L_PC, v{162+pf}")
            I(f"global_load_dword v{164+pf}, v{162+pf}, s[46:47]")
        a.label("L_nopf")
    if hmap == 0:
        I(f"s_and_b32 s11, {sI}, 3"); I(f"s_lshl_b32 {sHEAD}, {sG}, 2"); I(f"s_add_u32 {sHEAD}, {sHEAD}, s11")
        I(f"s_lshr_b32 {sJ}, {sI}, 2")
    else:
        I(f"s_lshr_b32 s11, {sI}, 3"); I(f"s_lshl_b32 {sHEAD}, {sG}, 2"); I(f"s_add_u32 {sHEAD}, {sHEAD}, s11")
        I(f"s_and_b32 {sJ}, {sI}, 7")
    I("v_and_b32 v2, 15, v0"); I("v_lshrrev_b32 v3, 4, v0")
    if stamps: I(f"v_mov_b32 {vST}, 0")
    I("s_mov_b32 s30, 0x100000" if (amp or not (dbg or stamps)) else "s_mov_b32 s30, 0x10000000"); I("s_mov_b32 s31, 0x20000")
    I("s_mov_b32 s23, 0x20000")
    def args_ready():
        I("s_waitcnt lgkmcnt(0)")
        if stamps: I(f"v_writelane_b32 {vST}, s96, 0")
        I(f"s_load_dword {sT32}, s[{P_WS}:{P_WS+1}], 0")
        I(f"s_mov_b32 s28, s{P_WS}"); I(f"s_and_b32 s29, s{P_WS+1}, 0xffff")
    I("s_mov_b32 s101, 0")
    I(f"s_cmp_lt_u32 {sW}, 8"); I("s_cbranch_scc1 L_KV0")
    I(f"s_cmp_eq_u32 {sW}, 8"); I("s_cbranch_scc1 L_QW")
    def has_m():
        if mspread: I(f"s_cmp_lt_u32 {sI}, 10")
        else: I(f"s_cmp_lt_u32 {sG}, {mgroups}"); I("s_cselect_b32 s100, 20, 0"); I(f"s_cmp_lt_u32 {sI}, s100")
    def b0b():
        if nskip2:
            l = lab("nb"); has_m(); I(f"s_cbranch_scc0 {l}"); I("s_barrier"); a.label(l); return
        if not mskip2: I("s_barrier"); return
        l = lab("nb")
        I(f"s_cmp_lt_u32 {sG}, {mgroups}"); I("s_cselect_b32 s100, 20, 0"); I(f"s_cmp_lt_u32 {sI}, s100"); I(f"s_cbranch_scc1 {l}")
        I("s_barrier"); a.label(l)
    stub = [0]
    def maybe_stub(n):
        if warm and n % 5 == 0 and stub[0] < 8:
            a.label(f"L_stub{stub[0]}"); I("s_cmp_eq_u32 s101, 1"); I("s_cbranch_scc1 L_KV"); stub[0] += 1

    role[0] = "m"
    vM_ = 12
    CR, C0, vTG, cA0, cA1, cD0, cD1 = 156, 132, 147, 148, 152, 156, 160
    rows = 640 // mgroups
    nld = rows // 8
    a.c("================= M wave: issue part =================")
    a.label("L_MW")
    if prio: I(f"s_setprio {prio}")
    if mspread:
        I(f"s_and_b32 s98, {sG}, 1"); I("s_mul_i32 s98, s98, 10"); I(f"s_add_u32 s98, s98, {sI}"); I(f"s_lshr_b32 s99, {sG}, 1"); I(f"s_cmp_lt_u32 {sI}, 10")
    else:
        I(f"s_mov_b32 s98, {sI}"); I(f"s_mov_b32 s99, {sG}")
        I(f"s_cmp_lt_u32 {sG}, {mgroups}"); I("s_cselect_b32 s40, 20, 0"); I(f"s_cmp_lt_u32 {sI}, s40")
    I("s_cbranch_scc1 L_mgo")
    I(f"s_sub_u32 s40, {sI}, 20"); I("s_cmp_lt_u32 s40, 10"); I("s_cbranch_scc1 L_MGATE")
    if stamps: args_ready()
    I("s_branch L_FINISH")
    a.label("L_mgo")
    I(f"s_mul_i32 s42, s99, {rows*7680}"); I(f"s_lshl_b32 s43, s98, 7"); I("s_add_u32 s42, s42, s43")
    I("v_bfe_u32 v10, v0, 3, 1"); I("v_lshl_add_u32 v10, v10, 2, v3"); I("s_movk_i32 s43, 7680"); I("v_mul_lo_u32 v10, v10, s43")
    I("v_and_b32 v11, 7, v0"); I("v_lshl_add_u32 v10, v11, 4, v10")
    I(f"v_min_u32 v8, {rows//4 - 1}, v0"); I("v_lshlrev_b32 v8, 3, v8"); I(f"s_mul_i32 s43, s99, {rows*2}"); I("v_add_u32 v8, s43, v8")
    I(f"s_mov_b32 s22, {0 if 'M' in skip else (rows-1)*7680+128}"); I(f"s_mov_b32 s49, {0 if 'M' in skip else 8*7680}"); I("s_mov_b32 s44, 0")
    args_ready()
    I(f"global_load_dwordx2 v[{CR}:{CR+1}], v8, s[{P_C}:{P_C+1}]")
    I(f"s_add_u32 s20, s{P_WM}, s42"); I(f"s_addc_u32 s21, s{P_WM+1}, 0"); I("s_and_b32 s21, s21, 0xffff")
    for n in range(nld):
        I(f"buffer_load_dwordx4 v[{vM_+4*n}:{vM_+4*n+3}], v10, {SRD_A}, s44 offen {ntw}")
        if n < nld - 1:
            I(f"s_add_u32 s44, s44, s49")
            maybe_stub(n + 1)
    if b0: I("s_barrier")
    if b0 == 'mq' and not mskip2: I("s_barrier")
    I("s_branch L_M2")
    a.c("================= Q wave: issue part =================")
    a.label("L_QW")
    if prio: I(f"s_setprio {prio}")
    role[0] = "q"
    NRB = mgroups
    vQ = 52
    XR, vTG, cA0, cA1, cD0, XQ = 142, 147, 148, 152, 156, 164
    I("v_mul_u32_u24 v8, 20, v0")
    I(f"s_mul_i32 s42, {sJ}, 160"); I("v_min_u32 v9, 19, v0"); I("v_lshlrev_b32 v9, 3, v9"); I("v_add_u32 v9, s42, v9")
    I(f"s_mul_i32 s42, {sJ}, {80*8192}"); I(f"s_lshl_b32 s43, {sHEAD}, 8"); I("s_add_u32 s42, s42, s43")
    I(f"s_mov_b32 s22, {0 if 'Q' in skip else 79*8192+256}")
    I("v_lshlrev_b32 v11, 13, v3"); I("v_lshl_add_u32 v11, v2, 4, v11")
    I("s_mov_b32 s44, 0")
    I(f"s_mov_b32 s49, {0 if 'Q' in skip else 4*8192}")
    args_ready()
    I(f"global_load_dwordx4 v[{XR}:{XR+3}], v8, s[{P_X}:{P_X+1}]"); I(f"global_load_dword v{XR+4}, v8, s[{P_X}:{P_X+1}] offset:16")
    I(f"global_load_dwordx2 v[{XQ}:{XQ+1}], v9, s[{P_X}:{P_X+1}]")
    I(f"s_add_u32 s20, s{P_WQ}, s42"); I(f"s_addc_u32 s21, s{P_WQ+1}, 0"); I("s_and_b32 s21, s21, 0xffff")
    if b0 in ('m', 'mq'): I("s_barrier")
    for m in range(20):
        I(f"buffer_load_dwordx4 v[{vQ+4*m}:{vQ+4*m+3}], v11, {SRD_A}, s44 offen {nt}")
        if m < 19:
            I(f"s_add_u32 s44, s44, s49")
            maybe_stub(m + 1)
    if b0 == 'mq': b0b()
    elif b0 == 'both': I("s_barrier")
    I("s_branch L_Q2")
    def m2():
        role[0] = 'm'
        vTG, cA0, cA1, cD0, cD1 = 147, 148, 152, 156, 160
        a.label('L_M2')
        stamp(11)
        masks(148, 32)
        def silu(vals, raw_t):
            for k in range(0, len(vals), 2):
                cs = vals[k:k+2]
                t = {c: raw_t + 4*n for n, c in enumerate(cs)}
                for c in cs: I(f"v_mul_f32 v{t[c]}, {hex(LOG2E ^ 0x80000000)}, v{c}")
                for c in cs: I(f"v_exp_f32 v{t[c]}, v{t[c]}")
                for c in cs: I(f"v_add_f32 v{t[c]}, 1.0, v{t[c]}")
                for c in cs: I(f"v_rcp_f32 v{t[c]+1}, v{t[c]}")
                for c in cs: I(f"v_mul_f32 v{t[c]+2}, v{c}, v{t[c]+1}")
                for c in cs: I(f"v_fma_f32 v{t[c]+3}, -v{t[c]+2}, v{t[c]}, v{c}")
                for c in cs: I(f"v_fma_f32 v{t[c]+2}, v{t[c]+3}, v{t[c]+1}, v{t[c]+2}")
                for c in cs: I(f"v_cvt_pk_bf16_f32 v{c}, v{t[c]+2}, v{t[c]+2}")
        I(f"v_lshlrev_b32 v9, 4, v0"); I(f"s_mul_i32 s42, s99, {rows*4}"); I("v_add_u32 v9, s42, v9")
        I("v_bfe_u32 v8, v0, 3, 1"); I("v_lshl_add_u32 v8, v8, 2, v3"); I("v_lshlrev_b32 v8, 2, v8"); I("v_add_u32 v8, s42, v8")
        I(f"s_waitcnt vmcnt({nld})")
        stamp(6)
        for n in range(2):
            I(f"v_lshlrev_b32 v{C0+2*n}, 16, v{CR+n}"); I(f"v_and_b32 v{C0+2*n+1}, 0xffff0000, v{CR+n}")
        silu([C0, C0+1, C0+2, C0+3], 148)
        setexec((1 << (rows//4)) - 1)
        I(f"ds_write_b128 v9, v[{C0}:{C0+3}] offset:{L_SC}")
        I("s_mov_b64 exec, -1")
        I("s_waitcnt lgkmcnt(0)")
        stamp(7)
        AV = 112
        for n in range(0, nld, 2): I(f"ds_read2_b32 v[{AV+n}:{AV+n+1}], v8 offset0:{8*n} offset1:{8*n+8}")
        epoch()
        I(f"v_mov_b32 v{vTG}, {sT32}")
        I("v_lshrrev_b32 v9, 3, v2"); I("v_lshrrev_b32 v10, 1, v3"); I("v_cmp_eq_u32 s[42:43], v9, v10")
        I("v_and_b32 v9, 7, v2"); I("v_and_b32 v10, 1, v3"); I("v_lshl_add_u32 v9, v9, 1, v10"); I("v_lshlrev_b32 v8, 4, v9"); I("v_lshlrev_b32 v9, 3, v9")
        I(f"s_mul_i32 s44, s99, 7680"); I(f"s_add_u32 s44, s44, {H1}"); I(f"s_lshl_b32 s45, s98, 7"); I("s_add_u32 s45, s45, s44"); I("s_add_u32 s45, s45, 5120")
        I(f"s_lshl_b32 s40, s98, 8"); I("s_add_u32 s44, s44, s40")
        for n in range(nld):
            A_ = cA0 if n % 2 == 0 else cA1
            for r in range(4): I(f"v_and_b32 v{A_+r}, v{AV+n}, v{MASK[r]}")
            I(f"s_waitcnt vmcnt({nld - 1 - n})")
            c = "0" if n == 0 else f"v[{cD0}:{cD0+3}]"
            I(f"v_mfma_f32_16x16x32_bf16 v[{cD0}:{cD0+3}], v[{A_}:{A_+3}], v[{vM_+4*n}:{vM_+4*n+3}], {c}")
        stamp(8)
        I(f"v_mov_b32 v137, v{vTG}")
        for c in range(4): I(f"v_cndmask_b32_e64 v{132+c}, 0, v{cD0+c}, s[42:43]")
        dppreduce("v_add_f32", [132, 133, 134, 135], ["row_ror:8"])
        crossrow("v_add_f32", [132, 133, 134, 135], [138, 139, 140, 141], which=("v_permlane32_swap_b32",))
        I(f"v_mov_b32 v136, v135"); I(f"v_mov_b32 v135, v{vTG}")
        setexec(0x00ff00ff)
        I(f"buffer_store_dwordx4 v[132:135], v8, {SRD_WS}, s44 offen sc1")
        I(f"buffer_store_dwordx2 v[136:137], v9, {SRD_WS}, s45 offen sc1")
        I("s_mov_b64 exec, -1")
        stamp(1)
        I("s_branch L_FINISH")
        a.label("L_MGATE")
        I("v_mul_u32_u24 v8, 20, v0")
        args_ready()
        I(f"global_load_dwordx4 v[{CR}:{CR+3}], v8, s[{P_C}:{P_C+1}]"); I(f"global_load_dword v{CR+4}, v8, s[{P_C}:{P_C+1}] offset:16")
        if b0: I("s_barrier")
        if b0 == 'mq' and not nskip2: I("s_barrier")
        I("s_waitcnt vmcnt(0)")
        for n in range(5):
            I(f"v_lshlrev_b32 v{C0+2*n}, 16, v{CR+n}"); I(f"v_and_b32 v{C0+2*n+1}, 0xffff0000, v{CR+n}")
        silu([C0+c for c in range(10)], 148)
        I("v_lshlrev_b32 v8, 1, v8")
        for n in range(5): I(f"ds_write_b64 v8, v[{C0+2*n}:{C0+2*n+1}] offset:{L_SC + 8*n}")
        I("s_waitcnt lgkmcnt(0)")
        I("s_branch L_FINISH")

    def q2():
        role[0] = 'q'
        vTG, cA0, cA1, cD0 = 147, 148, 152, 156
        a.label('L_Q2')
        stamp(11)
        masks(148, 32)
        if amp and ampg:
            I("s_cmp_eq_u32 s2, 0"); I("s_cbranch_scc0 L_noref")
            I("v_mov_b32 v166, 0"); setexec(1); I(f"global_store_dword v166, {vST}, s[{P_DBG}:{P_DBG+1}] sc1"); I("s_mov_b64 exec, -1"); I("s_waitcnt vmcnt(21)") if False else None
            a.label("L_noref")
        I("s_getreg_b32 s45, hwreg(HW_REG_XCC_ID, 0, 4)")
        epoch()
        I(f"s_lshl_b32 s46, {sT32}, 4"); I("s_or_b32 s47, s46, s45")
        I("v_mov_b32 v163, s47"); I(f"s_lshl_b32 s48, {sG}, 12"); I(f"s_lshl_b32 s49, {sI}, 7"); I("s_add_u32 s48, s48, s49"); I(f"s_add_u32 s48, s48, {XT}"); I("v_mov_b32 v9, 0")
        setexec(1)
        I(f"buffer_store_dword v163, v9, {SRD_WS}, s48 offen sc1")
        I("s_mov_b64 exec, -1")
        I(f"v_mov_b32 v{vTG}, {sT32}")
        I("s_waitcnt vmcnt(20)")
        stamp(6)
        X0 = 132
        for n in range(5):
            I(f"v_lshlrev_b32 v{X0+2*n}, 16, v{XR+n}"); I(f"v_and_b32 v{X0+2*n+1}, 0xffff0000, v{XR+n}")
        I(f"v_add_f32 v148, v{X0}, v{X0+1}")
        for c in range(2, 10): I(f"v_add_f32 v148, v148, v{X0+c}")
        allreduce("v_add_f32", [148], [149])
        I(f"v_mul_f32 v148, {hex(INV640)}, v148")
        I(f"v_sub_f32 v149, v{X0}, v148"); I("v_mul_f32 v150, v149, v149")
        for c in range(1, 10): I(f"v_sub_f32 v149, v{X0+c}, v148"); I("v_fmac_f32 v150, v149, v149")
        allreduce("v_add_f32", [150], [149])
        I(f"v_mul_f32 v150, {hex(INV640)}, v150")
        rbf2(148, 150, 148, 150, 149)
        I(f"v_add_f32 v150, {hex(EPS)}, v150"); rbf(150, 150, 149)
        I("v_sqrt_f32 v150, v150"); rbf(150, 150, 149)
        I("v_rcp_f32 v151, v150")
        vZ = 48
        for h in range(2):
            I(f"v_lshlrev_b32 v{vZ+2*h}, 16, v{XQ+h}"); I(f"v_and_b32 v{vZ+2*h+1}, 0xffff0000, v{XQ+h}")
        for c in range(4): I(f"v_sub_f32 v{vZ+c}, v{vZ+c}, v148")
        rbf2(vZ, vZ+1, vZ, vZ+1, 149); rbf2(vZ+2, vZ+3, vZ+2, vZ+3, 149)
        for c in range(4):
            I(f"v_mul_f32 v152, v{vZ+c}, v151"); I(f"v_fma_f32 v153, -v152, v150, v{vZ+c}"); I(f"v_fma_f32 v{vZ+c}, v153, v151, v152")
        rbf2(vZ, vZ+1, vZ, vZ+1, 149); rbf2(vZ+2, vZ+3, vZ+2, vZ+3, 149)
        stamp(7)
        I("v_min_u32 v8, 39, v0"); I(f"s_mul_i32 s42, {sJ}, 20"); I("v_add_u32 v9, s42, v8")
        I("v_cmp_lt_u32 vcc, 19, v8"); I("v_add_u32 v10, 140, v9"); I("v_cndmask_b32 v9, v9, v10, vcc"); I("v_lshlrev_b32 v10, 3, v9"); I("v_add_u32 v10, 5120, v10"); I("v_lshlrev_b32 v9, 4, v9")
        I("v_and_b32 v8, 31, v0"); I("v_lshlrev_b32 v8, 7, v8"); I(f"s_lshl_b32 s42, {sG}, 12"); I(f"s_add_u32 s42, s42, {XT}")
        for rb in range(NRB): I(f"s_mov_b32 s{32+rb}, {H1 + 7680*rb}")
        I(f"s_and_b32 s43, {sT32}, 0x0fffffff")
        SETSZ = 6*NRB
        assert 12 + SETSZ*nset1 <= 48 or (nset1 == 1 and NRB == 8 and False)
        G1 = lambda k: 12 + SETSZ*k
        XR1 = lambda k: 160 + k
        def ld1(k):
            out = [f"buffer_load_dword v{XR1(k)}, v8, {SRD_WS}, s42 offen sc1"]
            for rb in range(NRB):
                b = G1(k) + 6*rb
                out.append(f"buffer_load_dwordx4 v[{b}:{b+3}], v9, {SRD_WS}, s{32+rb} offen sc1")
                out.append(f"buffer_load_dwordx2 v[{b+4}:{b+5}], v10, {SRD_WS}, s{32+rb} offen sc1")
            return out
        def ck1(k):
            I(f"v_lshrrev_b32 v132, 4, v{XR1(k)}"); I("v_xor_b32 v132, s43, v132")
            for rb in range(NRB):
                b = G1(k) + 6*rb
                I(f"v_bitop3_b32 v133, v{b+3}, v{b+5}, v{vTG} bitop3:0x7e"); I("v_or_b32 v132, v132, v133")
            I("v_cmp_ne_u32 vcc, 0, v132")
        def dn1(k):
            for c in range(4):
                src = (lambda rb: G1(k) + 6*rb + (c if c < 3 else 4))
                I(f"v_add_f32 v{136+c}, v{src(0)}, v{src(1)}")
                for rb in range(2, NRB): I(f"v_add_f32 v{136+c}, v{136+c}, v{src(rb)}")
            I(f"v_mov_b32 v140, v{XR1(k)}")
        if ackw1 == 'q': I("s_waitcnt vmcnt(1)")
        elif ackw1 == 'rt':
            I("s_waitcnt vmcnt(1)")
            if rtskip: I(f"s_cmp_ge_u32 {sG}, {rtskip}"); I("s_cbranch_scc1 L_nort")
            I("v_mov_b32 v147, 0"); setexec(1)
            I(f"buffer_store_dword v163, v147, {SRD_WS}, s48 offen sc1")
            I("s_mov_b64 exec, -1"); I(f"v_mov_b32 v{vTG}, {sT32}"); I("s_waitcnt vmcnt(0)")
            if rtskip: a.label("L_nort")
        elif ackw1: I("s_waitcnt vmcnt(0)")
        if sl0: I(f"s_sleep {sl0}")
        stamp(8)
        setexec((1 << 40) - 1)
        ppoll(nset1, ld1, ck1, dn1, sl1, after_first=(lambda: I("s_barrier")) if kgate else None)
        I("s_mov_b64 exec, -1")
        if stamps and not amp: I(f"v_writelane_b32 {vST}, s51, 12")
        stamp(2)
        setexec((1 << 32) - 1)
        I("v_cmp_ne_u32 vcc, s47, v140")
        I("s_mov_b64 exec, -1")
        I("s_cmp_eq_u64 vcc, 0"); I(f"s_cselect_b32 {sMODE}, 1, 0")
        if not fast: I(f"s_mov_b32 {sMODE}, 0")
        rbf2(136, 137, 136, 137, 132); rbf2(138, 139, 138, 139, 132)
        I("v_add_u32 v8, 20, v0"); I("v_lshlrev_b32 v8, 2, v8")
        for c in range(4): I(f"ds_bpermute_b32 v{140+c}, v8, v{136+c}")
        I(f"v_mov_b32 v144, {sMODE}"); I(f"v_mov_b32 v145, 0")
        setexec(1); I(f"ds_write_b32 v145, v144 offset:{L_MODE}")
        I("s_mov_b64 exec, -1")
        I("v_lshlrev_b32 v146, 4, v0"); I(f"v_lshlrev_b32 v36, 2, v3"); I(f"v_add_u32 v36, {L_H16}, v36")
        I("s_waitcnt lgkmcnt(0)")
        for c in range(4): I(f"v_add_f32 v{140+c}, 1.0, v{140+c}")
        rbf2(140, 141, 140, 141, 132); rbf2(142, 143, 142, 143, 132)
        for c in range(4): I(f"v_mul_f32 v{140+c}, v{vZ+c}, v{140+c}")
        rbf2(140, 141, 140, 141, 132); rbf2(142, 143, 142, 143, 132)
        for c in range(4): I(f"v_add_f32 v{140+c}, v{140+c}, v{136+c}")
        for c in range(4): I(f"v_cvt_pk_bf16_f32 v{140+c}, v{140+c}, v{140+c}")
        dbgstore([140, 141, 142, 143], 3)
        setexec((1 << 20) - 1)
        I(f"ds_write_b128 v146, v[140:143] offset:{L_H16}")
        I("s_mov_b64 exec, -1")
        I("s_waitcnt lgkmcnt(0)")
        HP = [(132, 133), (134, 135), (136, 137), (138, 139), (140, 141), (142, 143), (144, 145), (48, 49), (50, 51), (164, 165)]
        for n in range(10): I(f"ds_read2_b32 v[{HP[n][0]}:{HP[n][1]}], v36 offset0:{8*n} offset1:{8*n+4}")
        I("v_lshl_add_u32 v8, v2, 1, v3"); I("v_lshlrev_b32 v11, 3, v8"); I("v_lshlrev_b32 v8, 4, v8")
        I(f"s_lshl_b32 s42, {sHEAD}, 3"); I(f"s_add_u32 s43, s42, {sJ}"); I("s_mul_i32 s43, s43, 768"); I(f"s_add_u32 s43, s43, {H2}")
        I("s_waitcnt lgkmcnt(0)")
        for m in range(20):
            A_ = cA0 if m % 2 == 0 else cA1
            for r in range(4): I(f"v_and_b32 v{A_+r}, v{HP[m//2][m%2]}, v{MASK[r]}")
            c = "0" if m == 0 else f"v[{cD0}:{cD0+3}]"
            I(f"v_mfma_f32_16x16x32_bf16 v[{cD0}:{cD0+3}], v[{A_}:{A_+3}], v[{vQ+4*m}:{vQ+4*m+3}], {c}")
        I(f"v_mov_b32 v135, v{vTG}"); I(f"v_mov_b32 v137, v{vTG}")
        I("v_and_b32 v146, 31, v0"); I("v_lshrrev_b32 v138, 5, v0"); I("s_movk_i32 s44, 3072")
        I("v_lshlrev_b32 v9, 4, v146"); I("v_mad_u32_u24 v9, v138, s44, v9"); I("v_lshlrev_b32 v10, 3, v146"); I("v_mad_u32_u24 v10, v138, s44, v10")
        I(f"s_mul_i32 s42, s42, 768"); I(f"s_add_u32 s42, s42, {H2}")
        for c in range(3): I(f"v_mov_b32 v{132+c}, v{cD0+c}")
        I(f"v_mov_b32 v136, v{cD0+3}")
        setexec((1 << 32) - 1)
        store_mode([f"buffer_store_dwordx4 v[132:135], v8, {SRD_WS}, s43 offen", f"buffer_store_dwordx2 v[136:137], v11, {SRD_WS}, s43 offen offset:512"])
        I("s_mov_b64 exec, -1")
        stamp(3)
        G2 = lambda k: vQ + 24*k
        def ld2(k):
            out = []
            for n in range(4):
                b = G2(k) + 6*n
                out.append(f"buffer_load_dwordx4 v[{b}:{b+3}], v9, {SRD_WS}, s42 offen offset:{768*n} sc1")
                out.append(f"buffer_load_dwordx2 v[{b+4}:{b+5}], v10, {SRD_WS}, s42 offen offset:{768*n+512} sc1")
            return out
        def ck2(k):
            for n in range(4): I(f"v_bitop3_b32 v{138+n}, v{G2(k)+6*n+3}, v{G2(k)+6*n+5}, v{vTG} bitop3:0x7e")
            I("v_or3_b32 v138, v138, v139, v140"); I("v_or_b32 v138, v138, v141"); I("v_cmp_ne_u32 vcc, 0, v138")
        def dn2(k):
            for c in range(4):
                src = (lambda n: G2(k) + 6*n + (c if c < 3 else 4))
                I(f"v_add_f32 v{138+c}, v{src(0)}, v{src(1)}"); I(f"v_add_f32 v{142+c}, v{src(2)}, v{src(3)}")
        if ackw2 is True: I("s_waitcnt vmcnt(0)")
        elif ackw2:
            a.c("poll back-off: the other seven partial sums of the head are stored at about the same moment; a poll that comes too early costs a full queue latency")
            I(f"s_sleep {ackw2}")
        stamp(9)
        ppoll(nset2, ld2, ck2, dn2, sl2, after_first=(lambda: I("s_barrier")) if bq else None)
        if stamps and not amp: I(f"v_writelane_b32 {vST}, s51, 13")
        stamp(4)
        for c in range(4): I(f"v_add_f32 v{138+c}, v{138+c}, v{142+c}")
        crossrow("v_add_f32", [138, 139, 140, 141], [142, 143, 144, 145], which=("v_permlane32_swap_b32",))
        I("v_cvt_pk_bf16_f32 v142, v138, v139"); I("v_cvt_pk_bf16_f32 v143, v140, v141")
        dbgstore([142, 143], 4)
        I("v_lshlrev_b32 v146, 3, v146")
        I("v_mov_b32 v144, 0"); I("v_mov_b32 v145, 0"); I("v_mov_b32 v8, 0")
        setexec((1 << 32) - 1)
        I(f"ds_write_b64 v146, v[142:143] offset:{L_Q16}")
        setexec(1)
        I(f"ds_write_b64 v8, v[144:145] offset:{L_ZERO}"); I(f"ds_write_b64 v8, v[144:145] offset:{L_ZERO+8}")
        I("s_mov_b64 exec, -1")
        I("s_waitcnt lgkmcnt(0)")
        I("s_barrier")
        stamp(5)
        I("s_branch L_FINISH")

    a.c("================= KV waves =================")
    a.label("L_KV0")
    if warm:
        I("s_mov_b32 s101, 1")
        for k in range(6):
            I(f"s_cmp_eq_u32 {sW}, {k}"); I(f"s_cbranch_scc1 L_stub{k}")
    a.label("L_KV")
    role[0] = "kv"
    vK, vV, vT, vBQ = 8, 40, 72, 92
    vD0, vD1, vA0, vA1, vDO = 112, 116, 120, 124, 128
    vP0, vP1 = 132, 133
    vW1, vB1, vW2, vB2 = 144, 146, 148, 150
    aOW, aOR, aH3, aG3, aML, aAVw, aAVr, aREDw, aREDr, aBC, aH3B, aG3B = 151, 152, 153, 154, 155, 156, 157, 158, 159, 160, 108, 109
    aBQ = [140, 141, 142, 143]
    I(f"s_lshl_b32 s40, {sHEAD}, 21"); I(f"s_lshl_b32 s41, {sJ}, 16"); I("s_add_u32 s40, s40, s41"); I(f"s_add_u32 s40, s40, {6144*256}")
    I("s_mov_b32 s14, 65536"); I("s_mov_b32 s15, 0x20000"); I("s_mov_b32 s19, 0x20000"); I(f"s_mov_b32 {sFF}, 0xff")
    I("v_and_b32 v134, 3, v0"); I("v_lshlrev_b32 v134, 4, v134")
    I("v_bfe_u32 v135, v0, 2, 2"); I("v_lshl_or_b32 v134, v135, 8, v134"); I("v_lshl_or_b32 v134, v3, 6, v134")
    vKO, vVO = 134, 161
    rg, ri, rw = rot
    I(f"s_mul_i32 s41, {sG}, {rg}"); I(f"s_mul_i32 s43, {sI}, {ri}"); I("s_add_u32 s41, s41, s43"); I(f"s_mul_i32 s43, {sW}, {rw}"); I("s_add_u32 s41, s41, s43")
    I(f"s_lshl_b32 s42, {sW}, {10 if inter else 13}")
    args_ready()
    I(f"s_add_u32 s12, s{P_K}, s40"); I(f"s_addc_u32 s13, s{P_K+1}, 0"); I("s_and_b32 s13, s13, 0xffff")
    issued = []
    def paced(text):
        bigs = [k for k, x in enumerate(issued) if x == "big"]
        depth = D if len(bigs) < Dswitch else D2
        if len(bigs) >= depth: I(f"s_waitcnt vmcnt({len(issued) - 1 - bigs[len(bigs) - depth]})")
        issued.append("big"); I(text)
    def offs(m):
        if m: I(f"s_add_u32 s41, s41, 1")
        I("s_and_b32 s43, s41, 7"); I(f"s_lshl_b32 s43, s43, {13 if inter else 10}"); I(f"s_add_u32 {sOFF[m]}, s43, s42")
    nfirst = min(D, 8) if not kgate else 0
    if not kgate:
        if b0: I("s_barrier")
        if b0 == 'mq': b0b()
    for m in range(nfirst):
        offs(m); paced(f"buffer_load_dwordx4 v[{vK+4*m}:{vK+4*m+3}], v{vKO}, {SRD_K}, {sOFF[m]} offen {nt}")
    if not kgate: stamp(12)
    for m in range(nfirst, 8): offs(m)
    I(f"s_add_u32 s16, s{P_V}, s40"); I(f"s_addc_u32 s17, s{P_V+1}, 0"); I("s_and_b32 s17, s17, 0xffff"); I("s_mov_b32 s18, 65536")
    I("v_lshlrev_b32 v161, 4, v0")
    I(f"s_cmp_ge_u32 {sI}, 10"); I("s_cselect_b32 s41, 1, 0"); I("s_mul_i32 s42, s41, 10"); I(f"s_sub_u32 s42, {sI}, s42")
    I(f"s_lshl_b32 s40, {sG}, 1"); I("s_add_u32 s40, s40, s41"); I("s_add_u32 s99, s40, 0")
    I(f"s_mul_i32 s40, s40, {256*1280}"); I("s_lshl_b32 s42, s42, 7"); I("s_add_u32 s40, s40, s42")
    I(f"s_and_b32 s41, {sG}, 3"); I("s_mul_i32 s41, s41, 10"); I(f"s_add_u32 s41, s41, {sI}"); I("s_sub_u32 s41, s41, 20"); I("s_add_u32 s100, s41, 0")
    I("s_lshl_b32 s41, s41, 7"); I(f"s_lshr_b32 s42, {sG}, 2"); I(f"s_mul_i32 s42, s42, {320*7680}"); I("s_add_u32 s42, s42, s41"); I("s_add_u32 s42, s42, 2560")
    I(f"s_cmp_lt_u32 {sI}, 20")
    I(f"s_cselect_b32 s40, s40, s42"); I(f"s_cselect_b32 s20, s{P_WO}, s{P_WM}"); I(f"s_cselect_b32 s21, s{P_WO+1}, s{P_WM+1}")
    I(f"s_mov_b32 s22, {319*7680+128}"); I(f"s_cmov_b32 s22, {255*1280+128}"); I("s_movk_i32 s43, 7680"); I("s_cmov_b32 s43, 1280"); I("s_movk_i32 s44, 40"); I("s_cmov_b32 s44, 32")
    I(f"s_cmp_lt_u32 {sI}, 30"); I("s_cselect_b32 s40, s40, 0")
    I("s_add_u32 s20, s20, s40"); I("s_addc_u32 s21, s21, 0"); I("s_and_b32 s21, s21, 0xffff")
    I("v_bfe_u32 v110, v0, 3, 1"); I("v_lshl_add_u32 v110, v110, 2, v3"); I("v_mul_lo_u32 v110, v110, s43")
    I("v_and_b32 v137, 7, v0"); I("v_lshl_add_u32 v110, v137, 4, v110")
    vTO = 110
    I(f"s_mul_i32 s45, {sW}, s44"); I("s_mul_i32 s45, s45, s43")
    I("s_lshl_b32 s46, s43, 3")
    I(f"s_cmp_lt_u32 {sI}, {0 if 'T' in skip else 30}"); I("s_cselect_b32 s45, s45, 0"); I("s_cselect_b32 s46, s46, 0"); I("s_cselect_b32 s22, s22, 0")
    I("s_cmp_eq_u32 s44, 40"); I("s_cselect_b32 s47, 0, 0x7ff00000"); I(f"v_add_u32 v111, s47, v110")
    if kgate:
        if b0: I("s_barrier")
        if b0 == 'mq': I("s_barrier")
        for n in range(kgate):
            if n == 4:
                I("s_cmp_eq_u32 s44, 40"); I("s_cselect_b32 s47, s45, 0")
                I(f"buffer_load_dwordx4 v[{vT+4*n}:{vT+4*n+3}], v111, {SRD_A}, s47 offen {ntt}")
            else:
                I(f"buffer_load_dwordx4 v[{vT+4*n}:{vT+4*n+3}], v{vTO}, {SRD_A}, s45 offen {ntt}")
                I("s_add_u32 s45, s45, s46")
    I(f"s_mul_i32 s47, {sW}, 432"); I("v_lshlrev_b32 v137, 3, v0"); I("v_add_u32 v137, s47, v137")
    for r in range(6): I(f"v_mov_b32 v{vW1+r}, 0")
    I("v_mov_b32 v138, 0")
    masks(136 + 0 if False else 120, 82)
    I("v_lshrrev_b32 v138, 2, v2")
    I("v_and_b32 v139, 3, v2")
    for m in range(1, 4): I(f"v_cmp_eq_u32 {sQ[m]}, {m}, v139")
    I("v_lshrrev_b32 v120, 3, v2"); I("v_lshrrev_b32 v121, 1, v3"); I(f"v_cmp_eq_u32 {sRV}, v120, v121")
    I("v_and_b32 v121, 7, v2"); I("v_and_b32 v122, 1, v3"); I("v_lshl_add_u32 v121, v121, 1, v122"); I("v_lshl_add_u32 v120, v120, 4, v121"); I("v_lshlrev_b32 v120, 4, v120")
    I(f"s_mul_i32 s40, {sW}, 544"); I(f"v_add_u32 v{aREDw}, s40, v120")
    I("v_and_b32 v120, 3, v0"); I("v_mul_u32_u24 v120, 1088, v120"); I("v_lshrrev_b32 v121, 2, v0"); I(f"v_lshl_add_u32 v{aREDr}, v121, 4, v120")
    I("v_and_b32 v120, 7, v0"); I("v_mul_u32_u24 v120, 544, v120"); I("v_lshrrev_b32 v121, 3, v0"); I(f"v_lshl_add_u32 v{aOR}, v121, 4, v120")
    I(f"s_lshl_b32 s41, {sW}, 6"); I(f"v_add_u32 v{aOR}, s41, v{aOR}")
    I(f"v_lshlrev_b32 v{aH3}, 4, v121"); I(f"v_add_u32 v{aH3}, s41, v{aH3}")
    I(f"v_lshrrev_b32 v{aH3B}, 1, v{aH3}")
    I(f"v_lshl_add_u32 v{aOW}, v2, 1, v3"); I(f"v_lshlrev_b32 v{aOW}, 4, v{aOW}"); I(f"v_add_u32 v{aOW}, s40, v{aOW}")
    I("v_and_b32 v120, 31, v0"); I("v_lshrrev_b32 v121, 5, v0")
    I("s_movk_i32 s41, 3072"); I(f"v_lshlrev_b32 v{aG3}, 4, v120"); I(f"v_mad_u32_u24 v{aG3}, v121, s41, v{aG3}")
    I(f"v_lshlrev_b32 v{aG3B}, 3, v120"); I(f"v_mad_u32_u24 v{aG3B}, v121, s41, v{aG3B}")
    I(f"v_lshlrev_b32 v{aML}, 2, v121"); I(f"v_add_u32 v{aML}, v{aML}, v0"); I(f"v_and_b32 v{aML}, 7, v{aML}"); I(f"v_lshlrev_b32 v{aML}, 4, v{aML}")
    I(f"v_lshlrev_b32 v{aAVw}, 4, v120"); I(f"s_lshl_b32 s41, {sW}, 9"); I(f"v_add_u32 v{aAVw}, s41, v{aAVw}")
    I(f"s_lshl_b32 s40, {sW}, 7"); I(f"s_add_u32 s40, s40, {L_AV}")
    I(f"s_mul_i32 s41, {sW}, 160"); I(f"s_lshr_b32 s42, {sG}, 2"); I("s_mul_i32 s42, s42, 1280"); I("s_add_u32 s41, s41, s42"); I(f"s_add_u32 s41, s41, {L_SC}")
    I("s_cmp_eq_u32 s44, 40"); I("s_cselect_b32 s40, s41, s40")
    I("v_bfe_u32 v120, v0, 3, 1"); I("v_lshl_add_u32 v120, v120, 2, v3"); I(f"v_lshlrev_b32 v{aAVr}, 2, v120"); I(f"v_add_u32 v{aAVr}, s40, v{aAVr}")
    I("v_min_u32 v120, 2, v3"); I(f"s_mul_i32 s40, {sI}, 3"); I("v_add_u32 v120, s40, v120"); I("v_min_u32 v120, 79, v120")
    if bcline:
        I("v_mul_u32_u24 v121, 205, v120"); I("v_lshrrev_b32 v121, 11, v121"); I("v_mul_u32_u24 v122, 10, v121"); I("v_sub_u32 v120, v120, v122")
        I("v_lshl_add_u32 v120, v120, 3, v121")
    I(f"v_lshlrev_b32 v{aBC}, 4, v120")
    I("v_lshl_add_u32 v139, v3, 2, v139"); I(f"v_lshlrev_b32 v139, 4, v139"); I(f"v_add_u32 v139, {L_Q16}, v139"); I(f"v_mov_b32 v120, {L_ZERO}")
    for m in range(4): I(f"v_cmp_eq_u32 s[{82+2*m}:{83+2*m}], {m}, v138")
    for m in range(4): I(f"v_cndmask_b32_e64 v{aBQ[m]}, v120, v139, s[{82+2*m}:{83+2*m}]")
    I("v_mov_b32 v138, 0")
    def wloads():
        setexec((1 << 54) - 1)
        I(f"global_load_dwordx2 v[{vW1}:{vW1+1}], v137, s[{P_W1}:{P_W1+1}]")
        I(f"global_load_dwordx2 v[{vB1}:{vB1+1}], v137, s[{P_B1}:{P_B1+1}]")
        I(f"global_load_dwordx2 v[{vW2}:{vW2+1}], v137, s[{P_W2}:{P_W2+1}]")
        I("s_mov_b64 exec, -1")
        I(f"global_load_ushort v{vB2}, v138, s[{P_B2}:{P_B2+1}]")
    if wearly:
        wloads(); issued.extend(["small"]*4)
    def tail_load(n, pace):
        f = paced if pace else I
        if n == 4:
            I("s_cmp_eq_u32 s44, 40"); I("s_cselect_b32 s47, s45, 0")
            f(f"buffer_load_dwordx4 v[{vT+4*n}:{vT+4*n+3}], v111, {SRD_A}, s47 offen {ntt}")
        else:
            f(f"buffer_load_dwordx4 v[{vT+4*n}:{vT+4*n+3}], v{vTO}, {SRD_A}, s45 offen {ntt}")
            I("s_add_u32 s45, s45, s46")
    def tail_loads():
        for n in range(5): tail_load(n, False)
    nearly = {'kv': 0, 'ktv': 5, 'kt4v': 4, 'kt3v': 3}[torder]
    if kgate:
        nearly = kgate
        I("s_barrier")
        stamp(12)
    for m in range(nfirst, 8): paced(f"buffer_load_dwordx4 v[{vK+4*m}:{vK+4*m+3}], v{vKO}, {SRD_K}, {sOFF[m]} offen {nt}")
    if not kgate:
        for n in range(nearly): tail_load(n, True)
    for m in range(nvpre): paced(f"buffer_load_dwordx4 v[{vV+4*m}:{vV+4*m+3}], v{vVO}, {SRD_V}, {sOFF[m]} offen {nt}")
    def late_v():
        for m in range(nvpre, 8): I(f"buffer_load_dwordx4 v[{vV+4*m}:{vV+4*m+3}], v{vVO}, {SRD_V}, {sOFF[m]} offen {nt}")
    if not wearly and not wlate: wloads()
    tnext = [nearly]
    early = [0]
    def tail_loads(k=99):
        if k == 99 and wofirst and early[0]:
            lg, lj = lab("tg"), lab("tj")
            I("s_cmp_eq_u32 s44, 40"); I(f"s_cbranch_scc0 {lg}")
            p0 = a.pos
            for n in range(nearly, nearly + early[0]): tail_load(n, False)
            a.label(lg)
            a.pos = p0
        while k > 0 and tnext[0] < 5:
            if k != 99 and wofirst:
                lg = lab("tw")
                I("s_cmp_eq_u32 s44, 40"); I(f"s_cbranch_scc1 {lg}")
                p0 = a.pos
                tail_load(tnext[0], False); a.label(lg); early[0] += 1
                a.pos = p0
            else: tail_load(tnext[0], False)
            tnext[0] += 1
            if k != 99: k -= 1
    NLATE = 5 - nearly
    NWL = 0 if (wearly or wlate) else 4
    NAFTER_V = NWL + NLATE
    if 'W' in skip:
        I("s_waitcnt vmcnt(4)"); stamp(13)
    stamp(1)
    if bq:
        I("s_barrier")
        late_v()
        tail_loads(tq)
    epoch()
    a.c("B1: q, placement mode and silu(c) are in LDS")
    I("s_barrier")
    stamp(2)
    for m in range(4): I(f"ds_read_b128 v[{vBQ+4*m}:{vBQ+4*m+3}], v{aBQ[m]}")
    I(f"ds_read_b32 v138, v138 offset:{L_MODE}")
    if not bq: late_v()
    if tpos == 'b1': tail_loads()
    I(f"s_waitcnt vmcnt({8 + (NAFTER_V if tpos == 'b1' else NWL)})")
    I("s_waitcnt lgkmcnt(4)")
    for m in range(8):
        t = m // 4; D_ = vD0 if t == 0 else vD1
        if m in (1, 2, 3): I(f"s_waitcnt lgkmcnt({4-m})")
        c = "0" if m % 4 == 0 else f"v[{D_}:{D_+3}]"
        I(f"v_mfma_f32_16x16x32_bf16 v[{D_}:{D_+3}], v[{vK+4*m}:{vK+4*m+3}], v[{vBQ+4*(m%4)}:{vBQ+4*(m%4)+3}], {c}")
    tail_loads(tsplit[0])
    I("s_waitcnt lgkmcnt(0)")
    I(f"v_readfirstlane_b32 {sMODE}, v138")
    I(f"s_lshl_b32 s40, {sW}, 2"); I("v_mov_b32 v138, s40")
    for k in (1, 2, 3):
        for t, D_ in ((0, vD0), (1, vD1)):
            s = 134 + t
            I(f"v_cndmask_b32_e64 v{s}, v{D_ if k == 1 else s}, v{D_+k}, {sQ[k]}")
    dppreduce("v_add_f32", [134, 135], Q2)
    rbf2(134, 135, 134, 135, 136)
    I(f"v_mul_f32 v134, {hex(SCALE)}, v134"); I(f"v_mul_f32 v135, {hex(SCALE)}, v135")
    rbf2(134, 135, 134, 135, 136)
    dbgstore([134, 135], 0)
    I("v_max_f32 v136, v134, v135")
    dppreduce("v_max_f32", [136], ["row_ror:4", "row_ror:8"]); crossrow("v_max_f32", [136], [137])
    setexec(1)
    I(f"ds_write_b32 v138, v136 offset:{L_MW}")
    I("s_mov_b64 exec, -1")
    I("v_mov_b32 v137, 0")
    I("s_waitcnt lgkmcnt(0)")
    a.c("B2: per-wave score maxima")
    I("s_barrier")
    I(f"ds_read_b128 v[120:123], v137 offset:{L_MW}"); I(f"ds_read_b128 v[140:143], v137 offset:{L_MW+16}")
    tail_loads(tsplit[1])
    I("s_waitcnt lgkmcnt(0)")
    I("v_max3_f32 v136, v120, v121, v122"); I("v_max3_f32 v137, v123, v140, v141"); I("v_max3_f32 v136, v136, v142, v143"); I("v_max_f32 v136, v136, v137")
    vM = 136
    I("v_sub_f32 v134, v134, v136"); I("v_sub_f32 v135, v135, v136")
    I(f"v_mul_f32 v134, {hex(LOG2E)}, v134"); I(f"v_mul_f32 v135, {hex(LOG2E)}, v135")
    I("v_exp_f32 v134, v134"); I("v_exp_f32 v135, v135")
    I(f"v_cvt_pk_bf16_f32 v{vP0}, v134, v134"); I(f"v_cvt_pk_bf16_f32 v{vP1}, v135, v135")
    I("v_add_f32 v137, v134, v135")
    if tpos == 'p0': tail_loads()
    for m in range(8):
        P_ = vP0 if m < 4 else vP1
        for r in range(4): I(f"v_and_b32_dpp v{vK+4*m+r}, v{P_}, v{MASK[r]} row_newbcast:{4*(m%4)} {DPPM}")
    dppreduce("v_add_f32", [137], ["row_ror:4", "row_ror:8"]); crossrow("v_add_f32", [137], [139])
    setexec(1)
    I(f"ds_write_b32 v138, v137 offset:{L_LW}")
    I("s_mov_b64 exec, -1")
    I(f"s_lshr_b32 s40, {sG}, 2"); I("s_mul_i32 s40, s40, 10240"); I("s_lshl_b32 s41, s100, 8"); I("s_add_u32 s40, s40, s41"); I(f"s_add_u32 s40, s40, {RR}")
    I(f"s_mul_i32 s41, s99, 2560"); I(f"s_cmp_ge_u32 {sI}, 10"); I("s_cselect_b32 s42, 10, 0"); I(f"s_sub_u32 s42, {sI}, s42"); I("s_lshl_b32 s42, s42, 8"); I("s_add_u32 s41, s41, s42"); I(f"s_add_u32 s41, s41, {H4}")
    I("s_cmp_eq_u32 s44, 40"); I("s_cselect_b32 s100, s40, s41")
    vTB, vTG32, vC0 = 92, 93, 94
    uW1, uB1, uW2 = 96, 100, 104
    I(f"v_mov_b32 v{vTB}, {sT8}"); I(f"v_mov_b32 v{vTG32}, {sT32}")
    I(f"v_mov_b32 v{vC0}, {f2h(GC0)}"); I(f"v_mov_b32 v{vC0+1}, {f2h(GC0)}")
    I(f"s_lshl_b32 s40, {sHEAD}, 3"); I(f"s_add_u32 s40, s40, {sJ}"); I("s_mul_i32 s40, s40, 768"); I(f"s_add_u32 s40, s40, {H3}")
    I(f"s_lshl_b32 s41, {sHEAD}, 7"); I(f"s_lshl_b32 s42, {sJ}, 4"); I("s_add_u32 s41, s41, s42"); I(f"s_add_u32 s41, s41, {H3ML}")
    I("v_mov_b32 v140, 0")
    stamp(4)
    if tpos == 'p': tail_loads()
    for m in range(8):
        I(f"s_waitcnt vmcnt({(7-m) + (NAFTER_V if m < nvpre else NLATE)})")
        c = "0" if m == 0 else f"v[{vDO}:{vDO+3}]"
        I(f"v_mfma_f32_16x16x32_bf16 v[{vDO}:{vDO+3}], v[{vK+4*m}:{vK+4*m+3}], v[{vV+4*m}:{vV+4*m+3}], {c}")
    stamp(5)
    setexec((1 << 32) - 1)
    I(f"ds_write_b128 v{aOW}, v[{vDO}:{vDO+3}] offset:{L_OW}")
    I("s_mov_b64 exec, -1")
    I("s_waitcnt lgkmcnt(0)")
    a.c("B3: per-wave P*V results; wave w merges quads 4w..4w+3 and publishes them")
    I("s_barrier")
    I(f"ds_read_b128 v[24:27], v{aOR} offset:{L_OW}")
    I(f"ds_read_b128 v[40:43], v140 offset:{L_LW}"); I(f"ds_read_b128 v[44:47], v140 offset:{L_LW+16}")
    I(f"v_mov_b32 v31, v{vTG32}")
    I("s_waitcnt lgkmcnt(2)")
    dppreduce("v_add_f32", [24, 25, 26, 27], R8)
    I("v_mov_b32 v30, v27")
    I(f"v_mov_b32 v27, v{vTG32}")
    I("s_mov_b32 exec_lo, 0x01010101"); I("s_mov_b32 exec_hi, 0")
    store_mode([f"buffer_store_dwordx4 v[24:27], v{aH3}, {SRD_WS}, s40 offen", f"buffer_store_dwordx2 v[30:31], v{aH3B}, {SRD_WS}, s40 offen offset:512"])
    I("s_mov_b64 exec, -1")
    I(f"s_cmp_eq_u32 {sW}, 7"); I("s_cbranch_scc0 L_noml")
    I("s_waitcnt lgkmcnt(0)")
    I("v_add_f32 v40, v40, v41"); I("v_add_f32 v42, v42, v43"); I("v_add_f32 v44, v44, v45"); I("v_add_f32 v46, v46, v47")
    I("v_add_f32 v40, v40, v42"); I("v_add_f32 v44, v44, v46"); I("v_add_f32 v41, v40, v44")
    I(f"v_mov_b32 v40, v{vM}"); I("v_mov_b32 v42, 0"); I(f"v_mov_b32 v43, v{vTG32}")
    setexec(1)
    store_mode([f"buffer_store_dwordx4 v[40:43], v140, {SRD_WS}, s41 offen"])
    I("s_mov_b64 exec, -1")
    a.label("L_noml")
    I("s_waitcnt lgkmcnt(0)")
    stamp(6)
    a.c("----- roles -----")
    I(f"s_cmp_lt_u32 {sI}, 20"); I("s_cbranch_scc0 L_NOTWO")

    I(f"s_cmp_lt_u32 {sW}, 2"); I("s_cbranch_scc0 L_wo_b4")
    I(f"s_lshl_b32 s40, s99, 1"); I(f"s_add_u32 s40, s40, {sW}"); I("s_lshl_b32 s41, s40, 7"); I(f"s_add_u32 s41, s41, {H3ML}")
    I(f"s_mul_i32 s40, s40, {8*768}"); I(f"s_add_u32 s40, s40, {H3}")
    lds_ = [f"buffer_load_dwordx4 v[40:43], v{aML}, {SRD_WS}, s41 offen sc1"]
    for n in range(4):
        lds_.append(f"buffer_load_dwordx4 v[{24+4*n}:{27+4*n}], v{aG3}, {SRD_WS}, s40 offen offset:{768*n} sc1")
        lds_.append(f"buffer_load_dwordx2 v[{44+2*n}:{45+2*n}], v{aG3B}, {SRD_WS}, s40 offen offset:{768*n+512} sc1")
    def chk3():
        I(f"v_bitop3_b32 v52, v27, v45, v{vTG32} bitop3:0x7e"); I(f"v_bitop3_b32 v53, v31, v47, v{vTG32} bitop3:0x7e")
        I(f"v_bitop3_b32 v54, v35, v49, v{vTG32} bitop3:0x7e"); I(f"v_bitop3_b32 v55, v39, v51, v{vTG32} bitop3:0x7e")
        I(f"v_xor_b32 v56, v43, v{vTG32}"); I("v_or3_b32 v52, v52, v53, v54"); I("v_or3_b32 v52, v52, v55, v56")
        I("v_cmp_ne_u32 vcc, 0, v52")
    poll(lds_, chk3, gap=h3gap)
    stamp(7)
    I("v_mov_b32 v42, v40")
    dppreduce("v_max_f32", [42], R8)
    I("v_sub_f32 v40, v40, v42"); I(f"v_mul_f32 v40, {hex(LOG2E)}, v40"); I("v_exp_f32 v40, v40")
    I("v_mul_f32 v41, v41, v40")
    val = lambda n, c: (24 + 4*n + c) if c < 3 else (44 + 2*n)
    den = [f"v_add_f32_dpp v41, v41, v41 {m} {DPPM}" for m in R8] + ["v_rcp_f32 v41, v41"]
    for n in range(4):
        for c in range(4): I(f"v_mul_f32_dpp v{56+c}, v40, v{val(0, c)} row_newbcast:0 {DPPM}" if n == 0 else f"v_fmac_f32_dpp v{56+c}, v40, v{val(n, c)} row_newbcast:{n} {DPPM}")
        I(den[n])
    crossrow("v_add_f32", [56, 57, 58, 59], [60, 61, 62, 63], which=("v_permlane32_swap_b32",))
    for c in range(4): I(f"v_mul_f32 v{56+c}, v{56+c}, v41")
    for c in range(4): I(f"v_cvt_pk_bf16_f32 v{56+c}, v{56+c}, v{56+c}")
    dbgstore([56, 57, 58, 59], 1)
    setexec((1 << 32) - 1)
    I(f"ds_write_b128 v{aAVw}, v[56:59] offset:{L_AV}")
    I("s_mov_b64 exec, -1")
    I("s_waitcnt lgkmcnt(0)")
    a.label("L_wo_b4")
    I("s_barrier")
    a.c("tail GEMV (wo block or gate block)")
    a.label("L_GEMV")
    I(f"ds_read2_b32 v[24:25], v{aAVr} offset0:0 offset1:8"); I(f"ds_read2_b32 v[26:27], v{aAVr} offset0:16 offset1:24"); I(f"ds_read_b32 v28, v{aAVr} offset:128")
    I("v_lshrrev_b32 v20, 2, v0"); I("v_lshlrev_b32 v20, 4, v20")
    I("s_waitcnt vmcnt(0) lgkmcnt(0)")
    stamp(8)
    def ands(n):
        A_ = vA0 if n % 2 == 0 else vA1
        for r in range(4): I(f"v_and_b32 v{A_+r}, v{24+n}, v{MASK[r]}")
    def mm(n):
        A_ = vA0 if n % 2 == 0 else vA1
        c = "0" if n == 0 else f"v[{vD0}:{vD0+3}]"
        I(f"v_mfma_f32_16x16x32_bf16 v[{vD0}:{vD0+3}], v[{A_}:{A_+3}], v[{vT+4*n}:{vT+4*n+3}], {c}")
    ands(0); ands(1); mm(0); ands(2); mm(1); ands(3); mm(2); ands(4); mm(3)
    I("s_cmp_eq_u32 s44, 40"); I("s_cbranch_scc0 L_gemv4")
    mm(4)
    a.label("L_gemv4")
    a.nop(8)
    I(f"s_mov_b64 exec, {sRV}")
    I(f"ds_write_b128 v{aREDw}, v[{vD0}:{vD0+3}] offset:{L_RED}")
    I("s_mov_b64 exec, -1")
    I("s_waitcnt lgkmcnt(0)")
    I("s_barrier")
    I(f"s_cmp_eq_u32 {sW}, 0"); I("s_cbranch_scc0 L_nopub4")
    for s_, off in enumerate((0, 256, 544, 544 + 256)): I(f"ds_read_b128 v[{24+4*s_}:{27+4*s_}], v{aREDr} offset:{L_RED + off}")
    I("s_waitcnt lgkmcnt(2)")
    for c in range(4): I(f"v_add_f32 v{24+c}, v{24+c}, v{28+c}")
    I("s_waitcnt lgkmcnt(0)")
    for c in range(4): I(f"v_add_f32 v{32+c}, v{32+c}, v{36+c}")
    for c in range(4): I(f"v_add_f32 v{24+c}, v{24+c}, v{32+c}")
    dppreduce("v_add_f32", [24, 25, 26, 27], Q2)
    for c in range(4): I(f"v_bfi_b32 v{24+c}, {sFF}, v{vTB}, v{24+c}")
    I("s_mov_b32 exec_lo, 0x11111111"); I("s_mov_b32 exec_hi, 0x11111111")
    I(f"buffer_store_dwordx4 v[24:27], v20, {SRD_WS}, s100 offen sc1")
    I("s_mov_b64 exec, -1")
    stamp(9)
    a.label("L_nopub4")
    I(f"s_cmp_lt_u32 {sI}, 27"); I("s_cbranch_scc0 L_FINISH")

    a.c("----- token MLP: y[d] = sum_f gelu(t[d]*w1[f] + b1[f]) * w2[f] for 3 columns d -----")
    if wlate:
        I(f"s_mul_i32 s47, {sW}, 432"); I("v_lshlrev_b32 v137, 3, v0"); I("v_add_u32 v137, s47, v137"); I("v_mov_b32 v138, 0")
        wloads()
        I("s_waitcnt vmcnt(0)")
    for base, raw in ((uW1, vW1), (uB1, vB1), (uW2, vW2)):
        for h in range(2):
            I(f"v_lshlrev_b32 v{base+2*h}, 16, v{raw+h}"); I(f"v_and_b32 v{base+2*h+1}, 0xffff0000, v{raw+h}")
    I(f"v_lshlrev_b32 v{vB2}, 16, v{vB2}")
    I(f"s_lshl_b32 s40, {sG}, 11"); I(f"s_add_u32 s40, s40, {BC}")
    I(f"s_mov_b32 s46, {f2h(GC1)}"); I(f"s_mov_b32 s47, {f2h(GC1)}")
    I("v_lshlrev_b32 v22, 7, v2"); I(f"s_lshl_b32 s41, {sW}, 4"); I("v_lshl_add_u32 v22, v3, 2, v22"); I("v_add_u32 v22, s41, v22")
    I("v_lshlrev_b32 v23, 7, v3"); I("v_lshl_add_u32 v23, v2, 2, v23"); I(f"v_add_u32 v23, {L_FIN}, v23")
    I("v_cmp_eq_u32 s[42:43], 1, v2"); I("v_cmp_eq_u32 s[44:45], 2, v2")
    I(f"s_mul_i32 s41, {sI}, 3"); I("v_add_u32 v21, s41, v3"); I("v_cmp_gt_u32 vcc, 80, v21")
    I(f"s_mul_i32 s41, {sG}, 80"); I("v_add_u32 v21, s41, v21"); I("v_lshlrev_b32 v21, 1, v21")
    I("s_and_b32 s48, vcc_lo, 0x00010001"); I("s_and_b32 s49, vcc_hi, 0x00000001")
    def chkbc(): I(f"v_cmp_ne_u32 vcc, v27, v{vTG32}")
    poll([f"buffer_load_dwordx4 v[24:27], v{aBC}, {SRD_WS}, s40 offen sc1"], chkbc, gap=bcgap)
    stamp(10)
    for d in range(3): I(f"v_readlane_b32 s{32+2*d}, v24, {16*d}")
    U = lambda d, h: 28 + 4*d + 2*h
    E = lambda d, h: 40 + 4*d + 2*h
    pr = lambda r: f"v[{r}:{r+1}]"
    DH = [(d, h) for d in range(3) for h in range(2)]
    for d, h in DH: I(f"v_pk_fma_f32 {pr(U(d,h))}, s[{32+2*d}:{33+2*d}], {pr(uW1+2*h)}, {pr(uB1+2*h)} op_sel_hi:[0,1,1]")
    for d, h in DH: I(f"v_pk_mul_f32 {pr(E(d,h))}, {pr(U(d,h))}, {pr(U(d,h))}")
    for d, h in DH: I(f"v_pk_fma_f32 {pr(E(d,h))}, {pr(E(d,h))}, s[46:47], {pr(vC0)}")
    for d, h in DH: I(f"v_pk_mul_f32 {pr(E(d,h))}, {pr(U(d,h))}, {pr(E(d,h))}")
    for d, h in DH:
        I(f"v_exp_f32 v{E(d,h)}, v{E(d,h)}"); I(f"v_exp_f32 v{E(d,h)+1}, v{E(d,h)+1}")
        I(f"v_pk_mul_f32 {pr(U(d,h))}, {pr(U(d,h))}, {pr(uW2+2*h)}")
    for d, h in DH: I(f"v_pk_add_f32 {pr(E(d,h))}, {pr(E(d,h))}, 1.0 op_sel_hi:[1,0]")
    for d, h in DH: I(f"v_rcp_f32 v{E(d,h)}, v{E(d,h)}"); I(f"v_rcp_f32 v{E(d,h)+1}, v{E(d,h)+1}")
    for d in range(3): I(f"v_pk_mul_f32 {pr(U(d,0))}, {pr(U(d,0))}, {pr(E(d,0))}")
    for d in range(3): I(f"v_pk_fma_f32 {pr(U(d,0))}, {pr(U(d,1))}, {pr(E(d,1))}, {pr(U(d,0))}")
    for d in range(3): I(f"v_add_f32 v{52+d}, v{U(d,0)}, v{U(d,0)+1}")
    dppreduce("v_add_f32", [52, 53, 54], R16)
    I("v_cndmask_b32_e64 v52, v52, v53, s[42:43]"); I("v_cndmask_b32_e64 v52, v52, v54, s[44:45]")
    I("s_mov_b32 exec_lo, 0x00070007"); I("s_mov_b32 exec_hi, 0x00070007")
    I(f"ds_write_b32 v22, v52 offset:{L_FIN}")
    I("s_mov_b64 exec, -1")
    I("s_waitcnt lgkmcnt(0)")
    I("s_barrier")
    I(f"s_cmp_eq_u32 {sW}, 0"); I("s_cbranch_scc0 L_FINISH")
    for _ in range(diagnop): I("s_nop 15")
    I("ds_read2_b32 v[32:33], v23 offset0:0 offset1:16")
    I("s_waitcnt lgkmcnt(0)")
    I("v_add_f32 v32, v32, v33")
    dppreduce("v_add_f32", [32], R16)
    I(f"v_add_f32 v32, v32, v{vB2}")
    I("v_fma_f32 v32, v26, v32, v25"); I("v_cvt_pk_bf16_f32 v32, v32, v32")
    dbgstore([24, 25, 26, 32], 2)
    I("s_mov_b64 exec, s[48:49]")
    I(f"global_store_short v21, v32, s[{P_OUT}:{P_OUT+1}] {outflag}")
    I("s_mov_b64 exec, -1")
    stamp(11)
    I("s_branch L_FINISH")

    a.c("----- gate role jumps to the GEMV; importer -----")
    a.label("L_NOTWO")
    I(f"s_cmp_lt_u32 {sI}, 30"); I("s_cbranch_scc1 L_GEMV")
    I(f"s_cmp_eq_u32 {sI}, 30"); I("s_cbranch_scc0 L_FINISH")
    I("s_waitcnt vmcnt(0)")
    I(f"s_cmp_eq_u32 {sW}, 0"); I("s_cbranch_scc0 L_imp_gather")
    I("v_mul_u32_u24 v58, 20, v0")
    I(f"global_load_dwordx4 v[60:63], v58, s[{P_X}:{P_X+1}]"); I(f"global_load_dword v64, v58, s[{P_X}:{P_X+1}] offset:16")
    for c in range(10): I(f"v_mov_b32 v{96+4*c+3}, v{vTG32}")
    I("v_lshlrev_b32 v58, 1, v58")
    I(f"s_lshl_b32 s41, {sG}, 3"); I("v_subrev_u32 v59, s41, v0"); I("v_lshlrev_b32 v59, 4, v59" if bcline else "v_mul_u32_u24 v59, 160, v59")
    I(f"s_lshl_b32 s46, {sG}, 11"); I(f"s_add_u32 s46, s46, {BC}")
    I("s_mov_b64 s[42:43], 0xff"); I("s_lshl_b64 s[42:43], s[42:43], s41")
    I("s_waitcnt vmcnt(0)")
    for n in range(5):
        I(f"v_lshlrev_b32 v{76+2*n}, 16, v{60+n}"); I(f"v_and_b32 v{77+2*n}, 0xffff0000, v{60+n}")
    I("s_branch L_imp_b4")
    a.label("L_imp_gather")
    I(f"s_cmp_lt_u32 {sW}, 6"); I("s_cbranch_scc0 L_imp_gate")
    I("v_and_b32 v20, 31, v0"); I(f"s_sub_u32 s41, {sW}, 1"); I("s_lshl_b32 s41, s41, 5"); I("v_add_u32 v20, s41, v20"); I("v_lshlrev_b32 v20, 4, v20")
    I("v_lshrrev_b32 v21, 5, v0"); I("s_movk_i32 s41, 20480"); I("v_mad_u32_u24 v21, v21, s41, v20")
    for n in range(4): I(f"s_mov_b32 s{32+n}, {H4 + 5120*n}")
    GB = lambda k: [(24, 96)[k] + 4*n for n in range(10)]
    pr_ = lambda r: f"v[{r}:{r+1}]"
    def sum8(k):
        b = GB(k)
        for st in (4, 2):
            for n in range(st):
                for h in range(2): I(f"v_pk_add_f32 {pr_(136+4*n+2*h)}, {pr_(b[n]+2*h if st == 4 else 136+4*n+2*h)}, {pr_(b[n+st]+2*h if st == 4 else 136+4*(n+st)+2*h)}")
        for h in range(2): I(f"v_pk_add_f32 {pr_(136+2*h)}, {pr_(136+2*h)}, {pr_(140+2*h)}")
    mpoll(impsets, lambda k: [f"buffer_load_dwordx4 v[{GB(k)[n]}:{GB(k)[n]+3}], v21, {SRD_WS}, s{32+n//2} offen offset:{2560*(n%2)} sc1" for n in range(8)],
          lambda k: chk24(GB(k)[:8], vTB, 66)(), sum8, impsl)
    stamp(7)
    crossrow("v_add_f32", [136, 137, 138, 139], [140, 141, 142, 143], which=("v_permlane32_swap_b32",))
    setexec((1 << 32) - 1)
    I(f"ds_write_b128 v20, v[136:139] offset:{L_IA}")
    I("s_mov_b64 exec, -1")
    I("s_branch L_imp_b4")
    a.label("L_imp_gate")
    I(f"s_sub_u32 s41, {sW}, 6"); I("s_mul_i32 s41, s41, 320"); I("v_add_u32 v20, s41, v0"); I("s_movk_i32 s40, 160")
    for n in range(5):
        I(f"v_add_u32 v{68+n}, {64*n}, v20"); I(f"v_subrev_u32 v{74+2*n}, 320, v{68+n}"); I(f"v_lshlrev_b32 v{68+n}, 4, v{68+n}")
        I(f"v_cmp_gt_u32 vcc, s40, v{74+2*n}"); I(f"v_cndmask_b32_e64 v{74+2*n}, 0, 1.0, vcc")
    I(f"s_mov_b32 s40, {RR}"); I(f"s_mov_b32 s41, {RR + 10240}")
    GG = lambda k: [(24, 96)[k] + 4*n for n in range(10)]
    def sumg(k):
        b = GG(k)
        for n in range(5):
            for h in range(2): I(f"v_pk_add_f32 {pr_(136+4*n+2*h)}, {pr_(b[n]+2*h)}, {pr_(b[n+5]+2*h)}")
    mpoll(impsets, lambda k: [f"buffer_load_dwordx4 v[{GG(k)[n]}:{GG(k)[n]+3}], v{68+n%5}, {SRD_WS}, s{40+n//5} offen sc1" for n in range(10)],
          lambda k: chk24(GG(k), vTB, 66)(), sumg, impsl)
    for n in range(5):
        for h in range(2): I(f"v_pk_add_f32 {pr_(136+4*n+2*h)}, {pr_(136+4*n+2*h)}, {pr_(74+2*n)} op_sel_hi:[1,0]")
    for n in range(5): I(f"ds_write_b128 v{68+n}, v[{136+4*n}:{139+4*n}] offset:{L_MODS}")
    a.label("L_imp_b4")
    I("s_waitcnt lgkmcnt(0)")
    I("s_barrier")
    I(f"s_cmp_eq_u32 {sW}, 0"); I("s_cbranch_scc1 L_imp_ln")
    I(f"s_lshl_b32 s40, {sW}, 3"); I(f"s_or_b32 s40, s40, {sG}"); I("s_cmp_eq_u32 s40, 8"); I("s_cbranch_scc0 L_FINISH")
    I(f"v_mov_b32 v58, 0"); setexec(1)
    I(f"buffer_store_dword v{vTG32}, v58, {SRD_WS}, 0 offen sc1")
    I("s_mov_b64 exec, -1")
    I("s_branch L_FINISH")
    a.label("L_imp_ln")
    stamp(8)
    for n in range(5): I(f"ds_read_b64 v[{24+2*n}:{25+2*n}], v58 offset:{L_IA + 8*n}")
    for n in range(5): I(f"ds_read_b64 v[{34+2*n}:{35+2*n}], v58 offset:{L_MODS + 8*n}")
    for n in range(5): I(f"ds_read_b64 v[{66+2*n}:{67+2*n}], v58 offset:{L_MODS + 5120 + 8*n}")
    for n in range(5): I(f"ds_read_b64 v[{44+2*n}:{45+2*n}], v58 offset:{L_MODS + 2560 + 8*n}")
    REC = 96
    I("s_waitcnt lgkmcnt(10)")
    for n in range(5): I(f"v_pk_fma_f32 v[{24+2*n}:{25+2*n}], v[{34+2*n}:{35+2*n}], v[{24+2*n}:{25+2*n}], v[{76+2*n}:{77+2*n}]")
    def stats(X, fill):
        I(f"v_pk_add_f32 v[54:55], v[{X}:{X+1}], v[{X+2}:{X+3}]"); I(f"v_pk_mul_f32 v[56:57], v[{X}:{X+1}], v[{X}:{X+1}]")
        for n in range(1, 5):
            if n > 1: I(f"v_pk_add_f32 v[54:55], v[54:55], v[{X+2*n}:{X+2*n+1}]")
            I(f"v_pk_fma_f32 v[56:57], v[{X+2*n}:{X+2*n+1}], v[{X+2*n}:{X+2*n+1}], v[56:57]")
        I("v_add_f32 v54, v54, v55"); I("v_add_f32 v56, v56, v57")
        steps = []
        for mod in R16: steps.append([f"v_add_f32_dpp v54, v54, v54 {mod} {DPPM}", f"v_add_f32_dpp v56, v56, v56 {mod} {DPPM}"])
        for sw in ("v_permlane16_swap_b32", "v_permlane32_swap_b32"):
            steps.append(["v_mov_b32 v55, v54", "v_mov_b32 v57, v56"])
            steps.append([f"{sw} v54, v55", f"{sw} v56, v57"])
            steps.append(["v_add_f32 v54, v54, v55", "v_add_f32 v56, v56, v57"])
        fill = list(fill)
        for st in steps:
            for s in st: I(s)
            if fill: I(fill.pop(0))
        for s in fill: I(s)
        I(f"v_mul_f32 v54, {hex(INV640)}, v54")
        I(f"v_mul_f32 v56, {hex(INV640)}, v56"); I("v_fma_f32 v56, -v54, v54, v56"); I("v_max_f32 v56, 0, v56")
        I(f"v_add_f32 v56, {hex(EPS)}, v56"); I("v_rsq_f32 v55, v56")
        I("v_mul_f32 v56, v54, v55"); I("v_mov_b32 v54, v55")
    fill1 = [f"v_mov_b32 v{REC+4*c+1}, v{24+c}" for c in range(10)]
    stats(24, fill1)
    I("s_waitcnt lgkmcnt(0)")
    for n in range(5): I(f"v_pk_fma_f32 v[{24+2*n}:{25+2*n}], v[{24+2*n}:{25+2*n}], v[54:55], v[56:57] op_sel_hi:[1,0,0] neg_lo:[0,0,1] neg_hi:[0,0,1]")
    for n in range(5): I(f"v_pk_fma_f32 v[{24+2*n}:{25+2*n}], v[{24+2*n}:{25+2*n}], v[{66+2*n}:{67+2*n}], v[{44+2*n}:{45+2*n}]")
    fill2 = [f"ds_read_b32 v{REC+4*c+2}, v58 offset:{L_MODS + 7680 + 4*c}" for c in range(10)]
    stats(24, fill2)
    for c in range(10): I(f"v_fma_f32 v{REC+4*c}, v{24+c}, v54, -v56")
    I("s_waitcnt lgkmcnt(0)")
    I("s_mov_b64 exec, s[42:43]")
    store_mode([f"buffer_store_dwordx4 v[{REC+4*c}:{REC+4*c+3}], v59, {SRD_WS}, s46 offen offset:{(128 if bcline else 16)*c}" for c in range(10)])
    I("s_mov_b64 exec, -1")
    stamp(9)
    I("s_branch L_FINISH")
    q2()
    m2()
    a.c("================= end =================")
    a.label("L_FINISH")
    if amp:
        I(f"v_readlane_b32 s40, {vST}, {amp[1]}"); I(f"v_readlane_b32 s41, {vST}, 0"); I("s_nop 3")
        if ampg:
            I("v_mov_b32 v166, 0"); I(f"global_load_dword v165, v166, s[{P_DBG}:{P_DBG+1}] sc1"); I("s_waitcnt vmcnt(0)"); I("v_readfirstlane_b32 s41, v165"); I("s_nop 3")
        I("s_cmp_eq_u32 s40, 0"); I("s_cbranch_scc1 L_ampdone")
        I("s_sub_u32 s40, s40, s41"); I(f"s_mul_i32 s40, s40, {ampk}")
        I("s_memrealtime s[42:43]"); I("s_waitcnt lgkmcnt(0)"); I("s_add_u32 s40, s40, s42")
        a.label("L_ampspin")
        I("s_sleep 2"); I("s_memrealtime s[42:43]"); I("s_waitcnt lgkmcnt(0)"); I("s_sub_u32 s43, s40, s42"); I("s_cmp_gt_i32 s43, 0"); I("s_cbranch_scc1 L_ampspin")
        a.label("L_ampdone")
    elif stamps and dbgmax is not None:
        I("s_memrealtime s[50:51]"); I("s_waitcnt lgkmcnt(0)"); I(f"v_writelane_b32 {vST}, s50, 15")
        I(f"v_readlane_b32 s50, {vST}, 0"); I("s_nop 3"); I("s_not_b32 s50, s50"); I(f"v_writelane_b32 {vST}, s50, 0")
        I(f"s_min_u32 s50, {sW}, 8") ; I(f"s_cmp_eq_u32 {sW}, 9"); I("s_cselect_b32 s50, 9, s50"); I(f"s_cmp_lt_u32 {sW}, 8"); I("s_cselect_b32 s50, 0, s50")
        I(f"s_cmp_eq_u32 s50, {dict(kv=0, q=8, m=9)[dbgmax]}"); I("s_cbranch_scc1 L_dm1")
        I(f"v_readlane_b32 s48, {vST}, 0"); I(f"v_readlane_b32 s49, {vST}, 15"); I(f"v_mov_b32 {vST}, 0"); I("s_nop 3"); I(f"v_writelane_b32 {vST}, s48, 0"); I(f"v_writelane_b32 {vST}, s49, 15")
        a.label("L_dm1")
        I("v_lshlrev_b32 v166, 2, v0"); setexec(0xffff)
        I(f"global_atomic_umax v166, {vST}, s[{P_DBG}:{P_DBG+1}]")
        I("s_mov_b64 exec, -1")
    elif stamps:
        I("s_memrealtime s[50:51]"); I("s_waitcnt lgkmcnt(0)"); I(f"v_writelane_b32 {vST}, s50, 15")
        I("s_getreg_b32 s50, hwreg(HW_REG_XCC_ID, 0, 4)"); I(f"v_writelane_b32 {vST}, s50, 16")
        I("s_lshl_b32 s50, s2, 4"); I(f"s_add_u32 s50, s50, {sW}"); I("s_lshl_b32 s50, s50, 8"); I(f"s_add_u32 s50, s50, {STP}")
        I("v_lshlrev_b32 v166, 2, v0")
        I(f"buffer_store_dword {vST}, v166, {SRD_WS}, s50 offen")
    I("s_endpgm")
    for l0, l1, texts in slow:
        a.label(l0)
        for t in texts: I(t + " sc1")
        I(f"s_branch {l1}")
    a.label("L_END")
    I("s_endpgm")
    a.raw('.section .rodata,"a"'); a.raw(".p2align 6"); a.raw(f".amdhsa_kernel {NAME}_kernel")
    a.raw("  .amdhsa_next_free_vgpr 168"); a.raw("  .amdhsa_next_free_sgpr 102"); a.raw("  .amdhsa_accum_offset 168")
    a.raw("  .amdhsa_group_segment_fixed_size 0"); a.raw("  .amdhsa_kernarg_size 120"); a.raw("  .amdhsa_user_sgpr_count 2")
    a.raw("  .amdhsa_user_sgpr_kernarg_segment_ptr 1"); a.raw("  .amdhsa_system_sgpr_workgroup_id_x 1"); a.raw(".end_amdhsa_kernel")
    return a

if __name__ == "__main__":
    kw = eval("dict(" + (sys.argv[2] if len(sys.argv) > 2 else "") + ")")
    a = gen(**kw)
    open(sys.argv[1], "w").write(a.text())
    print("instructions", a.ninstr, "nops", a.nops)
```
